```python
import torch

def _softmax(x, axis=-1):
    return torch.softmax(x, dim=axis)
def _gelu(x):
    return torch.nn.functional.gelu(x, approximate="tanh")
def _silu(x):
    return torch.nn.functional.silu(x)
def _sigmoid(x):
    return torch.sigmoid(x)
def _layernorm(x, axis=-1, eps=1e-5):
    m = x.mean(dim=axis, keepdim=True)
    v = x.var(dim=axis, keepdim=True, unbiased=False)
    return (x - m) / torch.sqrt(v + eps)
def _scatter_add(tgt, idx, src, axis=0):
    return tgt.clone().index_add_(axis, idx, src)
def _segment_sum(src, seg, n):
    out = torch.zeros((n,) + src.shape[1:], dtype=src.dtype)
    return out.index_add_(0, seg, src)
def _pad(x, pw):
    flat = tuple(v for pair in reversed(pw) for v in pair)
    return torch.nn.functional.pad(x, flat)

kernel_name = 'concat_heads__softmax_full_mha__ssm_conv_s4d__prompt'

def setup_inputs():

    _w = (lambda a: (lambda t: t.to(torch.bfloat16) if t.is_floating_point() else t)(torch.as_tensor(a)))
    def _A_setup():
        B, S, D = 1, 2048, 512
        return {
            "x": _w((lambda *s: torch.randn(*s, dtype=torch.bfloat16) * 0.2)(B, S, D)),
            "wqkv": _w((lambda *s: torch.randn(*s, dtype=torch.bfloat16) * 0.2)(D, 3 * D)),
            "wo": _w((lambda *s: torch.randn(*s, dtype=torch.bfloat16) * 0.05)(D, D)),
        }
    _A_in = _A_setup()

    def _B_setup():
        Bsz, L, D, N = 1, 2048, 512, 128
        return {
            "u": _w((lambda *s: torch.randn(*s, dtype=torch.bfloat16) * 0.05)(Bsz, L, D)),
            "log_A_real": _w((lambda *s: torch.randn(*s, dtype=torch.bfloat16) * 6.4)(D, N) * 0.5),
            "A_imag": _w((lambda *s: torch.randn(*s, dtype=torch.bfloat16) * 0.05)(D, N) * 3.14),
            "C_real": _w((lambda *s: torch.randn(*s, dtype=torch.bfloat16) * 0.4)(D, N) / N ** 0.5),
            "C_imag": _w((lambda *s: torch.randn(*s, dtype=torch.bfloat16) * 0.4)(D, N) / N ** 0.5),
            "log_dt": _w((lambda *s: torch.randn(*s, dtype=torch.bfloat16) * 0.05)(D) * 0.5 - 4.0),
            "D_skip": _w((lambda *s: torch.randn(*s, dtype=torch.bfloat16) * 0.05)(D)),
        }
    _B_in = _B_setup()

    return {
        "A_x": _A_in["x"],
        "A_wqkv": _A_in["wqkv"],
        "A_wo": _A_in["wo"],
        "B_u": _B_in["u"],
        "B_log_A_real": _B_in["log_A_real"],
        "B_A_imag": _B_in["A_imag"],
        "B_C_real": _B_in["C_real"],
        "B_C_imag": _B_in["C_imag"],
        "B_log_dt": _B_in["log_dt"],
        "B_D_skip": _B_in["D_skip"],
    }

def reference(A_x, A_wqkv, A_wo, B_u, B_log_A_real, B_A_imag, B_C_real, B_C_imag, B_log_dt, B_D_skip):
    def _A_ref(x, wqkv, wo):
        B, S, D = x.shape
        H = 32; Dh = D // H
        qkv = (lambda x, *d: x.permute(*d))((x @ wqkv).reshape(B, S, 3, H, Dh), 2, 0, 3, 1, 4)
        q, k, v = qkv[0], qkv[1], qkv[2]
        scale = Dh ** -0.5
        scores = torch.einsum("bhqd,bhkd->bhqk", q, k) * scale
        p = _softmax(scores, axis=-1)
        o = torch.einsum("bhqk,bhkd->bhqd", p, v)
        return (lambda x, *d: x.permute(*d))(o, 0, 2, 1, 3).reshape(B, S, D) @ wo

    def _B_ref(u, log_A_real, A_imag, C_real, C_imag, log_dt, D_skip):
        L = u.shape[1]
        dt = torch.exp(log_dt)
        A = -torch.exp(log_A_real) + 1j * A_imag
        C = (C_real + 1j * C_imag) * dt[:, None]
        pos = (lambda x, dt: x.to(dt))(torch.arange(L), log_dt.dtype)
        P = torch.exp((A * dt[:, None])[:, :, None] * pos[None, None, :])
        K = 2.0 * torch.einsum("dn,dnl->dl", C, P).real
        L2 = 2 * L
        u_t = (lambda x, *d: x.permute(*d))(u, 0, 2, 1)
        Kf = (lambda x, *a, **k: torch.fft.rfft(x.float(), *a, **k))(K, L2)
        Uf = (lambda x, *a, **k: torch.fft.rfft(x.float(), *a, **k))(u_t, L2)
        y = (lambda x, *a, **k: torch.fft.irfft(x, *a, **k).to(torch.bfloat16))(Uf * Kf[None, :, :], L2)[:, :, :L]
        y = (lambda x, *d: x.permute(*d))(y, 0, 2, 1)
        return y + u * D_skip[None, None, :]

    a = _A_ref(A_x, A_wqkv, A_wo)
    b = _B_ref(B_u, B_log_A_real, B_A_imag, B_C_real, B_C_imag, B_log_dt, B_D_skip)
    return torch.concatenate([a, b], axis=-1)
```

```python
import re


class Asm:
    def __init__(self):
        self.lines = []
        self._uid = 0

    def __call__(self, text):
        for ln in text.split('\n'):
            ln = ln.rstrip()
            if ln.strip():
                self.lines.append(ln if ln.lstrip().startswith(('.', ';')) or ln.rstrip().endswith(':') else '  ' + ln.strip())

    def label(self, name):
        self.lines.append(name + ':')

    def comment(self, text):
        self.lines.append('  ; ' + text)

    def uid(self, base):
        self._uid += 1
        return f'L_{base}_{self._uid}'

    def text(self):
        return '\n'.join(self.lines) + '\n'


def vr(a, n=1):
    return f'v{a}' if n == 1 else f'v[{a}:{a + n - 1}]'


def sr(a, n=1):
    return f's{a}' if n == 1 else f's[{a}:{a + n - 1}]'


class VmQueue:
    def __init__(self):
        self.q = []

    def push(self, tag):
        self.q.append(tag)

    def count_after(self, tag):
        idx = max(i for i, t in enumerate(self.q) if t == tag)
        return len(self.q) - 1 - idx

    def wait(self, a, tag):
        n = self.count_after(tag)
        assert n <= 63, n
        a(f's_waitcnt vmcnt({n})')


_REG = re.compile(r'(-|\|)?\b([vsa])(\d+)\b|(-|\|)?\b([vsa])\[(\d+):(\d+)\]|\b(vcc|exec|m0|vcc_lo|vcc_hi|exec_lo|exec_hi)\b')
TRANS = ('v_exp_', 'v_log_', 'v_rcp_', 'v_rsq_', 'v_sqrt_', 'v_sin_', 'v_cos_')


def regs_of(op):
    out = set()
    for m in _REG.finditer(op):
        if m.group(2):
            out.add((m.group(2), int(m.group(3))))
        elif m.group(5):
            for i in range(int(m.group(6)), int(m.group(7)) + 1):
                out.add((m.group(5), i))
        elif m.group(8):
            n = m.group(8)
            out.add((n.split('_')[0], 0))
    return out


class Ins:
    def __init__(self, text, line):
        self.text = text
        self.line = line
        t = text.split(';')[0].strip()
        parts = t.split(None, 1)
        self.op = parts[0]
        rest = parts[1] if len(parts) > 1 else ''
        ops, depth, cur = [], 0, ''
        for ch in rest:
            if ch == '[':
                depth += 1
            if ch == ']':
                depth -= 1
            if ch == ',' and depth == 0:
                ops.append(cur.strip())
                cur = ''
            else:
                cur += ch
        if cur.strip():
            ops.append(cur.strip())
        self.mods = ''
        if ops:
            last = ops[-1].split()
            if len(last) > 1 and not last[0].startswith('hwreg'):
                ops[-1] = last[0]
                self.mods = ' '.join(last[1:])
        self.ops = ops
        o = self.op
        self.is_mfma = o.startswith('v_mfma') or o.startswith('v_smfmac')
        self.is_valu = o.startswith('v_') and not self.is_mfma
        self.is_trans = o.startswith(TRANS)
        self.is_ds = o.startswith('ds_')
        self.is_vmem = o.startswith(('buffer_', 'global_', 'flat_'))
        self.is_salu = o.startswith('s_')
        self.lds_dma = self.is_vmem and (' lds' in ' ' + self.mods or '_lds_' in o)
        self.w, self.r = set(), set()
        R = [regs_of(x) for x in ops]
        if self.is_mfma:
            self.w = R[0]
            self.r = R[1] | R[2] | R[3]
            self.srcc = R[3]
            self.srcab = R[1] | R[2]
            self.passes = 8 if '32x32' in o else 4
        elif self.is_valu:
            if o.startswith('v_cmp'):
                self.w = R[0]
                self.r = set().union(*R[1:])
                if o.startswith('v_cmpx'):
                    self.w |= {('exec', 0)}
            elif o.startswith('v_permlane') and 'swap' in o:
                self.w = R[0] | R[1]
                self.r = R[0] | R[1]
            elif o.startswith(('v_add_co', 'v_sub_co', 'v_addc_co', 'v_subb_co')):
                self.w = R[0] | R[1]
                self.r = set().union(*R[2:])
            else:
                self.w = R[0]
                self.r = set().union(*R[1:]) if len(R) > 1 else set()
                if o.startswith(('v_fmac', 'v_mac', 'v_writelane', 'v_pk_fmac', 'v_dot2c')) or 'UNUSED_PRESERVE' in self.mods \
                        or (o.startswith('v_cndmask') and False):
                    self.r |= R[0]
                if o.startswith('v_cndmask') and len(ops) == 3:
                    self.r |= {('vcc', 0)}
        elif self.is_ds:
            if o.startswith(('ds_read', 'ds_bpermute', 'ds_permute', 'ds_swizzle')):
                self.w = R[0]
                self.r = set().union(*R[1:]) if len(R) > 1 else set()
                if 'd16' in o:
                    self.r |= R[0]
            else:
                self.r = set().union(*R) if R else set()
        elif self.is_vmem:
            if o.startswith('buffer_inv') or o.startswith('buffer_wbl2'):
                pass
            elif self.lds_dma or 'store' in o or ('atomic' in o and 'sc0' not in self.mods):
                self.r = set().union(*R)
                if self.lds_dma:
                    self.r |= {('m0', 0)}
            else:
                self.w = R[0]
                self.r = set().union(*R[1:])
        elif self.is_salu:
            if o.startswith(('s_cmp', 's_bitcmp', 's_cbranch', 's_branch', 's_waitcnt', 's_barrier', 's_nop', 's_endpgm', 's_setprio',
                             's_sleep', 's_setpc')):
                self.r = set().union(*R) if R else set()
            else:
                self.w = R[0] if R else set()
                self.r = set().union(*R[1:]) if len(R) > 1 else set()
                if 'saveexec' in o:
                    self.w |= {('exec', 0)}
        self.states = 1
        if o == 's_nop':
            self.states = int(ops[0], 0) + 1
        self.wide_store = self.is_vmem and 'store' in o and ('x4' in o or 'x3' in o)
        self.store_data = R[0] if (self.wide_store and o.startswith('buffer_')) else (R[1] if self.wide_store else set())


def required_gap(p, c):
    need = 0
    pw_v = {x for x in p.w if x[0] in 'va' and len(x[0]) == 1}
    pw_s = {x for x in p.w if x[0] in ('s', 'vcc')}
    if p.is_valu:
        if c.is_mfma and pw_v & c.r:
            need = max(need, 2)
        if p.is_trans and c.is_valu and not c.is_trans and pw_v & c.r:
            need = max(need, 1)
        if c.is_vmem and pw_s & c.r:
            need = max(need, 5)
        if c.is_valu and pw_s & c.r:
            if c.op.startswith(('v_readlane', 'v_writelane')):
                need = max(need, 4)
            else:
                need = max(need, 2)
        if c.op.startswith(('v_readfirstlane', 'v_readlane')) and pw_v & c.r:
            need = max(need, 1)
        if c.op.startswith('v_permlane') and pw_v & c.r:
            need = max(need, 2)
        if c.is_valu and ('row_' in c.mods or 'quad_perm' in c.mods or 'wave_' in c.mods) and pw_v & c.r:
            need = max(need, 2)
        if ('sdwa' in p.op or ('op_sel' in p.mods and not p.op.startswith('v_pk_'))) and c.is_valu and pw_v & (c.r | c.w):
            need = max(need, 1)
        if ('exec', 0) in p.w and c.is_mfma:
            need = max(need, 4)
    if p.is_mfma:
        big = p.passes == 8
        if c.is_mfma:
            if p.w & c.srcab:
                need = max(need, 12 if big else 8)
            if p.w & c.srcc and not (c.srcc == p.w and c.passes == p.passes):
                need = max(need, 10 if big else 6)
        elif (c.is_valu or c.is_ds or c.is_vmem) and (p.w & (c.r | c.w)):
            need = max(need, 12 if big else 8)
        if c.is_valu and p.srcc & c.w and p.srcc != set():
            need = max(need, 7 if big else 3)
    if p.is_salu and ('m0', 0) in p.w and c.lds_dma:
        need = max(need, 1)
    if p.wide_store and c.is_valu and p.store_data & c.w:
        need = max(need, 2)
    return need


def check_hazards(text, window=16):
    ins, labels = [], {}
    for n, ln in enumerate(text.split('\n'), 1):
        s = ln.split(';')[0].strip()
        if not s or s.startswith('.'):
            continue
        if s.endswith(':'):
            labels[s[:-1]] = len(ins)
            continue
        ins.append(Ins(s, n))
    preds = [[] for _ in ins]
    for i, x in enumerate(ins):
        falls = not (x.op in ('s_branch', 's_endpgm', 's_setpc_b64'))
        if falls and i + 1 < len(ins):
            preds[i + 1].append(i)
        if x.op.startswith(('s_cbranch', 's_branch', 's_call')):
            t = x.ops[-1]
            if t in labels and labels[t] < len(ins):
                preds[labels[t]].append(i)
    problems = []
    for i, c in enumerate(ins):
        stack = [(p, 0) for p in preds[i]]
        seen = {}
        while stack:
            j, d = stack.pop()
            if d >= window or (j in seen and seen[j] <= d):
                continue
            seen[j] = d
            need = required_gap(ins[j], c)
            if need > d:
                problems.append(f'line {c.line}: "{c.text}" needs {need} wait states after line {ins[j].line} "{ins[j].text}", has {d}')
            for k in preds[j]:
                stack.append((k, d + ins[j].states))
    return sorted(set(problems))
```

```python
from asmlib import vr
import gen as G
from gen import *

WSR = f's[{R_WS}:{R_WS + 3}]'

A_KA, A_VA, A_PA, A_PV, A_Q, A_O = 8, 9, 10, 11, 12, 16
A_S = (32, 48)
A_P = 64
A_K = (72, 76)
A_V = (80, 88)
A_L16 = 96
S_J, S_SRC, S_DST, S_X2 = 34, 35, 4, 5
S_IGN = 6
S_DSK_V = 7


class LdsQueue:
    def __init__(self):
        self.q = []

    def push(self, tag):
        self.q.append(tag)

    def wait(self, a, tag):
        idx = max(i for i, t in enumerate(self.q) if t == tag)
        n = len(self.q) - 1 - idx
        assert n <= 15
        a(f's_waitcnt lgkmcnt({n})')


def kv_src(g):
    a = g.a
    a(f's_lshl_b32 s{S_X2}, s{S_XC}, 1')
    a(f's_lshl_b32 s{S_T0}, s{S_H}, 16')
    a(f's_and_b32 s{S_DST}, s{S_WV}, 3')
    a(f's_lshl_b32 s{S_DST}, s{S_DST}, 10')
    a(f's_add_u32 s{S_SRC}, s{S_T0}, s{S_DST}')
    a(f'v_lshlrev_b32 v{A_L16}, 4, v{V_LANE}')


def kv_dma(g, jreg, kbase, vbase, tile_add=0):
    a = g.a
    a(f's_add_u32 s{S_T0}, s{S_X2}, s{jreg}')
    a(f's_and_b32 s{S_T0}, s{S_T0}, 15')
    a(f's_lshl_b32 s{S_T0}, s{S_T0}, 12')
    a(f's_add_u32 s{S_T0}, s{S_T0}, s{S_SRC}')
    a(f's_lshl_b32 s{S_T1}, s{jreg}, 12')
    a(f's_add_u32 s{S_T1}, s{S_T1}, s{S_DST}')
    a(f's_add_u32 m0, s{S_T1}, {L_K + tile_add}')
    a(f's_add_u32 s{S_T4}, s{S_T0}, {kbase + tile_add}')
    a(f'buffer_load_dwordx4 v{A_L16}, {WSR}, s{S_T4} offen sc1 lds')
    a(f's_add_u32 m0, s{S_T1}, {L_V + tile_add}')
    a(f's_add_u32 s{S_T4}, s{S_T0}, {vbase + tile_add}')
    a(f'buffer_load_dwordx4 v{A_L16}, {WSR}, s{S_T4} offen sc1 lds')


def stage_local(g):
    a = g.a
    kv_src(g)
    a(f's_and_b32 s{S_T0}, s{S_WV}, 1')
    a(f's_cmp_eq_u32 s{S_T0}, 0')
    a('s_cbranch_scc1 L_sl_poll')
    a(f'v_lshlrev_b32 v2, 2, v{V_LANE}')
    a(f's_add_u32 s{S_T0}, s{S_INB}, {IB_L}')
    a(f'v_add_u32 v2, s{S_T0}, v2')
    g.spin_all_equal(2, 3, 8, 'loc')
    a(f's_sub_u32 s{S_DST}, s{S_DST}, 1024')
    a(f's_sub_u32 s{S_SRC}, s{S_SRC}, 1024')
    for j in range(2):
        a(f's_mov_b32 s{S_J}, {j}')
        kv_dma(g, S_J, WS_KL, WS_VL)
        kv_dma(g, S_J, WS_KL, WS_VL, 1024)
    a(f's_add_u32 s{S_DST}, s{S_DST}, 1024')
    a(f's_add_u32 s{S_SRC}, s{S_SRC}, 1024')
    a(f's_lshl_b32 s{S_T0}, s{S_H}, 16')
    a(f's_lshl_b32 s{S_T1}, s{S_XC}, 13')
    a(f's_add_u32 s{S_T0}, s{S_T0}, s{S_T1}')
    a(f's_and_b32 s{S_T1}, s{S_WV}, 2')
    a(f's_lshl_b32 s{S_T1}, s{S_T1}, 11')
    a(f's_add_u32 s{S_T0}, s{S_T0}, s{S_T1}')
    a(f's_add_u32 s{S_T0}, s{S_T0}, {WS_QL}')
    for i in range(4):
        a(f's_add_u32 m0, s{S_T1}, {L_QS + 1024 * i}')
        a(f's_add_u32 s{S_T4}, s{S_T0}, {1024 * i}')
        a(f'buffer_load_dwordx4 v{A_L16}, {WSR}, s{S_T4} offen sc1 lds')
    a.label('L_sl_poll')
    a(f'v_lshlrev_b32 v{A_PA}, 2, v{V_LANE}')
    a(f's_add_u32 s{S_T0}, s{S_INB}, {IB_KV}')
    a(f'v_add_u32 v{A_PA}, s{S_T0}, v{A_PA}')
    a(f'buffer_load_dword v{A_PV}, v{A_PA}, {WSR}, 0 offen sc1')
    a('s_waitcnt vmcnt(1)')


def attn_setup(g):
    a = g.a
    g.stamp(3)
    a(f'v_lshlrev_b32 v{A_L16}, 4, v{V_LANE}')
    a(f's_lshl_b32 s{S_T0}, s{S_WV}, 10')
    a(f's_add_u32 s{S_T0}, s{S_T0}, {L_QS}')
    a(f'v_add_u32 v2, s{S_T0}, v{A_L16}')
    a(f'v_add_u32 v{A_KA}, {L_K}, v{A_L16}')
    a(f'ds_read_b128 {vr(A_Q, 4)}, v2')
    a(f'ds_read_b128 {vr(A_K[0], 4)}, v{A_KA}')
    a(f'ds_read_b128 {vr(A_K[1], 4)}, v{A_KA} offset:1024')
    a(f'v_mov_b32 v4, {M_MODE}')
    a('ds_read_b32 v4, v4')
    a(f's_lshl_b32 s{S_T0}, s{S_XC}, 3')
    a(f's_lshl_b64 s[{S_IGN}:{S_IGN + 1}], 0xff, s{S_T0}')
    a(f'v_lshrrev_b32 v2, 5, v{V_LANE}')
    a('v_lshlrev_b32 v2, 8, v2')
    a(f'v_and_b32 v3, 15, v{V_LANE}')
    a('v_lshl_add_u32 v2, v3, 4, v2')
    a(f'v_add_u32 v{A_VA}, {L_V}, v2')
    a(f'v_and_b32 v2, 27, v{V_LANE}')
    a('v_cmp_eq_u32 vcc, 16, v2')
    a('v_mov_b32 v3, 0x3f803f80')
    a('s_nop 0')
    a('v_cndmask_b32 v2, 0, v3, vcc')
    for i in range(16):
        a(f'v_mov_b32 v{A_V[0] + i}, v2')
    a(f's_mov_b64 exec, s[{S_MASK}:{S_MASK + 1}]')
    a(f'ds_read_b128 {vr(A_V[0], 4)}, v{A_VA}')
    a(f'ds_read_b128 {vr(A_V[0] + 4, 4)}, v{A_VA} offset:512')
    a('s_mov_b64 exec, -1')
    for i in range(16):
        a(f'v_mov_b32 v{A_O + i}, 0')
    for i in range(8):
        a(f'v_mov_b32 v{A_P + i}, 0')
    a('s_waitcnt lgkmcnt(2)')
    a(f'v_readfirstlane_b32 s{S_MODE}, v4')
    a(f'v_mfma_f32_32x32x16_bf16 {vr(A_S[0], 16)}, {vr(A_K[0], 4)}, {vr(A_Q, 4)}, 0')
    a(f's_mov_b32 s{S_J}, 0')
    a('s_nop 5')


def attn_tile(g, trel, hook):
    a = g.a
    cur = trel & 1
    nxt = cur ^ 1
    S, P = A_S[cur], A_P

    def ex(i):
        a(f'v_exp_f32 v{S + i}, v{S + i}')

    def cv(k):
        a(f'v_cvt_pk_bf16_f32 v{P + k}, v{S + 2 * k}, v{S + 2 * k + 1}')

    hook()
    a('s_waitcnt lgkmcnt(2)')
    a(f'v_mfma_f32_32x32x16_bf16 {vr(A_S[nxt], 16)}, {vr(A_K[nxt], 4)}, {vr(A_Q, 4)}, 0')
    a(f'ds_read_b128 {vr(A_K[cur], 4)}, v{A_KA} offset:{(trel + 2) * 1024}')
    ex(0); ex(1); ex(2); cv(0); ex(3)
    a(f'v_mfma_f32_32x32x16_bf16 {vr(A_O, 16)}, {vr(A_V[nxt] + 4, 4)}, {vr(P + 4, 4)}, {vr(A_O, 16)}')
    a(f's_mov_b64 exec, s[{S_MASK}:{S_MASK + 1}]')
    a(f'ds_read_b128 {vr(A_V[nxt], 4)}, v{A_VA} offset:{(trel + 1) * 1024}')
    a(f'ds_read_b128 {vr(A_V[nxt] + 4, 4)}, v{A_VA} offset:{(trel + 1) * 1024 + 512}')
    a('s_mov_b64 exec, -1')
    ex(4); cv(1); ex(5); ex(6); cv(2); ex(7); ex(8); cv(3); ex(9); ex(10)
    a('s_waitcnt lgkmcnt(4)')
    a(f'v_mfma_f32_32x32x16_bf16 {vr(A_O, 16)}, {vr(A_V[cur], 4)}, {vr(P, 4)}, {vr(A_O, 16)}')
    cv(4); ex(11); ex(12); cv(5); ex(13); ex(14); ex(15); cv(6); cv(7)


def attn_loop(g):
    a = g.a
    stubs = []

    def hook_for(trel):
        def h():
            back = f'L_at_back{trel}'
            a(f's_cmp_lt_u32 s{S_J}, 4')
            a(f's_cbranch_scc1 L_at_stub{trel}')
            if trel == 2:
                a(f's_cmp_eq_u32 s{S_J}, 9')
                a('s_cbranch_scc1 L_at_r3')
            if trel == 0:
                a(f's_cmp_ge_u32 s{S_J}, 10')
                a('s_cbranch_scc1 L_at_late')
            a.label(back)
        return h

    a('.p2align 6')
    a.label('L_at_loop')
    for trel in range(4):
        attn_tile(g, trel, hook_for(trel))
    a(f'v_add_u32 v{A_KA}, 4096, v{A_KA}')
    a(f'v_add_u32 v{A_VA}, 4096, v{A_VA}')
    a(f's_add_u32 s{S_J}, s{S_J}, 1')
    a(f's_cmp_lt_u32 s{S_J}, 16')
    a('s_cbranch_scc1 L_at_loop')
    a(f'v_mfma_f32_32x32x16_bf16 {vr(A_O, 16)}, {vr(A_V[1] + 4, 4)}, {vr(A_P + 4, 4)}, {vr(A_O, 16)}')
    a('s_waitcnt lgkmcnt(0)')


def attn_stubs(g):
    a = g.a
    for trel in range(4):
        back = f'L_at_back{trel}'
        a.label(f'L_at_stub{trel}')
        a(f's_lshl_b32 s{S_T2}, s{S_J}, 2')
        a(f's_add_u32 s{S_T2}, s{S_T2}, {trel}')
        if trel == 2:
            a(f's_cmp_eq_u32 s{S_T2}, 6')
            a('s_cbranch_scc0 L_at_s2b')
            a('s_waitcnt vmcnt(8)')
            a('s_barrier')
            a.label('L_at_s2b')
            a(f's_cmp_eq_u32 s{S_T2}, 14')
            a('s_cbranch_scc0 L_at_s2c')
            a('s_waitcnt vmcnt(12)')
            a('s_barrier')
            a(f's_branch {back}')
            a.label('L_at_s2c')
        a(f's_cmp_lt_u32 s{S_WV}, 4')
        a(f's_cbranch_scc1 {back}')
        if trel == 1:
            a(f's_cmp_lg_u32 s{S_T2}, 1')
            a('s_cbranch_scc1 L_at_s1b')
            lp = 'L_at_poll'
            a(f's_mov_b32 s{S_CNT}, 0')
            a.label(lp)
            a('s_waitcnt vmcnt(0)')
            a(f'v_cmp_ne_u32 vcc, s{S_TOK}, v{A_PV}')
            a(f's_add_u32 s{S_CNT}, s{S_CNT}, 1')
            a('s_nop 0')
            a(f's_andn2_b64 vcc, vcc, s[{S_IGN}:{S_IGN + 1}]')
            a('s_cbranch_scc0 L_at_pollok')
            a(f's_cmp_gt_u32 s{S_CNT}, {SPIN_MAX}')
            a('s_cbranch_scc1 L_at_pollok')
            a(f'buffer_load_dword v{A_PV}, v{A_PA}, {WSR}, 0 offen sc1')
            a(f's_branch {lp}')
            a.label('L_at_pollok')
            for jj in (2, 3):
                a(f's_mov_b32 s{S_T3}, {jj}')
                kv_dma(g, S_T3, WS_KR, WS_VR)
            a(f's_branch {back}')
            a.label('L_at_s1b')
        a(f's_sub_u32 s{S_T3}, s{S_T2}, 2')
        a(f's_cmp_lt_u32 s{S_T3}, 12')
        a(f's_cbranch_scc0 {back}')
        a(f's_add_u32 s{S_T3}, s{S_T2}, 2')
        kv_dma(g, S_T3, WS_KR, WS_VR)
        a(f's_branch {back}')
    a.label('L_at_r3')
    a('s_waitcnt vmcnt(0)')
    a('s_barrier')
    a('s_branch L_at_back2')
    a.label('L_at_late')
    a(f's_cmp_eq_u32 s{S_J}, 10')
    a('s_cbranch_scc0 L_at_late11')
    a(f'v_lshlrev_b32 v{A_PA}, 2, v{V_LANE}')
    a(f's_add_u32 s{S_T0}, s{S_INB}, {IB_U}')
    a(f'v_add_u32 v{A_PA}, s{S_T0}, v{A_PA}')
    g.lanes(32)
    a(f'buffer_load_dword v{A_PV}, v{A_PA}, {WSR}, 0 offen sc1')
    g.lanes(64)
    a(f'v_lshlrev_b32 v2, 10, v{V_LANE}')
    a(f's_lshl_b32 s{S_T0}, s{S_WV}, 16')
    a(f's_lshr_b32 s{S_T1}, s{S_IDX}, 2')
    a(f's_lshl_b32 s{S_T1}, s{S_T1}, 7')
    a(f's_add_u32 s{S_T0}, s{S_T0}, s{S_T1}')
    a(f'buffer_load_dword v3, v2, s[{R_WO}:{R_WO + 3}], s{S_T0} offen')
    a('s_branch L_at_back0')
    a.label('L_at_late11')
    a(f's_cmp_eq_u32 s{S_J}, 12')
    a('s_cbranch_scc0 L_at_back0')
    g.lanes(32)
    a(f's_mov_b32 s{S_CNT}, 0')
    a.label('L_at_upoll')
    a('s_waitcnt vmcnt(0)')
    a(f'v_cmp_ne_u32 vcc, s{S_TOK}, v{A_PV}')
    a(f's_add_u32 s{S_CNT}, s{S_CNT}, 1')
    a(f's_cmp_gt_u32 s{S_CNT}, {SPIN_MAX}')
    a('s_cbranch_scc1 L_at_uok')
    a('s_cbranch_vccz L_at_uok')
    a(f'buffer_load_dword v{A_PV}, v{A_PA}, {WSR}, 0 offen sc1')
    a('s_branch L_at_upoll')
    a.label('L_at_uok')
    g.lanes(64)
    a(f's_lshl_b32 s{S_T0}, s{S_XC}, 18')
    a(f's_lshl_b32 s{S_T1}, s{S_IDX}, 13')
    a(f's_add_u32 s{S_T0}, s{S_T0}, s{S_T1}')
    a(f's_lshl_b32 s{S_T1}, s{S_WV}, 10')
    a(f's_add_u32 s{S_T0}, s{S_T0}, s{S_T1}')
    a(f's_add_u32 s{S_T0}, s{S_T0}, {WS_UT}')
    a(f's_lshr_b32 s{S_T1}, s{S_WV}, 2')
    a(f's_mul_i32 s{S_T1}, s{S_T1}, {UL_SZ}')
    a(f's_and_b32 s{S_T2}, s{S_WV}, 3')
    a(f's_lshl_b32 s{S_T2}, s{S_T2}, 10')
    a(f's_add_u32 s{S_T1}, s{S_T1}, s{S_T2}')
    a(f's_add_u32 m0, s{S_T1}, {L_UL + 512}')
    a('s_nop 0')
    a(f'buffer_load_dwordx4 v{A_L16}, {WSR}, s{S_T0} offen sc1 lds')
    a(f's_and_b32 s{S_T2}, s{S_WV}, 3')
    a(f's_cmp_eq_u32 s{S_T2}, 0')
    a('s_cbranch_scc0 L_at_back0')
    a(f's_lshr_b32 s{S_T1}, s{S_WV}, 2')
    a(f's_mul_i32 s{S_T1}, s{S_T1}, {UL_SZ}')
    a(f's_add_u32 s{S_T1}, s{S_T1}, {L_UL}')
    a(f'v_lshlrev_b32 v2, 3, v{V_LANE}')
    a(f'v_add_u32 v2, s{S_T1}, v2')
    a('v_mov_b32 v98, 0')
    a('v_mov_b32 v99, 0')
    a('ds_write_b64 v2, v[98:99]')
    a('s_waitcnt lgkmcnt(0)')
    a('s_branch L_at_back0')


def attn_finish(g):
    a = g.a
    a('s_nop 7')
    a('s_nop 3')
    a.label('L_at_norm')
    a(f'v_rcp_f32 v2, v{A_O + 8}')
    a(f's_mov_b32 s{S_T6}, {fbits(2.0 ** -40)}')
    a(f's_mov_b32 s{S_T7}, {fbits(2.0 ** 100)}')
    for i in range(8):
        a(f'v_mul_f32 v{A_P + i}, v{A_O + i}, v2')
    a(f'v_add_f32 v3, |v{A_P}|, |v{A_P + 1}|')
    for i in range(2, 8):
        a(f'v_add_f32 v3, v3, |v{A_P + i}|')
    a(f'v_cmp_nle_f32 vcc, s{S_T6}, v{A_O + 8}')
    a(f'v_cmp_nge_f32 s[{S_T0}:{S_T0 + 1}], s{S_T7}, v{A_O + 8}')
    a(f'v_cmp_nge_f32 s[{S_T2}:{S_T2 + 1}], s{S_T7}, v3')
    a('s_nop 1')
    a(f's_or_b64 vcc, vcc, s[{S_T0}:{S_T0 + 1}]')
    a(f's_or_b64 vcc, vcc, s[{S_T2}:{S_T2 + 1}]')
    a(f's_cmp_eq_u32 s{S_J}, 17')
    a('s_cbranch_scc1 L_at_normok')
    a('s_cbranch_vccnz L_at_fallback')
    a.label('L_at_normok')
    for k in range(4):
        a(f'v_cvt_pk_bf16_f32 v{A_P + k}, v{A_P + 2 * k}, v{A_P + 2 * k + 1}')
    a(f's_lshl_b32 s{S_T0}, s{S_XC}, 3')
    a(f's_add_u32 s{S_T0}, s{S_T0}, s{S_WV}')
    a(f's_lshl_b32 s{S_T0}, s{S_T0}, 5')
    a(f's_add_u32 s{S_T0}, s{S_T0}, s{S_H}')
    a(f's_lshl_b32 s{S_T0}, s{S_T0}, 10')
    a(f's_add_u32 s{S_T0}, s{S_T0}, {WS_OF}')
    a('s_waitcnt vmcnt(0)')
    g.store_mode([f'buffer_store_dwordx4 {vr(A_P, 4)}, v{A_L16}, {WSR}, s{S_T0} offen {{M}}'])
    g.stamp(4)


def attn_fallback(g):
    a = g.a
    S, C = A_S[0], A_S[1]
    a.label('L_at_fallback')
    a(f'v_add_u32 v{A_KA}, {L_K}, v{A_L16}')
    a(f'v_mov_b32 v2, {fbits(-3.0e38)}')
    a(f's_mov_b32 s{S_J}, 0')
    a.label('L_fb_max')
    a(f'ds_read_b128 {vr(A_K[0], 4)}, v{A_KA}')
    a('s_waitcnt lgkmcnt(0)')
    a(f'v_mfma_f32_32x32x16_bf16 {vr(S, 16)}, {vr(A_K[0], 4)}, {vr(A_Q, 4)}, 0')
    a(f'v_add_u32 v{A_KA}, 1024, v{A_KA}')
    a('s_nop 7')
    a('s_nop 3')
    for i in range(0, 16, 2):
        a(f'v_max3_f32 v2, v2, v{S + i}, v{S + i + 1}')
    a(f's_add_u32 s{S_J}, s{S_J}, 1')
    a(f's_cmp_lt_u32 s{S_J}, 64')
    a('s_cbranch_scc1 L_fb_max')
    a('v_mov_b32 v3, v2')
    a('s_nop 1')
    a('v_permlane32_swap_b32 v2, v3')
    a('s_nop 1')
    a('v_max_f32 v2, v2, v3')
    for i in range(16):
        a(f'v_sub_f32 v{C + i}, 0, v2')
    for i in range(16):
        a(f'v_mov_b32 v{A_O + i}, 0')
    a(f'v_add_u32 v{A_KA}, {L_K}, v{A_L16}')
    a(f'v_lshrrev_b32 v2, 5, v{V_LANE}')
    a('v_lshlrev_b32 v2, 8, v2')
    a(f'v_and_b32 v3, 15, v{V_LANE}')
    a('v_lshl_add_u32 v2, v3, 4, v2')
    a(f'v_add_u32 v{A_VA}, {L_V}, v2')
    a(f's_mov_b32 s{S_J}, 0')
    a.label('L_fb_sum')
    a(f'ds_read_b128 {vr(A_K[0], 4)}, v{A_KA}')
    a(f's_mov_b64 exec, s[{S_MASK}:{S_MASK + 1}]')
    a(f'ds_read_b128 {vr(A_V[0], 4)}, v{A_VA}')
    a(f'ds_read_b128 {vr(A_V[0] + 4, 4)}, v{A_VA} offset:512')
    a('s_mov_b64 exec, -1')
    a('s_waitcnt lgkmcnt(0)')
    a(f'v_mfma_f32_32x32x16_bf16 {vr(S, 16)}, {vr(A_K[0], 4)}, {vr(A_Q, 4)}, {vr(C, 16)}')
    a(f'v_add_u32 v{A_KA}, 1024, v{A_KA}')
    a(f'v_add_u32 v{A_VA}, 1024, v{A_VA}')
    a('s_nop 7')
    a('s_nop 3')
    for i in range(16):
        a(f'v_exp_f32 v{S + i}, v{S + i}')
    a('s_nop 0')
    for k in range(8):
        a(f'v_cvt_pk_bf16_f32 v{A_P + k}, v{S + 2 * k}, v{S + 2 * k + 1}')
    a('s_nop 1')
    a(f'v_mfma_f32_32x32x16_bf16 {vr(A_O, 16)}, {vr(A_V[0], 4)}, {vr(A_P, 4)}, {vr(A_O, 16)}')
    a(f'v_mfma_f32_32x32x16_bf16 {vr(A_O, 16)}, {vr(A_V[0] + 4, 4)}, {vr(A_P + 4, 4)}, {vr(A_O, 16)}')
    a(f's_add_u32 s{S_J}, s{S_J}, 1')
    a(f's_cmp_lt_u32 s{S_J}, 64')
    a('s_cbranch_scc1 L_fb_sum')
    a(f's_mov_b32 s{S_J}, 17')
    a('s_nop 7')
    a('s_nop 3')
    a('s_branch L_at_norm')


def conv(g):
    a = g.a
    vA, vB, vT = 2, 3, 4
    ACC, AF, BF = 8, 40, 72
    a('s_barrier')
    a(f'v_lshrrev_b32 v5, 2, v{V_LANE}')
    a('v_lshlrev_b32 v5, 10, v5')
    a(f'v_and_b32 v6, 3, v{V_LANE}')
    a('v_lshl_add_u32 v5, v6, 4, v5')
    a(f's_and_b32 s{S_T0}, s{S_WV}, 3')
    a(f's_lshl_b32 s{S_T0}, s{S_T0}, 17')
    a(f's_lshr_b32 s{S_T1}, s{S_IDX}, 2')
    a(f's_lshl_b32 s{S_T1}, s{S_T1}, 7')
    a(f's_add_u32 s{S_T0}, s{S_T0}, s{S_T1}')
    a(f's_lshr_b32 s{S_T1}, s{S_WV}, 2')
    a(f's_lshl_b32 s{S_T1}, s{S_T1}, 6')
    a(f's_add_u32 s{S_T0}, s{S_T0}, s{S_T1}')
    a(f's_lshl_b32 s{S_T2}, s{S_WV}, 13')
    for i in range(8):
        a(f's_add_u32 m0, s{S_T2}, {L_WO + i * 1024}')
        a(f's_add_u32 s{S_T1}, s{S_T0}, {i * 16384}')
        a(f'buffer_load_dwordx4 v5, s[{R_WO}:{R_WO + 3}], s{S_T1} offen lds')
    a(f's_lshl_b32 s{S_T0}, s{S_XC}, 6')
    a(f's_lshl_b32 s{S_T1}, s{S_IDX}, 1')
    a(f's_add_u32 s{S_T0}, s{S_T0}, s{S_T1}')
    a(f's_lshl_b32 s{S_T0}, s{S_T0}, 1')
    a(f's_load_dword s{S_DSK_V}, s[{S_DSK}:{S_DSK + 1}], s{S_T0}')
    a(f's_lshr_b32 s{S_T3}, s{S_WV}, 2')
    a(f's_and_b32 s{S_T4}, s{S_WV}, 3')
    a(f's_mul_i32 s{S_T0}, s{S_T3}, {UL_SZ}')
    a(f's_lshl_b32 s{S_T1}, s{S_T4}, 7')
    a(f's_sub_u32 s{S_T0}, s{S_T0}, s{S_T1}')
    a(f's_add_u32 s{S_T0}, s{S_T0}, {L_UL + 480}')
    a(f'v_and_b32 v5, 15, v{V_LANE}')
    a(f'v_lshrrev_b32 v6, 4, v{V_LANE}')
    a('v_lshlrev_b32 v7, 5, v5')
    a('v_lshl_add_u32 v7, v6, 4, v7')
    a(f'v_add_u32 v{vB}, s{S_T0}, v7')
    a(f's_mul_i32 s{S_T0}, s{S_T3}, {R_SZ}')
    a(f's_sub_u32 s{S_T0}, s{S_T0}, s{S_T1}')
    a(f's_add_u32 s{S_T0}, s{S_T0}, {L_R + 4 * 1015}')
    a('v_lshrrev_b32 v7, 1, v5')
    a('v_lshlrev_b32 v7, 2, v7')
    a('v_lshlrev_b32 v6, 4, v6')
    a('v_sub_u32 v6, v6, v7')
    a('v_and_b32 v5, 1, v5')
    a('v_cmp_eq_u32 vcc, 0, v5')
    a(f'v_mov_b32 v7, {R_O}')
    a('s_nop 0')
    a('v_cndmask_b32 v5, 0, v7, vcc')
    a('v_add_u32 v6, v6, v5')
    a(f'v_add_u32 v{vA}, s{S_T0}, v6')
    for i in range(32):
        a(f'v_mov_b32 v{ACC + i}, 0')
    a('s_waitcnt lgkmcnt(0)')
    a(f's_mov_b32 s{S_J}, 0')
    a.label('L_cv_class')
    q = LdsQueue()

    def rd_b(i):
        a(f'ds_read_b128 {vr(BF + 4 * i, 4)}, v{vB} offset:{512 * i}')
        q.push(f'b{i}')

    def rd_a(j):
        if j % 2 == 0:
            a(f'v_subrev_u32 v{vT + (j // 2) % 2}, {512 * (j + 1)}, v{vA}')
        base = vT + (j // 2) % 2
        o = 128 if j % 2 == 0 else 0
        a(f'ds_read2_b32 {vr(AF + 4 * j, 2)}, v{base} offset0:{o} offset1:{o + 1}')
        a(f'ds_read2_b32 {vr(AF + 4 * j + 2, 2)}, v{base} offset0:{o + 2} offset1:{o + 3}')
        q.push(f'a{j}')
        q.push(f'a{j}')

    rd_a(0)
    for i in range(8):
        rd_b(i)
    rd_a(1)
    for j in range(8):
        for i in range(8 - j):
            if j == 0:
                q.wait(a, f'b{i}')
            elif i == 0:
                q.wait(a, f'a{j}')
            t = i + j
            a(f'v_mfma_f32_16x16x32_bf16 {vr(ACC + 4 * t, 4)}, {vr(AF + 4 * j, 4)}, {vr(BF + 4 * i, 4)}, {vr(ACC + 4 * t, 4)}')
            if j == 0 and i in (1, 3, 5):
                rd_a(2 + (i - 1) // 2)
            if j == 1 and i in (0, 2, 4):
                rd_a(5 + i // 2)
    a(f'v_subrev_u32 v{vA}, 64, v{vA}')
    a(f'v_subrev_u32 v{vB}, 64, v{vB}')
    a(f's_cmp_eq_u32 s{S_J}, 0')
    a('s_cbranch_scc0 L_cv_noflag')
    a(f's_lshr_b32 s{S_T0}, s{S_WV}, 1')
    a(f's_lshl_b32 s{S_T0}, s{S_T0}, 14')
    a(f's_lshl_b32 s{S_T1}, s{S_XC}, 11')
    a(f's_add_u32 s{S_T0}, s{S_T0}, s{S_T1}')
    a(f's_lshl_b32 s{S_T1}, s{S_H}, 3')
    a(f's_add_u32 s{S_T0}, s{S_T0}, s{S_T1}')
    a(f's_and_b32 s{S_T1}, s{S_WV}, 1')
    a(f's_lshl_b32 s{S_T1}, s{S_T1}, 2')
    a(f's_add_u32 s{S_T0}, s{S_T0}, s{S_T1}')
    a(f's_add_u32 s{S_T0}, s{S_T0}, {WS_INBOX + IB_O}')
    a(f'v_lshlrev_b32 v6, 16, v{V_LANE}')
    a(f'v_mov_b32 v7, s{S_TOK}')
    a('s_waitcnt vmcnt(8)')
    g.lanes(8)
    g.store_mode([f'buffer_store_dword v7, v6, {WSR}, s{S_T0} offen {{M}}'])
    g.lanes(64)
    a.label('L_cv_noflag')
    a(f's_add_u32 s{S_J}, s{S_J}, 1')
    a(f's_cmp_lt_u32 s{S_J}, 2')
    a('s_cbranch_scc1 L_cv_class')
    a(f'v_lshlrev_b32 v5, 4, v{V_LANE}')
    a(f's_lshl_b32 s{S_T0}, s{S_WV}, 13')
    a(f's_add_u32 s{S_T0}, s{S_T0}, {L_RED}')
    a(f'v_add_u32 v6, s{S_T0}, v5')
    for t in range(8):
        a(f'ds_write_b128 v6, {vr(ACC + 4 * t, 4)} offset:{1024 * t}')
    a('s_waitcnt lgkmcnt(0)')
    a('s_barrier')
    a(f's_lshr_b32 s{S_T3}, s{S_WV}, 2')
    a(f's_and_b32 s{S_T4}, s{S_WV}, 3')
    a(f's_lshl_b32 s{S_T0}, s{S_T3}, 15')
    a(f's_lshl_b32 s{S_T1}, s{S_T4}, 11')
    a(f's_add_u32 s{S_T0}, s{S_T0}, s{S_T1}')
    a(f's_add_u32 s{S_T0}, s{S_T0}, {L_RED}')
    a(f'v_add_u32 v6, s{S_T0}, v5')
    for s in range(4):
        for tt in range(2):
            a(f'ds_read_b128 {vr(40 + 16 * tt + 4 * s, 4)}, v6 offset:{8192 * s + 1024 * tt}')
    a(f's_mul_i32 s{S_T0}, s{S_T3}, {UL_SZ}')
    a(f's_lshl_b32 s{S_T1}, s{S_T4}, 10')
    a(f's_add_u32 s{S_T0}, s{S_T0}, s{S_T1}')
    a(f's_add_u32 s{S_T0}, s{S_T0}, {L_UL + 512}')
    a(f'v_and_b32 v7, 15, v{V_LANE}')
    a('v_lshlrev_b32 v7, 5, v7')
    a(f'v_lshrrev_b32 v8, 4, v{V_LANE}')
    a('v_lshl_add_u32 v7, v8, 3, v7')
    a(f'v_add_u32 v7, s{S_T0}, v7')
    a('ds_read_b64 v[72:73], v7')
    a('ds_read_b64 v[74:75], v7 offset:512')
    a(f's_lshl_b32 s{S_T1}, s{S_T3}, 4')
    a(f's_lshr_b32 s{S_DSK_V}, s{S_DSK_V}, s{S_T1}')
    a(f's_lshl_b32 s{S_DSK_V}, s{S_DSK_V}, 16')
    a('s_waitcnt lgkmcnt(0)')
    for tt in range(2):
        b = 40 + 16 * tt
        for r in range(4):
            a(f'v_add_f32 v{b + r}, v{b + r}, v{b + 4 + r}')
            a(f'v_add_f32 v{b + 8 + r}, v{b + 8 + r}, v{b + 12 + r}')
        for r in range(4):
            a(f'v_add_f32 v{b + r}, v{b + r}, v{b + 8 + r}')
        a(f'v_cvt_pk_bf16_f32 v{b + 4}, v{b}, v{b + 1}')
        a(f'v_cvt_pk_bf16_f32 v{b + 5}, v{b + 2}, v{b + 3}')
        u = 72 + 2 * tt
        a(f'v_lshlrev_b32 v{b + 8}, 16, v{u}')
        a(f'v_and_b32 v{b + 9}, 0xffff0000, v{u}')
        a(f'v_lshlrev_b32 v{b + 10}, 16, v{u + 1}')
        a(f'v_and_b32 v{b + 11}, 0xffff0000, v{u + 1}')
        for r in range(4):
            a(f'v_mul_f32 v{b + 8 + r}, s{S_DSK_V}, v{b + 8 + r}')
        a(f'v_cvt_pk_bf16_f32 v{b + 6}, v{b + 8}, v{b + 9}')
        a(f'v_cvt_pk_bf16_f32 v{b + 7}, v{b + 10}, v{b + 11}')
        for k in range(2):
            a(f'v_lshlrev_b32 v{b + 8}, 16, v{b + 4 + k}')
            a(f'v_and_b32 v{b + 9}, 0xffff0000, v{b + 4 + k}')
            a(f'v_lshlrev_b32 v{b + 10}, 16, v{b + 6 + k}')
            a(f'v_and_b32 v{b + 11}, 0xffff0000, v{b + 6 + k}')
            a(f'v_add_f32 v{b + 8}, v{b + 8}, v{b + 10}')
            a(f'v_add_f32 v{b + 9}, v{b + 9}, v{b + 11}')
            a(f'v_cvt_pk_bf16_f32 v{76 + 2 * tt + k}, v{b + 8}, v{b + 9}')
    a(f's_lshl_b32 s{S_T0}, s{S_XC}, 6')
    a(f's_lshl_b32 s{S_T1}, s{S_IDX}, 1')
    a(f's_add_u32 s{S_T0}, s{S_T0}, s{S_T1}')
    a(f's_add_u32 s{S_T0}, s{S_T0}, s{S_T3}')
    a(f's_lshl_b32 s{S_T0}, s{S_T0}, 2')
    a(f's_add_u32 s{S_T0}, s{S_T0}, s{S_T4}')
    a(f's_lshl_b32 s{S_T0}, s{S_T0}, 10')
    a(f's_add_u32 s{S_T0}, s{S_T0}, {WS_YT}')
    g.store_mode([f'buffer_store_dwordx4 v[76:79], v5, {WSR}, s{S_T0} offen {{M}}'])
    a(f's_lshl_b32 s{S_T0}, s{S_T4}, 17')
    a(f's_lshl_b32 s{S_T1}, s{S_XC}, 11')
    a(f's_add_u32 s{S_T0}, s{S_T0}, s{S_T1}')
    a(f's_lshl_b32 s{S_T1}, s{S_IDX}, 3')
    a(f's_add_u32 s{S_T0}, s{S_T0}, s{S_T1}')
    a(f's_lshl_b32 s{S_T1}, s{S_T3}, 2')
    a(f's_add_u32 s{S_T0}, s{S_T0}, s{S_T1}')
    a(f's_add_u32 s{S_T0}, s{S_T0}, {WS_INBOX + IB_Y}')
    a(f'v_lshlrev_b32 v6, 14, v{V_LANE}')
    a(f'v_mov_b32 v7, s{S_TOK}')
    a('s_waitcnt vmcnt(0)')
    g.lanes(8)
    g.store_mode([f'buffer_store_dword v7, v6, {WSR}, s{S_T0} offen {{M}}'])
    g.lanes(64)
    g.stamp(5)


def outproj(g):
    a = g.a
    a(f'v_lshlrev_b32 v2, 2, v{V_LANE}')
    a(f's_add_u32 s{S_T0}, s{S_INB}, {IB_O}')
    a(f'v_add_u32 v2, s{S_T0}, v2')
    g.spin_all_equal(2, 3, 64, 'of')
    a('s_barrier')
    a(f's_and_b32 s{S_T0}, s{S_IDX}, 3')
    a(f's_lshl_b32 s{S_T0}, s{S_T0}, 1')
    a(f's_lshl_b32 s{S_T1}, s{S_XC}, 3')
    a(f's_add_u32 s{S_T0}, s{S_T0}, s{S_T1}')
    a(f's_lshl_b32 s{S_T0}, s{S_T0}, 15')
    a(f's_lshl_b32 s{S_T2}, s{S_WV}, 13')
    a(f's_add_u32 s{S_T0}, s{S_T0}, s{S_T2}')
    a(f's_add_u32 s{S_T0}, s{S_T0}, {WS_OF}')
    a(f'v_lshlrev_b32 v5, 4, v{V_LANE}')
    for i in range(8):
        a(f's_add_u32 m0, s{S_T2}, {L_OF + i * 1024}')
        a(f's_add_u32 s{S_T1}, s{S_T0}, {i * 1024}')
        a(f'buffer_load_dwordx4 v5, {WSR}, s{S_T1} offen sc1 lds')
    a(f's_cmp_ge_u32 s{S_WV}, 4')
    a('s_cbranch_scc1 L_ys')
    a('s_waitcnt vmcnt(0)')
    a('s_barrier')
    vW, vO, ACC, WF, OF = 6, 7, 16, 32, 64
    a(f'v_lshrrev_b32 v2, 5, v{V_LANE}')
    a(f'v_bfe_u32 v3, v{V_LANE}, 2, 2')
    a('v_lshl_add_u32 v2, v2, 2, v3')
    a('v_lshlrev_b32 v2, 6, v2')
    a(f'v_bfe_u32 v3, v{V_LANE}, 4, 1')
    a('v_lshl_add_u32 v2, v3, 5, v2')
    a(f'v_and_b32 v3, 3, v{V_LANE}')
    a('v_lshl_add_u32 v2, v3, 3, v2')
    a(f's_lshr_b32 s{S_T0}, s{S_WV}, 1')
    a(f's_lshl_b32 s{S_T0}, s{S_T0}, 15')
    a(f's_add_u32 s{S_T0}, s{S_T0}, {L_WO}')
    a(f'v_add_u32 v{vW}, s{S_T0}, v2')
    a(f's_and_b32 s{S_T0}, s{S_WV}, 1')
    a(f's_lshl_b32 s{S_T0}, s{S_T0}, 15')
    a(f's_add_u32 s{S_T0}, s{S_T0}, {L_OF}')
    a(f'v_add_u32 v{vO}, s{S_T0}, v5')
    q = LdsQueue()
    DEPTH = 4

    def rd(h):
        b = h % (DEPTH + 1)
        a(f'ds_read_b64_tr_b16 {vr(WF + 4 * b, 2)}, v{vW} offset:{1024 * h}')
        a(f'ds_read_b64_tr_b16 {vr(WF + 4 * b + 2, 2)}, v{vW} offset:{1024 * h + 512}')
        a(f'ds_read_b128 {vr(OF + 4 * b, 4)}, v{vO} offset:{1024 * h}')
        for _ in range(3):
            q.push(h)
    for h in range(DEPTH):
        rd(h)
    for h in range(32):
        if h + DEPTH < 32:
            rd(h + DEPTH)
        q.wait(a, h)
        b = h % (DEPTH + 1)
        c = '0' if h == 0 else vr(ACC, 16)
        a(f'v_mfma_f32_32x32x16_bf16 {vr(ACC, 16)}, {vr(WF + 4 * b, 4)}, {vr(OF + 4 * b, 4)}, {c}')
    a(f'v_and_b32 v2, 31, v{V_LANE}')
    a(f's_and_b32 s{S_T0}, s{S_WV}, 1')
    a(f's_lshl_b32 s{S_T0}, s{S_T0}, 5')
    a(f'v_add_u32 v2, s{S_T0}, v2')
    a(f's_movk_i32 s{S_T1}, {OUT_P}')
    a(f'v_mul_lo_u32 v2, s{S_T1}, v2')
    a(f'v_lshrrev_b32 v3, 5, v{V_LANE}')
    a('v_lshl_add_u32 v2, v3, 3, v2')
    a(f's_lshr_b32 s{S_T0}, s{S_WV}, 1')
    a(f's_lshl_b32 s{S_T0}, s{S_T0}, 6')
    a(f's_add_u32 s{S_T0}, s{S_T0}, {L_OUT}')
    a(f'v_add_u32 v2, s{S_T0}, v2')
    a('s_nop 3')
    for gq in range(4):
        a(f'v_cvt_pk_bf16_f32 v{32 + 2 * gq}, v{ACC + 4 * gq}, v{ACC + 4 * gq + 1}')
        a(f'v_cvt_pk_bf16_f32 v{33 + 2 * gq}, v{ACC + 4 * gq + 2}, v{ACC + 4 * gq + 3}')
        a(f'ds_write_b64 v2, {vr(32 + 2 * gq, 2)} offset:{16 * gq}')
    a('s_waitcnt lgkmcnt(0)')
    a('s_barrier')
    a(f'v_lshrrev_b32 v2, 3, v{V_LANE}')
    a(f's_lshl_b32 s{S_T0}, s{S_WV}, 4')
    a(f'v_add_u32 v2, s{S_T0}, v2')
    a(f'v_mul_lo_u32 v3, s{S_T1}, v2')
    a(f'v_and_b32 v4, 7, v{V_LANE}')
    a('v_lshl_add_u32 v3, v4, 4, v3')
    a(f'v_add_u32 v3, {L_OUT}, v3')
    a('ds_read_b128 v[8:11], v3')
    a(f'ds_read_b128 v[12:15], v3 offset:{8 * OUT_P}')
    a('v_lshlrev_b32 v2, 11, v2')
    a('v_lshl_add_u32 v2, v4, 4, v2')
    a(f's_lshl_b32 s{S_T0}, s{S_XC}, 19')
    a(f's_and_b32 s{S_T2}, s{S_IDX}, 3')
    a(f's_lshl_b32 s{S_T2}, s{S_T2}, 17')
    a(f's_add_u32 s{S_T0}, s{S_T0}, s{S_T2}')
    a(f's_lshr_b32 s{S_T2}, s{S_IDX}, 2')
    a(f's_lshl_b32 s{S_T2}, s{S_T2}, 7')
    a(f's_add_u32 s{S_T0}, s{S_T0}, s{S_T2}')
    a(f's_add_u32 s{S_T2}, s{S_T0}, {8 * 2048}')
    a('s_waitcnt lgkmcnt(1)')
    a(f'buffer_store_dwordx4 v[8:11], v2, s[{R_OUT}:{R_OUT + 3}], s{S_T0} offen')
    a('s_waitcnt lgkmcnt(0)')
    a(f'buffer_store_dwordx4 v[12:15], v2, s[{R_OUT}:{R_OUT + 3}], s{S_T2} offen')
    a('s_branch L_finish')


def ystage(g):
    a = g.a
    a.label('L_ys')
    a(f'v_lshlrev_b32 v2, 2, v{V_LANE}')
    a(f's_add_u32 s{S_T0}, s{S_INB}, {IB_Y}')
    a(f'v_add_u32 v2, s{S_T0}, v2')
    a('s_waitcnt vmcnt(0)')
    a('s_barrier')
    g.spin_all_equal(2, 3, 64, 'yf')
    a(f'v_lshrrev_b32 v2, 4, v{V_LANE}')
    a('v_lshlrev_b32 v2, 12, v2')
    a(f'v_bfe_u32 v3, v{V_LANE}, 2, 2')
    a('v_lshl_add_u32 v2, v3, 8, v2')
    a(f'v_and_b32 v3, 3, v{V_LANE}')
    a('v_lshl_add_u32 v2, v3, 4, v2')
    a(f's_lshl_b32 s{S_T0}, s{S_XC}, 18')
    a(f's_lshr_b32 s{S_T1}, s{S_IDX}, 3')
    a(f's_lshl_b32 s{S_T1}, s{S_T1}, 10')
    a(f's_add_u32 s{S_T0}, s{S_T0}, s{S_T1}')
    a(f's_and_b32 s{S_T1}, s{S_IDX}, 3')
    a(f's_lshl_b32 s{S_T1}, s{S_T1}, 6')
    a(f's_add_u32 s{S_T0}, s{S_T0}, s{S_T1}')
    a(f's_sub_u32 s{S_T2}, s{S_WV}, 4')
    a(f's_lshl_b32 s{S_T1}, s{S_T2}, 16')
    a(f's_add_u32 s{S_T0}, s{S_T0}, s{S_T1}')
    a(f's_add_u32 s{S_T0}, s{S_T0}, {WS_YT}')
    a(f's_mul_i32 s{S_T3}, s{S_T2}, {4 * 1040}')
    for i in range(4):
        a(f's_add_u32 m0, s{S_T3}, {L_YS + i * 1040}')
        a(f's_add_u32 s{S_T1}, s{S_T0}, {i * 16384}')
        a(f'buffer_load_dwordx4 v2, {WSR}, s{S_T1} offen sc1 lds')
    a('s_waitcnt vmcnt(0)')
    a('s_barrier')
    a(f'v_and_b32 v3, 7, v{V_LANE}')
    a(f's_movk_i32 s{S_T1}, 2080')
    a(f'v_mul_lo_u32 v4, s{S_T1}, v3')
    a(f'v_bfe_u32 v5, v{V_LANE}, 5, 1')
    a('v_lshl_add_u32 v4, v5, 6, v4')
    a(f'v_bfe_u32 v5, v{V_LANE}, 3, 2')
    a('v_lshl_add_u32 v4, v5, 1, v4')
    a(f's_lshr_b32 s{S_T0}, s{S_IDX}, 2')
    a(f's_and_b32 s{S_T0}, s{S_T0}, 1')
    a(f's_lshl_b32 s{S_T0}, s{S_T0}, 3')
    a(f's_lshl_b32 s{S_T1}, s{S_T2}, 4')
    a(f's_add_u32 s{S_T0}, s{S_T0}, s{S_T1}')
    a(f's_add_u32 s{S_T0}, s{S_T0}, {L_YS}')
    a(f'v_add_u32 v4, s{S_T0}, v4')
    def gather(k):
        for e in range(8):
            op = 'ds_read_u16' if e % 2 == 0 else 'ds_read_u16_d16_hi'
            off = (e >> 2) * 1040 + (e & 3) * 256 + k * 128
            a(f'{op} v{16 + e}, v4 offset:{off}')

    def merge(k):
        for i in range(4):
            a(f'v_or_b32 v{8 + 4 * k + i}, v{16 + 2 * i}, v{17 + 2 * i}')
    gather(0)
    a(f'v_lshrrev_b32 v2, 3, v{V_LANE}')
    a(f's_lshl_b32 s{S_T1}, s{S_T2}, 4')
    a(f'v_add_u32 v2, s{S_T1}, v2')
    a('v_lshlrev_b32 v2, 11, v2')
    a('v_lshl_add_u32 v2, v3, 4, v2')
    a(f's_lshl_b32 s{S_T0}, s{S_IDX}, 17')
    a(f's_lshl_b32 s{S_T1}, s{S_XC}, 7')
    a(f's_add_u32 s{S_T0}, s{S_T0}, s{S_T1}')
    a(f's_add_u32 s{S_T0}, s{S_T0}, 1024')
    a(f's_add_u32 s{S_T1}, s{S_T0}, {8 * 2048}')
    a('s_waitcnt lgkmcnt(0)')
    merge(0)
    gather(1)
    a(f'buffer_store_dwordx4 v[8:11], v2, s[{R_OUT}:{R_OUT + 3}], s{S_T0} offen')
    a('s_waitcnt lgkmcnt(0)')
    merge(1)
    a(f'buffer_store_dwordx4 v[12:15], v2, s[{R_OUT}:{R_OUT + 3}], s{S_T1} offen')
    a('s_branch L_finish')


def dump_lds(g):
    a = g.a
    a('s_waitcnt vmcnt(0) lgkmcnt(0)')
    a('s_barrier')
    a(f'v_lshlrev_b32 v2, 4, v{V_LANE}')
    a(f's_lshl_b32 s{S_T0}, s{S_WV}, 12')
    a(f'v_add_u32 v2, s{S_T0}, v2')
    a(f'v_add_u32 v3, {L_R}, v2')
    a(f's_lshl_b32 s{S_T0}, s2, 15')
    a(f's_add_u32 s{S_T0}, s{S_T0}, {WS_SIZE}')
    a(f's_add_u32 s{R_WS + 2}, s{R_WS + 2}, {8 << 20}')
    for i in range(4):
        a(f'ds_read_b128 v[4:7], v3 offset:{1024 * i}')
        a('s_waitcnt lgkmcnt(0)')
        a(f'buffer_store_dwordx4 v[4:7], v2, {WSR}, s{S_T0} offen offset:{1024 * i}')
        a('s_waitcnt vmcnt(0)')
    a('s_branch L_finish')


def rest(g):
    a = g.a
    if g.stop == 'kgen':
        dump_lds(g)
        return
    if g.stop == 'p1':
        a('s_branch L_finish')
        return
    attn_setup(g)
    attn_loop(g)
    attn_finish(g)
    if g.stop == 'attn':
        a('s_waitcnt vmcnt(0)')
        a('s_branch L_finish')
    elif g.stop == 'preconv':
        dump_lds(g)
    else:
        conv(g)
        if g.stop == 'conv':
            a('s_waitcnt vmcnt(0)')
            a('s_branch L_finish')
        else:
            outproj(g)
            ystage(g)
    attn_stubs(g)
    attn_fallback(g)
```

```python
import math
import os
import sys

sys.path.insert(0, os.path.dirname(os.path.abspath(__file__)))
from asmlib import Asm, VmQueue, check_hazards, sr, vr

NAME = 'concat_heads__softmax_full_mha__ssm_conv_s4d__prompt'
KERNEL = NAME + '_kernel'

WS_G = 0x0
WS_INBOX = 0x100000
IB_STRIDE = 2048
IB_KV, IB_U, IB_X, IB_L, IB_O, IB_Y = 0, 256, 512, 768, 1024, 1280
WS_UT = 0x200000
WS_KR = 0x400000
WS_VR = 0x600000
WS_QL = 0x800000
WS_KL = 0xA00000
WS_VL = 0xC00000
WS_OF = 0xE00000
WS_YT = 0x1000000
WS_PROF = 0x1400000
WS_SIZE = 0x1800000

LDS_BYTES = 163840
SLOT = 28672
NSLOT = 5
L_USTAGE = 143360
L_KG = 86016
ROWP = 272
KG_Y = 25 * ROWP
KG_SZ = KG_Y + 32 * ROWP
L_K, L_V = 0, 65536
L_R = 131072
R_O = 4160
R_SZ = 8320
L_UL = L_R + 2 * R_SZ
UL_SZ = 4608
L_MISC = 163584
M_MODE, M_DFLAG = L_MISC, L_MISC + 16
L_WO = 0
L_RED = 65536
L_OF = 65536
L_OUT = L_R
OUT_P = 144
L_YS = L_R + 64 * OUT_P
L_QS = 148096

S_X, S_WQKV, S_WO, S_U, S_LOGA, S_AIM, S_CRE, S_CIM, S_LOGDT, S_DSK, S_OUT, S_DBG, S_WS = range(8, 34, 2)
R_X, R_W, R_WS, R_U, R_WO, R_OUT = 36, 40, 44, 48, 52, 56
S_XC, S_IDX, S_P, S_E, S_R, S_WV, S_TOK, S_MODE, S_H, S_XCC = range(60, 70)
S_T0, S_T1, S_T2, S_T3, S_T4, S_T5, S_T6, S_T7 = range(70, 78)
S_MASK = 78
S_RET = 80
S_K = 82
S_SLOT = 83
S_CNT = 84
S_DT = 85
S_INB = 86
S_PROF = 88

V_TID, V_LANE = 0, 1

LOG2E = 1.4426950408889634
INV2PI = 0.15915494309189535
QSCALE = 0.25 * LOG2E
SPIN_MAX = 200000


def fbits(x):
    import struct
    return '0x%08x' % struct.unpack('<I', struct.pack('<f', x))[0]


class Gen:
    def __init__(self, stop=None, prof=False):
        self.a = Asm()
        self.stop = stop
        self.prof = prof
        self.nstamp = 0

    def srd(self, r, base, size):
        a = self.a
        a(f's_mov_b32 s{r}, s{base}')
        a(f's_mov_b32 s{r + 1}, s{base + 1}')
        a(f's_mov_b32 s{r + 2}, {size}')
        a(f's_mov_b32 s{r + 3}, 0x20000')

    def lanes(self, n):
        if n == 64:
            self.a('s_mov_b64 exec, -1')
        elif n == 32:
            self.a('s_mov_b32 exec_hi, 0')
        else:
            self.a(f's_mov_b64 exec, {hex((1 << n) - 1)}')

    def lds_spin(self, vaddr, vtmp):
        a = self.a
        lp = a.uid('lspin')
        a(f's_mov_b32 s{S_CNT}, 0')
        a.label(lp)
        a(f'ds_read_b32 v{vtmp}, v{vaddr}')
        a(f's_add_u32 s{S_CNT}, s{S_CNT}, 1')
        a('s_waitcnt lgkmcnt(0)')
        a(f'v_cmp_eq_u32 vcc, 0, v{vtmp}')
        a(f's_cmp_gt_u32 s{S_CNT}, {SPIN_MAX}')
        a(f's_cbranch_scc1 {lp}_x')
        a(f's_cbranch_vccnz {lp}')
        a.label(lp + '_x')

    def stamp(self, i):
        if self.prof:
            self.a(f's_memrealtime s[{S_PROF + 2 * i}:{S_PROF + 2 * i + 1}]')

    def dma(self, voff, srd, soff, m0, mods=''):
        a = self.a
        for ln in m0:
            a(ln)
        a(f'buffer_load_dwordx4 v{voff}, s[{srd}:{srd + 3}], {soff} offen {mods} lds'.replace('  ', ' '))

    def spin_all_equal(self, voff, vtmp, nlanes, name, valid_xor=None):
        a = self.a
        lp, done = a.uid(name), a.uid(name + '_ok')
        a(f's_mov_b32 s{S_CNT}, 0')
        if nlanes < 64:
            self.lanes(nlanes)
        a.label(lp)
        a(f'buffer_load_dword v{vtmp}, v{voff}, s[{R_WS}:{R_WS + 3}], 0 offen sc1')
        a(f's_add_u32 s{S_CNT}, s{S_CNT}, 1')
        a('s_waitcnt vmcnt(0)')
        if valid_xor is not None:
            a(f'v_xor_b32 v{vtmp}, s{S_TOK}, v{vtmp}')
            a(f'v_and_b32 v{vtmp}, -16, v{vtmp}')
            a(f'v_cmp_ne_u32 vcc, {valid_xor}, v{vtmp}')
        else:
            a(f'v_cmp_ne_u32 vcc, s{S_TOK}, v{vtmp}')
        a(f's_cmp_gt_u32 s{S_CNT}, {SPIN_MAX}')
        a(f's_cbranch_scc1 {done}')
        a(f's_cbranch_vccnz {lp}')
        a.label(done)
        if nlanes < 64:
            a('s_mov_b64 exec, -1')

    def store_mode(self, store_fmt):
        a = self.a
        wt, done = a.uid('wt'), a.uid('std')
        a(f's_cmp_eq_u32 s{S_MODE}, 0')
        a(f's_cbranch_scc1 {wt}')
        for ln in store_fmt:
            a(ln.replace('{M}', ''))
        a(f's_branch {done}')
        a.label(wt)
        for ln in store_fmt:
            a(ln.replace('{M}', 'sc1'))
        a.label(done)

    def prologue(self):
        a = self.a
        a(f's_cmp_ge_u32 s2, 256')
        a('s_cbranch_scc1 L_exit')
        a(f's_load_dwordx16 s[8:23], s[0:1], 0')
        a(f's_load_dwordx8 s[24:31], s[0:1], 64')
        a(f's_load_dwordx2 s[32:33], s[0:1], 96')
        self.stamp(0)
        a(f'v_lshrrev_b32 v2, 6, v0')
        a(f'v_and_b32 v{V_LANE}, 63, v0')
        a(f's_getreg_b32 s{S_XCC}, hwreg(HW_REG_XCC_ID)')
        a(f'v_readfirstlane_b32 s{S_WV}, v2')
        a(f's_and_b32 s{S_XC}, s2, 7')
        a(f's_lshr_b32 s{S_IDX}, s2, 3')
        a(f's_lshr_b32 s{S_P}, s{S_IDX}, 1')
        a(f's_and_b32 s{S_E}, s{S_IDX}, 1')
        a(f's_lshl_b32 s{S_R}, s{S_XC}, 1')
        a(f's_add_u32 s{S_R}, s{S_R}, s{S_E}')
        a(f's_lshl_b32 s{S_H}, s{S_P}, 1')
        a(f's_add_u32 s{S_H}, s{S_H}, s{S_E}')
        a(f's_and_b32 s{S_XCC}, s{S_XCC}, 15')
        a(f's_lshl_b32 s{S_INB}, s2, 11')
        a(f's_add_u32 s{S_INB}, s{S_INB}, {WS_INBOX}')
        a(f's_mov_b32 s{S_MASK}, 0x0000ffff')
        a(f's_mov_b32 s{S_MASK + 1}, 0x0000ffff')
        a(f's_cmp_lg_u32 s{S_WV}, 0')
        a('s_cbranch_scc1 L_nocodepf')
        a('s_getpc_b64 s[70:71]')
        a.label('L_pc')
        a(f'v_lshlrev_b32 v2, 7, v{V_LANE}')
        for i in range(3):
            a('v_min_u32 v3, L_code_end-L_pc-4, v2')
            a(f'global_load_dword v{250 + i}, v3, s[70:71]')
            a('v_add_u32 v2, 0x2000, v2')
        a.label('L_nocodepf')
        a('s_waitcnt lgkmcnt(0)')
        a(f's_load_dword s{S_TOK}, s[{S_WS}:{S_WS + 1}], {WS_G}')
        self.srd(R_X, S_X, 2048 * 1024)
        self.srd(R_W, S_WQKV, 512 * 3072)
        self.srd(R_WS, S_WS, WS_SIZE)
        self.srd(R_U, S_U, 2048 * 1024)
        self.srd(R_WO, S_WO, 512 * 1024)
        self.srd(R_OUT, S_OUT, 2048 * 2048)
        a(f's_cmp_ge_u32 s{S_WV}, 4')
        a('s_cbranch_scc1 L_loader')

    def token(self):
        a = self.a
        a('s_waitcnt lgkmcnt(0)')
        a(f's_mul_i32 s{S_TOK}, s{S_TOK}, 0x9e3779b1')
        a(f's_add_u32 s{S_TOK}, s{S_TOK}, 0x7f4a7c15')

    def gemm_waves(self):
        a = self.a
        vXa, vWa = 10, 14
        ACCQ, ACCK, ACCV = 16, 32, 48
        XF, WF = 64, 72
        a(f's_cmp_eq_u32 s{S_WV}, 0')
        a('s_cbranch_scc1 L_g_touchx')
        a(f's_mul_i32 s{S_T0}, s{S_E}, 96')
        a(f's_add_u32 s{S_T0}, s{S_T0}, 320')
        a(f's_mul_i32 s{S_T0}, s{S_T0}, 3072')
        a(f's_sub_u32 s{S_T1}, s{S_WV}, 1')
        a(f's_lshl_b32 s{S_T1}, s{S_T1}, 10')
        a(f's_add_u32 s{S_T0}, s{S_T0}, s{S_T1}')
        a(f's_lshl_b32 s{S_T1}, s{S_P}, 6')
        a(f's_add_u32 s{S_T0}, s{S_T0}, s{S_T1}')
        a(f's_movk_i32 s{S_T1}, 3072')
        a(f'v_mul_lo_u32 v2, s{S_T1}, v{V_LANE}')
        a(f'buffer_load_dword v250, v2, s[{R_W}:{R_W + 3}], s{S_T0} offen')
        a(f's_add_u32 s{S_T0}, s{S_T0}, {64 * 3072}')
        self.lanes(32)
        a(f'buffer_load_dword v251, v2, s[{R_W}:{R_W + 3}], s{S_T0} offen')
        a('s_mov_b64 exec, -1')
        a('s_branch L_g_touchdone')
        a.label('L_g_touchx')
        a(f'v_lshrrev_b32 v2, 2, v{V_LANE}')
        a('v_lshlrev_b32 v2, 10, v2')
        a(f'v_and_b32 v3, 3, v{V_LANE}')
        a('v_lshlrev_b32 v3, 7, v3')
        a('v_add_u32 v2, v2, v3')
        a(f's_lshl_b32 s{S_T0}, s{S_R}, 17')
        a(f's_lshl_b32 s{S_T1}, s{S_P}, 13')
        a(f's_add_u32 s{S_T0}, s{S_T0}, s{S_T1}')
        a(f's_add_u32 s{S_T0}, s{S_T0}, 512')
        self.lanes(32)
        a(f'buffer_load_dword v252, v2, s[{R_X}:{R_X + 3}], s{S_T0} offen')
        a('s_mov_b64 exec, -1')
        self.token()
        a(f'v_lshlrev_b32 v2, 14, v{V_LANE}')
        a(f's_lshl_b32 s{S_T0}, s{S_XC}, 11')
        a(f's_lshl_b32 s{S_T1}, s{S_IDX}, 2')
        a(f's_add_u32 s{S_T0}, s{S_T0}, s{S_T1}')
        a(f's_add_u32 s{S_T0}, s{S_T0}, {WS_INBOX + IB_X}')
        a(f's_xor_b32 s{S_T1}, s{S_TOK}, s{S_XCC}')
        a(f's_xor_b32 s{S_T1}, s{S_T1}, 0x80')
        a(f'v_mov_b32 v3, s{S_T1}')
        self.lanes(32)
        a(f'buffer_store_dword v3, v2, s[{R_WS}:{R_WS + 3}], s{S_T0} offen sc1')
        a('s_mov_b64 exec, -1')
        a('s_branch L_g_tokdone')
        a.label('L_g_touchdone')
        self.token()
        a.label('L_g_tokdone')
        a(f'v_and_b32 v2, 31, v{V_LANE}')
        a(f'v_lshrrev_b32 v3, 5, v{V_LANE}')
        a('v_bfe_u32 v4, v2, 1, 3')
        a('v_xor_b32 v4, v4, v3')
        a('v_lshlrev_b32 v4, 4, v4')
        a(f's_lshl_b32 s{S_T0}, s{S_WV}, 12')
        a(f'v_lshl_add_u32 v4, v2, 7, v4')
        a(f'v_add_u32 v{vXa}, s{S_T0}, v4')
        for ks in range(1, 4):
            a(f'v_xor_b32 v{vXa + ks}, {32 * ks}, v{vXa}')
        a(f'v_bfe_u32 v4, v{V_LANE}, 2, 2')
        a('v_lshl_add_u32 v4, v3, 3, v4')
        a('v_lshlrev_b32 v4, 6, v4')
        a(f'v_bfe_u32 v5, v{V_LANE}, 4, 1')
        a('v_lshl_add_u32 v4, v5, 5, v4')
        a(f'v_and_b32 v5, 3, v{V_LANE}')
        a('v_lshl_add_u32 v4, v5, 3, v4')
        a(f'v_add_u32 v{vWa}, 16384, v4')
        a(f'v_lshlrev_b32 v9, 2, v{V_LANE}')
        a(f's_add_u32 s{S_T1}, s{S_INB}, {IB_X}')
        a(f'v_add_u32 v9, s{S_T1}, v9')
        for i in range(48):
            a(f'v_mov_b32 v{ACCQ + i}, 0')
        a(f's_mov_b32 s{S_K}, 0')
        a.label('L_g_chunk')
        a('s_barrier')

        def loads(ks, buf):
            a(f'ds_read_b128 {vr(XF + 4 * buf, 4)}, v{vXa + ks}')
            for c in range(3):
                base = WF + 12 * buf + 4 * c
                a(f'ds_read_b64_tr_b16 {vr(base, 2)}, v{vWa} offset:{c * 4096 + ks * 1024}')
                a(f'ds_read_b64_tr_b16 {vr(base + 2, 2)}, v{vWa} offset:{c * 4096 + ks * 1024 + 256}')

        def mfmas(buf):
            xf = vr(XF + 4 * buf, 4)
            w = [vr(WF + 12 * buf + 4 * c, 4) for c in range(3)]
            a(f'v_mfma_f32_32x32x16_bf16 {vr(ACCQ, 16)}, {w[0]}, {xf}, {vr(ACCQ, 16)}')
            a(f'v_mfma_f32_32x32x16_bf16 {vr(ACCK, 16)}, {w[1]}, {xf}, {vr(ACCK, 16)}')
            a(f'v_mfma_f32_32x32x16_bf16 {vr(ACCV, 16)}, {xf}, {w[2]}, {vr(ACCV, 16)}')

        loads(0, 0)
        for ks in range(4):
            if ks < 3:
                loads(ks + 1, (ks + 1) & 1)
                a('s_waitcnt lgkmcnt(7)')
            else:
                a('s_waitcnt lgkmcnt(0)')
            mfmas(ks & 1)
        a(f's_add_u32 s{S_K}, s{S_K}, 1')
        a(f's_mov_b32 s{S_T0}, {SLOT}')
        a(f's_cmp_eq_u32 s{S_K}, {NSLOT}')
        a(f's_cselect_b32 s{S_T0}, {(-(NSLOT - 1) * SLOT) & 0xffffffff}, s{S_T0}')
        for i in range(5):
            a(f'v_add_u32 v{vXa + i}, s{S_T0}, v{vXa + i}')
        a(f's_cmp_eq_u32 s{S_K}, 5')
        a('s_cbranch_scc0 L_g_nomode')
        self.lanes(32)
        a(f'buffer_load_dword v8, v9, s[{R_WS}:{R_WS + 3}], 0 offen sc1')
        self.lanes(64)
        a.label('L_g_nomode')
        a(f's_cmp_lt_u32 s{S_K}, 8')
        a('s_cbranch_scc1 L_g_chunk')
        self.stamp(1)
        self.lanes(32)
        a(f's_mov_b32 s{S_CNT}, 0')
        a.label('L_g_xchk')
        a('s_waitcnt vmcnt(0)')
        a(f'v_xor_b32 v7, s{S_TOK}, v8')
        a('v_and_b32 v7, -16, v7')
        a('v_cmp_ne_u32 vcc, 0x80, v7')
        a(f's_add_u32 s{S_CNT}, s{S_CNT}, 1')
        a(f's_cmp_gt_u32 s{S_CNT}, {SPIN_MAX}')
        a('s_cbranch_scc1 L_g_xok')
        a('s_cbranch_vccz L_g_xok')
        a(f'buffer_load_dword v8, v9, s[{R_WS}:{R_WS + 3}], 0 offen sc1')
        a('s_branch L_g_xchk')
        a.label('L_g_xok')
        a(f's_xor_b32 s{S_T1}, s{S_TOK}, s{S_XCC}')
        a(f's_xor_b32 s{S_T1}, s{S_T1}, 0x80')
        a(f'v_cmp_ne_u32 vcc, s{S_T1}, v8')
        a('s_nop 1')
        a('s_cmp_eq_u64 vcc, 0')
        a(f's_cselect_b32 s{S_MODE}, 1, 0')
        self.lanes(64)
        a(f'v_mov_b32 v6, {M_MODE}')
        a(f'v_mov_b32 v7, s{S_MODE}')
        a('ds_write_b32 v6, v7')

        vL, vV = 2, 3
        a(f'v_lshlrev_b32 v{vL}, 4, v{V_LANE}')
        a(f'v_bfe_u32 v4, v{V_LANE}, 4, 1')
        a('v_lshlrev_b32 v4, 16, v4')
        a(f'v_lshrrev_b32 v5, 5, v{V_LANE}')
        a('v_lshlrev_b32 v5, 8, v5')
        a(f'v_and_b32 v6, 15, v{V_LANE}')
        a('v_lshl_add_u32 v5, v6, 4, v5')
        a(f'v_add_u32 v{vV}, v4, v5')
        a(f's_lshl_b32 s{S_T0}, s{S_P}, 17')
        a(f's_lshl_b32 s{S_T1}, s{S_R}, 12')
        a(f's_add_u32 s{S_T0}, s{S_T0}, s{S_T1}')
        a(f's_lshl_b32 s{S_T1}, s{S_WV}, 10')
        a(f's_add_u32 s{S_T0}, s{S_T0}, s{S_T1}')
        a(f's_mov_b32 s{S_T7}, {fbits(QSCALE)}')
        for i in range(16):
            a(f'v_mul_f32 v{ACCQ + i}, s{S_T7}, v{ACCQ + i}')
        PQ, PK, PV = 64, 72, 80
        for i in range(8):
            a(f'v_cvt_pk_bf16_f32 v{PK + i}, v{ACCK + 2 * i}, v{ACCK + 2 * i + 1}')
        for i in range(8):
            a(f'v_cvt_pk_bf16_f32 v{PV + i}, v{ACCV + 2 * i}, v{ACCV + 2 * i + 1}')
        for i in range(8):
            a(f'v_cvt_pk_bf16_f32 v{PQ + i}, v{ACCQ + 2 * i}, v{ACCQ + 2 * i + 1}')
        W = f's[{R_WS}:{R_WS + 3}]'
        a(f's_add_u32 s{S_T1}, s{S_T0}, {WS_KL}')
        a(f's_add_u32 s{S_T2}, s{S_T1}, 65536')
        a(f's_add_u32 s{S_T3}, s{S_T0}, {WS_VL}')
        a(f's_add_u32 s{S_T4}, s{S_T0}, {WS_QL}')
        a(f's_add_u32 s{S_T5}, s{S_T4}, 65536')
        self.store_mode([
            f'buffer_store_dwordx4 {vr(PK, 4)}, v{vL}, {W}, s{S_T1} offen {{M}}',
            f'buffer_store_dwordx4 {vr(PK + 4, 4)}, v{vL}, {W}, s{S_T2} offen {{M}}',
            f'buffer_store_dwordx4 {vr(PV, 4)}, v{vV}, {W}, s{S_T3} offen {{M}}',
            f'buffer_store_dwordx4 {vr(PV + 4, 4)}, v{vV}, {W}, s{S_T3} offen offset:512 {{M}}',
            f'buffer_store_dwordx4 {vr(PQ, 4)}, v{vL}, {W}, s{S_T4} offen {{M}}',
            f'buffer_store_dwordx4 {vr(PQ + 4, 4)}, v{vL}, {W}, s{S_T5} offen {{M}}',
        ])
        a(f's_add_u32 s{S_T1}, s{S_T0}, {WS_KR}')
        a(f's_add_u32 s{S_T2}, s{S_T1}, 65536')
        a(f's_add_u32 s{S_T3}, s{S_T0}, {WS_VR}')
        a(f'buffer_store_dwordx4 {vr(PK, 4)}, v{vL}, {W}, s{S_T1} offen sc1')
        a(f'buffer_store_dwordx4 {vr(PK + 4, 4)}, v{vL}, {W}, s{S_T2} offen sc1')
        a(f'buffer_store_dwordx4 {vr(PV, 4)}, v{vV}, {W}, s{S_T3} offen sc1')
        a(f'buffer_store_dwordx4 {vr(PV + 4, 4)}, v{vV}, {W}, s{S_T3} offen offset:512 sc1')
        a(f's_and_b32 s{S_T1}, s2, {~8 & 0xffffffff}')
        a(f's_lshl_b32 s{S_T1}, s{S_T1}, 11')
        a(f's_lshl_b32 s{S_T2}, s{S_E}, 4')
        a(f's_add_u32 s{S_T1}, s{S_T1}, s{S_T2}')
        a(f's_lshl_b32 s{S_T2}, s{S_WV}, 2')
        a(f's_add_u32 s{S_T1}, s{S_T1}, s{S_T2}')
        a(f's_add_u32 s{S_T1}, s{S_T1}, {WS_INBOX + IB_L}')
        a(f'v_lshlrev_b32 v4, 14, v{V_LANE}')
        a(f'v_mov_b32 v5, s{S_TOK}')
        a('s_waitcnt vmcnt(4)')
        a('s_mov_b64 exec, 3')
        self.store_mode([f'buffer_store_dword v5, v4, {W}, s{S_T1} offen {{M}}'])
        a('s_mov_b64 exec, -1')
        a(f'v_and_b32 v4, 1, v{V_LANE}')
        a('v_lshlrev_b32 v4, 3, v4')
        a(f'v_lshrrev_b32 v6, 1, v{V_LANE}')
        a('v_add_u32 v4, v4, v6')
        a('v_lshlrev_b32 v4, 11, v4')
        a(f's_lshl_b32 s{S_T1}, s{S_P}, 15')
        a(f's_lshl_b32 s{S_T2}, s{S_R}, 4')
        a(f's_add_u32 s{S_T1}, s{S_T1}, s{S_T2}')
        a(f's_lshl_b32 s{S_T2}, s{S_WV}, 2')
        a(f's_add_u32 s{S_T1}, s{S_T1}, s{S_T2}')
        a(f's_add_u32 s{S_T1}, s{S_T1}, {WS_INBOX + IB_KV}')
        a('s_waitcnt vmcnt(1)')
        a('s_mov_b64 exec, 0xffff')
        a(f'buffer_store_dword v5, v4, {W}, s{S_T1} offen sc1')
        a('s_mov_b64 exec, -1')
        self.stamp(2)
        a('s_branch L_gap1_join')

    def issue_chunk_sub(self):
        a = self.a
        a.label('L_issue')
        a(f's_lshl_b32 s{S_T0}, s{S_R}, 17')
        a(f's_sub_u32 s{S_T2}, s{S_WV}, 4')
        a(f's_lshl_b32 s{S_T1}, s{S_T2}, 15')
        a(f's_add_u32 s{S_T0}, s{S_T0}, s{S_T1}')
        a(f's_lshl_b32 s{S_T1}, s{S_K}, 7')
        a(f's_add_u32 s{S_T0}, s{S_T0}, s{S_T1}')
        a(f's_lshl_b32 s{S_T3}, s{S_T2}, 12')
        a(f's_add_u32 s{S_T3}, s{S_T3}, s{S_SLOT}')
        for j in range(4):
            a(f's_add_u32 m0, s{S_T3}, {j * 1024}')
            a(f's_add_u32 s{S_T1}, s{S_T0}, {j * 8192}')
            a(f'buffer_load_dwordx4 v{10 + (j & 1)}, s[{R_X}:{R_X + 3}], s{S_T1} offen lds')
        a(f's_lshl_b32 s{S_T0}, s{S_K}, 2')
        a(f's_add_u32 s{S_T0}, s{S_T0}, s{S_T2}')
        a(f's_mul_i32 s{S_T0}, s{S_T0}, {16 * 3072}')
        a(f's_lshl_b32 s{S_T1}, s{S_P}, 6')
        a(f's_add_u32 s{S_T0}, s{S_T0}, s{S_T1}')
        a(f's_lshl_b32 s{S_T3}, s{S_T2}, 10')
        a(f's_add_u32 s{S_T3}, s{S_T3}, s{S_SLOT}')
        for c in range(3):
            a(f's_add_u32 m0, s{S_T3}, {16384 + c * 4096}')
            a(f's_add_u32 s{S_T1}, s{S_T0}, {c * 1024}')
            a(f'buffer_load_dwordx4 v12, s[{R_W}:{R_W + 3}], s{S_T1} offen lds')
        a(f's_setpc_b64 s[{S_RET}:{S_RET + 1}]')

    def call_issue(self, q, k):
        a = self.a
        a(f's_mov_b32 s{S_K}, {k}')
        a(f's_mov_b32 s{S_SLOT}, {(k % NSLOT) * SLOT}')
        a(f's_call_b64 s[{S_RET}:{S_RET + 1}], L_issue')
        for _ in range(7):
            q.push(f'c{k}')

    def loader_waves(self):
        a = self.a
        q = VmQueue()
        a.label('L_loader')
        a(f's_sub_u32 s{S_T2}, s{S_WV}, 4')
        a(f's_lshl_b32 s{S_T0}, s{S_XC}, 6')
        a(f's_lshl_b32 s{S_T1}, s{S_IDX}, 1')
        a(f's_add_u32 s{S_T0}, s{S_T0}, s{S_T1}')
        a(f's_lshl_b32 s{S_T3}, s{S_T0}, 1')
        a(f's_load_dword s{S_DT}, s[{S_LOGDT}:{S_LOGDT + 1}], s{S_T3}')
        a(f's_lshr_b32 s{S_T1}, s{S_T2}, 1')
        a(f's_add_u32 s{S_T0}, s{S_T0}, s{S_T1}')
        a(f's_lshl_b32 s{S_T0}, s{S_T0}, 8')
        a(f's_and_b32 s{S_T1}, s{S_T2}, 1')
        a(f's_lshl_b32 s{S_T1}, s{S_T1}, 7')
        a(f's_add_u32 s{S_T0}, s{S_T0}, s{S_T1}')
        a(f'v_lshlrev_b32 v2, 1, v{V_LANE}')
        a(f'v_add_u32 v2, s{S_T0}, v2')
        PAR = 20
        for i, ptr in enumerate((S_LOGA, S_AIM, S_CRE, S_CIM)):
            a(f'global_load_ushort v{PAR + i}, v2, s[{ptr}:{ptr + 1}]')
            q.push('par')
        a(f'v_lshrrev_b32 v3, 1, v{V_LANE}')
        a('v_lshlrev_b32 v3, 10, v3')
        a(f'v_and_b32 v4, 1, v{V_LANE}')
        a('v_lshl_add_u32 v3, v4, 4, v3')
        a(f's_lshl_b32 s{S_T0}, s{S_IDX}, 16')
        a(f's_lshl_b32 s{S_T1}, s{S_XC}, 7')
        a(f's_add_u32 s{S_T0}, s{S_T0}, s{S_T1}')
        a(f's_lshl_b32 s{S_T1}, s{S_T2}, 5')
        a(f's_add_u32 s{S_T0}, s{S_T0}, s{S_T1}')
        a(f's_lshl_b32 s{S_T3}, s{S_T2}, 11')
        a(f's_add_u32 s{S_T3}, s{S_T3}, {L_USTAGE}')
        a(f's_mov_b32 m0, s{S_T3}')
        a(f's_add_u32 s{S_T1}, s{S_T0}, {32 * 1024}')
        a(f'buffer_load_dwordx4 v3, s[{R_U}:{R_U + 3}], s{S_T0} offen lds')
        q.push('u')
        a(f's_add_u32 m0, s{S_T3}, 1024')
        a('s_nop 0')
        a(f'buffer_load_dwordx4 v3, s[{R_U}:{R_U + 3}], s{S_T1} offen lds')
        q.push('u')
        a(f'v_lshrrev_b32 v4, 3, v{V_LANE}')
        a(f'v_and_b32 v5, 7, v{V_LANE}')
        a('v_lshrrev_b32 v6, 1, v4')
        a('v_xor_b32 v7, v5, v6')
        a('v_lshlrev_b32 v7, 4, v7')
        a('v_lshl_add_u32 v10, v4, 10, v7')
        a('v_xor_b32 v11, 64, v10')
        a(f'v_lshrrev_b32 v4, 2, v{V_LANE}')
        a(f's_movk_i32 s{S_T0}, 3072')
        a(f'v_mul_lo_u32 v4, s{S_T0}, v4')
        a(f'v_and_b32 v5, 3, v{V_LANE}')
        a('v_lshl_add_u32 v12, v5, 4, v4')
        for k in range(NSLOT):
            self.call_issue(q, k)
        self.token()
        a(f'v_mov_b32 v4, {M_DFLAG}')
        a('v_mov_b32 v6, 0')
        a('v_mov_b32 v7, 0')
        a('ds_write_b64 v4, v[6:7]')
        a('ds_write_b64 v4, v[6:7] offset:8')

        def barrier(k):
            q.wait(a, f'c{k}')
            a('s_waitcnt lgkmcnt(0)')
            a('s_barrier')

        barrier(0)
        self.ustage(q)
        barrier(1)
        self.call_issue(q, 5)
        self.kgen_setup()
        barrier(2)
        self.call_issue(q, 6)
        barrier(3)
        self.call_issue(q, 7)
        barrier(4)
        barrier(5)
        a(f's_sub_u32 s{S_T2}, s{S_WV}, 4')
        a(f's_lshl_b32 s{S_T0}, s{S_T2}, 17')
        a(f's_lshl_b32 s{S_T1}, s{S_XC}, 11')
        a(f's_add_u32 s{S_T0}, s{S_T0}, s{S_T1}')
        a(f's_lshl_b32 s{S_T1}, s{S_IDX}, 2')
        a(f's_add_u32 s{S_T0}, s{S_T0}, s{S_T1}')
        a(f's_add_u32 s{S_T0}, s{S_T0}, {WS_INBOX + IB_U}')
        a(f'v_lshlrev_b32 v2, 14, v{V_LANE}')
        a(f'v_mov_b32 v3, s{S_TOK}')
        a('s_mov_b64 exec, 0xff')
        a(f'buffer_store_dword v3, v2, s[{R_WS}:{R_WS + 3}], s{S_T0} offen sc1')
        q.push('uf')
        a('s_mov_b64 exec, -1')
        self.kgen_chains(lambda: barrier(6), lambda: barrier(7))
        self.kgen_finish()
        from phases2 import stage_local
        stage_local(self)
        self.stamp(2)

    def ustage(self, q):
        a = self.a
        a(f's_sub_u32 s{S_T2}, s{S_WV}, 4')
        a(f's_lshl_b32 s{S_T3}, s{S_T2}, 11')
        a(f's_add_u32 s{S_T3}, s{S_T3}, {L_USTAGE}')
        a(f'v_lshrrev_b32 v2, 4, v{V_LANE}')
        a('v_lshlrev_b32 v2, 8, v2')
        a(f'v_bfe_u32 v3, v{V_LANE}, 2, 2')
        a('v_lshl_add_u32 v2, v3, 5, v2')
        a(f'v_and_b32 v3, 3, v{V_LANE}')
        a('v_lshl_add_u32 v2, v3, 3, v2')
        a(f'v_add_u32 v2, s{S_T3}, v2')
        for qq in range(2):
            a(f'ds_read_b64_tr_b16 {vr(30 + 4 * qq, 2)}, v2 offset:{qq * 1024}')
            a(f'ds_read_b64_tr_b16 {vr(32 + 4 * qq, 2)}, v2 offset:{qq * 1024 + 128}')
        a(f'v_and_b32 v3, 15, v{V_LANE}')
        a('v_lshlrev_b32 v3, 7, v3')
        a(f'v_lshrrev_b32 v4, 4, v{V_LANE}')
        a('v_lshl_add_u32 v3, v4, 4, v3')
        a(f'v_add_u32 v3, s{S_T3}, v3')
        a('s_waitcnt lgkmcnt(0)')
        a('ds_write_b128 v3, v[30:33]')
        a('ds_write_b128 v3, v[34:37] offset:64')
        a(f'v_lshlrev_b32 v4, 4, v{V_LANE}')
        a(f'v_add_u32 v4, s{S_T3}, v4')
        a('s_waitcnt lgkmcnt(0)')
        a('ds_read_b128 v[30:33], v4')
        a('ds_read_b128 v[34:37], v4 offset:1024')
        a(f'v_lshrrev_b32 v2, 3, v{V_LANE}')
        a('v_lshlrev_b32 v2, 12, v2')
        a(f'v_and_b32 v3, 7, v{V_LANE}')
        a('v_lshl_add_u32 v2, v3, 4, v2')
        a(f's_lshl_b32 s{S_T0}, s{S_XC}, 18')
        a(f's_lshl_b32 s{S_T1}, s{S_T2}, 16')
        a(f's_add_u32 s{S_T0}, s{S_T0}, s{S_T1}')
        a(f's_lshl_b32 s{S_T1}, s{S_IDX}, 7')
        a(f's_add_u32 s{S_T0}, s{S_T0}, s{S_T1}')
        a(f's_add_u32 s{S_T0}, s{S_T0}, {WS_UT}')
        a(f's_add_u32 s{S_T1}, s{S_T0}, {8 * 4096}')
        a('s_waitcnt lgkmcnt(0)')
        a(f'buffer_store_dwordx4 v[30:33], v2, s[{R_WS}:{R_WS + 3}], s{S_T0} offen sc1')
        q.push('ut')
        a(f'buffer_store_dwordx4 v[34:37], v2, s[{R_WS}:{R_WS + 3}], s{S_T1} offen sc1')
        q.push('ut')

    def cexp(self, dst, ar, ai, e, t):
        a = self.a
        a(f'v_mul_f32 v{t}, {fbits(float(e))}, v{ar}')
        a(f'v_mul_f32 v{t + 1}, {fbits(float(e))}, v{ai}')
        a(f'v_exp_f32 v{t}, v{t}')
        a(f'v_fract_f32 v{t + 1}, v{t + 1}')
        a(f'v_cos_f32 v{dst}, v{t + 1}')
        a(f'v_sin_f32 v{dst + 1}, v{t + 1}')
        a('s_nop 0')
        a(f'v_mul_f32 v{dst}, v{t}, v{dst}')
        a(f'v_mul_f32 v{dst + 1}, v{t}, v{dst + 1}')

    def cmul2(self, d, x, y, t):
        a = self.a
        a(f'v_mul_f32 v{d}, v{x}, v{y}')
        a(f'v_mul_f32 v{d + 1}, v{x}, v{y + 1}')
        a(f'v_fma_f32 v{d}, -v{x + 1}, v{y + 1}, v{d}')
        a(f'v_fma_f32 v{d + 1}, v{x + 1}, v{y}, v{d + 1}')

    def kgen_setup(self):
        a = self.a
        a('s_waitcnt lgkmcnt(0)')
        a(f's_sub_u32 s{S_T2}, s{S_WV}, 4')
        a(f's_lshr_b32 s{S_T2}, s{S_T2}, 1')
        a(f's_lshl_b32 s{S_T2}, s{S_T2}, 4')
        a(f's_lshr_b32 s{S_T1}, s{S_DT}, s{S_T2}')
        a(f's_lshl_b32 s{S_T1}, s{S_T1}, 16')
        L2E = fbits(LOG2E)
        a(f'v_mov_b32 v24, s{S_T1}')
        a(f'v_mul_f32 v24, {L2E}, v24')
        for i in range(4):
            a(f'v_lshlrev_b32 v{20 + i}, 16, v{20 + i}')
        a('v_exp_f32 v24, v24')
        a(f'v_mul_f32 v20, {L2E}, v20')
        a('v_exp_f32 v20, v20')
        a('s_nop 0')
        a('v_cvt_pk_bf16_f32 v24, v24, v20')
        a('v_and_b32 v20, 0xffff0000, v24')
        a('v_lshlrev_b32 v24, 16, v24')
        a('v_mul_f32 v20, v20, v24')
        a('v_mul_f32 v21, v21, v24')
        a('v_mul_f32 v22, v22, v24')
        a('v_mul_f32 v23, v23, v24')
        a(f'v_mul_f32 v20, {fbits(-LOG2E)}, v20')
        a(f'v_mul_f32 v21, {fbits(INV2PI)}, v21')
        a('v_add_f32 v50, v22, v22')
        a('v_add_f32 v51, v23, v23')
        self.cexp(40, 20, 21, 1, 26)
        self.cexp(46, 20, 21, 4, 26)
        self.cexp(48, 20, 21, 128, 26)
        self.cmul2(42, 40, 40, 26)
        self.cmul2(44, 42, 40, 26)

    def kgen_chains(self, bar6, bar7):
        a = self.a
        vA = 52
        a(f's_sub_u32 s{S_T2}, s{S_WV}, 4')
        a(f's_mul_i32 s{S_T0}, s{S_T2}, {KG_SZ}')
        a(f's_add_u32 s{S_T0}, s{S_T0}, {L_KG}')
        a(f'v_lshlrev_b32 v{vA}, 2, v{V_LANE}')
        a(f'v_add_u32 v{vA}, s{S_T0}, v{vA}')
        HI0 = [0, 1, 2, 3, 256, 258, 512, 768, 1024, 1280, 1536, 1792, 2048]

        def row_of(hi):
            for r, h0 in enumerate(HI0):
                for hh in range(2):
                    if h0 + 128 * hh == hi:
                        return (r & 3) + 8 * (r >> 2) + 4 * hh
            raise KeyError(hi)

        def put(z, off, negim, t):
            a(f'v_cvt_pk_bf16_f32 v{t}, v{z}, {"-" if negim else ""}v{z + 1}')
            a(f'ds_write_b32 v{vA}, v{t} offset:{off}')

        steps = []
        G = [54, 56]

        def xstep(j):
            def f():
                cur = G[j & 1]
                if j == 0:
                    a(f'v_mov_b32 v{cur}, v50')
                    a(f'v_mov_b32 v{cur + 1}, v51')
                else:
                    self.cmul2(cur, G[(j - 1) & 1], 48, 0)
                put(cur, row_of(128 * j) * ROWP, False, 60)
                extras = {0: (1, 2, 3), 1: (1, 2, 3), 2: (2,), 3: (2,)}.get(j, ())
                for ex in extras:
                    self.cmul2(58, cur, {1: 40, 2: 42, 3: 44}[ex], 0)
                    put(58, row_of(128 * j + ex) * ROWP, False, 61)
            return f
        Y = [62, 64]

        def ystep(j):
            def f():
                cur = Y[j & 1]
                if j == 0:
                    a(f'v_mov_b32 v{cur}, 1.0')
                    a(f'v_mov_b32 v{cur + 1}, 0')
                else:
                    self.cmul2(cur, Y[(j - 1) & 1], 46, 0)
                put(cur, KG_Y + j * ROWP, True, 66)
            return f
        xs = [xstep(j) for j in range(17)]
        ys = [ystep(j) for j in range(32)]
        order = []
        yi = 0
        for j in range(17):
            order.append(xs[j])
            for _ in range(2 if j < 15 else 1):
                order.append(ys[yi])
                yi += 1
        assert yi == 32
        n = len(order)
        for i, f in enumerate(order):
            f()
            if i == n // 3:
                bar6()
            if i == 2 * n // 3 + 2:
                bar7()

    def kgen_finish(self):
        a = self.a
        XA, YA, D, FR = 2, 3, 70, 90
        a(f's_sub_u32 s{S_T2}, s{S_WV}, 4')
        a(f's_mul_i32 s{S_T0}, s{S_T2}, {KG_SZ}')
        a(f's_add_u32 s{S_T0}, s{S_T0}, {L_KG}')
        a(f'v_and_b32 v4, 31, v{V_LANE}')
        a(f's_movk_i32 s{S_T1}, {ROWP}')
        a(f'v_mul_lo_u32 v4, s{S_T1}, v4')
        a(f'v_lshrrev_b32 v5, 5, v{V_LANE}')
        a('v_lshl_add_u32 v4, v5, 4, v4')
        a(f'v_add_u32 v{XA}, s{S_T0}, v4')
        a(f'v_add_u32 v{YA}, {KG_Y}, v{XA}')
        a('s_waitcnt lgkmcnt(0)')
        def rd(s):
            a(f'ds_read_b128 {vr(FR + 8 * s, 4)}, v{XA} offset:{32 * s}')
            a(f'ds_read_b128 {vr(FR + 8 * s + 4, 4)}, v{YA} offset:{32 * s}')
        for s in range(6):
            rd(s)
        for s in range(8):
            a(f's_waitcnt lgkmcnt({10 if s < 3 else 2 * (7 - s)})')
            c = '0' if s == 0 else vr(D, 16)
            a(f'v_mfma_f32_32x32x16_bf16 {vr(D, 16)}, {vr(FR + 8 * s, 4)}, {vr(FR + 8 * s + 4, 4)}, {c}')
            if s + 6 < 8:
                rd(s + 6)
        done = a.uid('kg_done')
        a(f's_and_b32 s{S_T1}, s{S_T2}, 1')
        a(f's_lshr_b32 s{S_T3}, s{S_T2}, 1')
        a(f's_lshl_b32 s{S_T4}, s{S_T3}, 2')
        a(f's_add_u32 s{S_T4}, s{S_T4}, {M_DFLAG}')
        a(f'v_mov_b32 v6, s{S_T4}')
        a(f'v_lshlrev_b32 v7, 4, v{V_LANE}')
        a(f's_cmp_eq_u32 s{S_T1}, 0')
        a(f's_cbranch_scc1 {done}_even')
        a(f'v_add_u32 v7, s{S_T0}, v7')
        a('s_nop 7')
        a('s_nop 3')
        for i in range(4):
            a(f'ds_write_b128 v7, {vr(D + 4 * i, 4)} offset:{1024 * i}')
        a('v_mov_b32 v8, 1')
        a('s_waitcnt lgkmcnt(0)')
        a('ds_write_b32 v6, v8')
        a('s_waitcnt lgkmcnt(0)')
        a(f's_branch {done}')
        a.label(done + '_even')
        a(f's_add_u32 s{S_T5}, s{S_T0}, {KG_SZ}')
        a(f'v_add_u32 v7, s{S_T5}, v7')
        self.lds_spin(6, 8)
        for i in range(4):
            a(f'ds_read_b128 {vr(FR + 4 * i, 4)}, v7 offset:{1024 * i}')
        a(f'v_and_b32 v4, 31, v{V_LANE}')
        a('v_lshlrev_b32 v4, 3, v4')
        a('v_lshl_add_u32 v4, v5, 8, v4')
        a(f'v_add_u32 v4, s{S_T0}, v4')
        a('s_waitcnt lgkmcnt(0)')
        a('v_mov_b32 v8, 1')
        a('ds_write_b32 v6, v8 offset:8')
        for i in range(13):
            a(f'v_add_f32 v{D + i}, v{D + i}, v{FR + i}')
        for i in range(0, 14, 2):
            a(f'v_cvt_pk_bf16_f32 v{FR + 16 + i // 2}, v{D + i}, v{D + i + 1}')
        HI0 = [0, 1, 2, 3, 256, 258, 512, 768, 1024, 1280, 1536, 1792, 2048]
        for r in range(13):
            op = 'ds_write_b16' if r % 2 == 0 else 'ds_write_b16_d16_hi'
            a(f'{op} v4, v{FR + 16 + r // 2} offset:{2 * HI0[r]}')
        a('v_xor_b32 v6, 4, v6')
        a('v_add_u32 v6, 8, v6')
        self.lds_spin(6, 8)
        a(f's_mul_i32 s{S_T3}, s{S_T3}, {R_SZ}')
        a(f's_add_u32 s{S_T3}, s{S_T3}, {L_R}')
        a(f'v_lshlrev_b32 v8, 2, v{V_LANE}')
        a(f'v_add_u32 v8, s{S_T3}, v8')
        a(f'v_lshlrev_b32 v9, 1, v{V_LANE}')
        a('v_sub_u32 v9, 2047, v9')
        a('v_cvt_f32_u32 v9, v9')
        a('s_waitcnt lgkmcnt(0)')
        EB = 20
        for qq in range(16):
            t = EB + (qq % 4) * 4
            a(f'v_add_f32 v{t}, {fbits(-128.0 * qq)}, v9')
            a(f'v_add_f32 v{t + 1}, -1.0, v{t}')
            a(f'v_cvt_pk_bf16_f32 v{t}, v{t}, v{t + 1}')
            a(f'v_and_b32 v{t + 1}, 0xffff0000, v{t}')
            a(f'v_lshlrev_b32 v{t}, 16, v{t}')
            a(f'v_cvt_u32_f32 v{t}, v{t}')
            a(f'v_cvt_u32_f32 v{t + 1}, v{t + 1}')
            a(f'v_lshl_add_u32 v{t}, v{t}, 1, s{S_T0}')
            a(f'v_lshl_add_u32 v{t + 1}, v{t + 1}, 1, s{S_T0}')
            a(f'ds_read_u16 v{t + 2}, v{t}')
            a(f'ds_read_u16_d16_hi v{t + 3}, v{t + 1}')
            if qq % 4 == 3:
                a('s_waitcnt lgkmcnt(0)')
                for k in range(4):
                    a(f'v_or_b32 v{EB + 4 * k + 2}, v{EB + 4 * k + 2}, v{EB + 4 * k + 3}')
                    a(f'ds_write_b32 v8, v{EB + 4 * k + 2} offset:{256 * (qq - 3 + k)}')
        a('v_mov_b32 v4, 0')
        a('s_mov_b64 exec, 0xff')
        a(f'ds_write_b32 v8, v4 offset:4096')
        a('s_mov_b64 exec, -1')
        a('s_waitcnt lgkmcnt(0)')
        for half in range(2):
            for k in range(8):
                qq = half * 8 + k
                if k % 2 == 0:
                    a(f'v_add_u32 v18, {256 * qq}, v8')
                a(f'ds_read2_b32 {vr(EB + 2 * k, 2)}, v18 offset0:{64 * (k % 2)} offset1:{64 * (k % 2) + 1}')
            a('s_waitcnt lgkmcnt(0)')
            for k in range(8):
                qq = half * 8 + k
                a(f'v_alignbit_b32 v{EB + 2 * k}, v{EB + 2 * k + 1}, v{EB + 2 * k}, 16')
                a(f'ds_write_b32 v8, v{EB + 2 * k} offset:{R_O + 256 * qq}')
        a('s_mov_b64 exec, 0x7f')
        a('v_add_u32 v18, 4096, v8')
        a('ds_read2_b32 v[20:21], v18 offset0:0 offset1:1')
        a('s_waitcnt lgkmcnt(0)')
        a('v_alignbit_b32 v20, v21, v20, 16')
        a(f'ds_write_b32 v8, v20 offset:{R_O + 4096}')
        a('s_mov_b64 exec, -1')
        a('s_waitcnt lgkmcnt(0)')
        a.label(done)

    def finish(self):
        a = self.a
        a.label('L_finish')
        if self.prof:
            a('s_waitcnt lgkmcnt(0)')
            a(f's_and_b32 s{S_T0}, s{S_WV}, 3')
            a(f's_cmp_lg_u32 s{S_T0}, 0')
            a('s_cbranch_scc1 L_noprof')
            a(f's_lshr_b32 s{S_T0}, s{S_WV}, 2')
            a(f's_lshl_b32 s{S_T0}, s{S_T0}, 6')
            a(f's_lshl_b32 s{S_T1}, s2, 7')
            a(f's_add_u32 s{S_T0}, s{S_T0}, s{S_T1}')
            a(f's_add_u32 s{S_T0}, s{S_T0}, {WS_PROF}')
            for i in range(7):
                a(f'v_mov_b32 v{2 + i}, s{S_PROF + 2 * i}')
            a(f'v_mov_b32 v9, s{S_XCC}')
            a('v_mov_b32 v10, 0')
            a('s_mov_b64 exec, 1')
            a(f'buffer_store_dwordx4 v[2:5], v10, s[{R_WS}:{R_WS + 3}], s{S_T0} offen')
            a(f'buffer_store_dwordx4 v[6:9], v10, s[{R_WS}:{R_WS + 3}], s{S_T0} offen offset:16')
            a('s_mov_b64 exec, -1')
            a.label('L_noprof')
        a('s_cmp_lg_u32 s2, 0')
        a('s_cbranch_scc1 L_exit')
        a(f's_cmp_lg_u32 s{S_WV}, 0')
        a('s_cbranch_scc1 L_exit')
        a(f'v_mov_b32 v2, s{S_TOK}')
        a(f'v_mov_b32 v3, {WS_G}')
        a('s_mov_b64 exec, 1')
        a(f'buffer_store_dword v2, v3, s[{R_WS}:{R_WS + 3}], 0 offen sc1')
        a.label('L_exit')
        a('s_endpgm')

    def build(self):
        a = self.a
        self.prologue()
        self.gemm_waves()
        self.loader_waves()
        a.label('L_gap1_join')
        a('s_waitcnt lgkmcnt(0)')
        a('s_barrier')
        from phases2 import rest
        rest(self)
        self.finish()
        self.issue_chunk_sub()
        a.label('L_code_end')
        a('s_endpgm')
        return self.wrap()

    def wrap(self):
        head = open(os.path.join(os.path.dirname(os.path.abspath(__file__)), 'header.txt')).read()
        body = self.a.text()
        txt = head + f'; @launch grid=(256,1,1) block=(512,1,1) lds={LDS_BYTES}\n'
        txt += f'.amdgcn_target "amdgcn-amd-amdhsa--gfx950"\n.text\n.globl {KERNEL}\n.p2align 8\n.type {KERNEL},@function\n{KERNEL}:\n'
        txt += body
        txt += f'''.section .rodata,"a"
.p2align 6
.amdhsa_kernel {KERNEL}
  .amdhsa_next_free_vgpr 256
  .amdhsa_next_free_sgpr 102
  .amdhsa_accum_offset 256
  .amdhsa_group_segment_fixed_size 0
  .amdhsa_kernarg_size 104
  .amdhsa_user_sgpr_count 2
  .amdhsa_user_sgpr_kernarg_segment_ptr 1
  .amdhsa_system_sgpr_workgroup_id_x 1
  .amdhsa_float_denorm_mode_32 3
.end_amdhsa_kernel
'''
        return txt, body


def main():
    import argparse
    ap = argparse.ArgumentParser()
    ap.add_argument('-o', default=f'cdna_kernels/{NAME}.s')
    ap.add_argument('--stop', default=None)
    ap.add_argument('--prof', action='store_true')
    args = ap.parse_args()
    g = Gen(stop=args.stop, prof=args.prof)
    txt, body = g.build()
    probs = check_hazards(body)
    for p in probs:
        print('HAZARD', p)
    open(args.o, 'w').write(txt)
    n = sum(1 for l in body.split('\n') if l.startswith('  ') and not l.strip().startswith(';'))
    print(f'wrote {args.o}: {n} instructions, {len(probs)} hazard findings')
    return 1 if probs else 0


if __name__ == '__main__':
    sys.exit(main())
```

```python
from asmlib import vr
from gen2 import *

S_DSKV = 7


def toff(u):
    return (u >> 1) * 4096 + (u & 1) * 1024


def attn_setup(g):
    a = g.a
    g.stamp('attn0')
    a(f'v_lshlrev_b32 v{A_L16}, 4, v{V_LANE}')
    a(f'v_lshlrev_b32 v{A_PA}, 2, v{V_LANE}')
    a(f's_add_u32 s{S_T0}, s{S_INB}, {IB_KV}')
    a(f'v_add_u32 v{A_PA}, s{S_T0}, v{A_PA}')
    a(f's_and_b32 s{S_T0}, s{S_WV}, 7')
    a(f's_lshl_b32 s{S_T0}, s{S_T0}, 10')
    a(f's_add_u32 s{S_T0}, s{S_T0}, {L_QS}')
    a(f'v_add_u32 v2, s{S_T0}, v{A_L16}')
    a(f's_lshr_b32 s{S_T1}, s{S_WV}, 3')
    a(f's_lshl_b32 s{S_T1}, s{S_T1}, 11')
    a(f'v_add_u32 v{A_KA}, s{S_T1}, v{A_L16}')
    a(f'ds_read_b128 {vr(A_Q, 4)}, v2')
    a(f'ds_read_b128 {vr(A_K[0], 4)}, v{A_KA}')
    a(f'v_mov_b32 v7, {M_MODE}')
    a('ds_read_b32 v7, v7')
    a(f's_lshl_b32 s{S_T0}, s{S_XC}, 3')
    a(f's_lshl_b64 s[{S_IGN}:{S_IGN + 1}], 0xff, s{S_T0}')
    a(f'v_lshrrev_b32 v2, 5, v{V_LANE}')
    a('v_lshlrev_b32 v2, 8, v2')
    a(f'v_and_b32 v3, 15, v{V_LANE}')
    a('v_lshl_add_u32 v2, v3, 4, v2')
    a(f's_add_u32 s{S_T1}, s{S_T1}, {L_V}')
    a(f'v_add_u32 v{A_VA}, s{S_T1}, v2')
    a(f'v_and_b32 v2, 27, v{V_LANE}')
    a('v_cmp_eq_u32 vcc, 16, v2')
    a('v_mov_b32 v3, 0x3f803f80')
    a('s_nop 0')
    a('v_cndmask_b32 v2, 0, v3, vcc')
    for i in range(16):
        a(f'v_mov_b32 v{A_V[0] + i}, v2')
    a(f's_mov_b64 exec, s[{S_MASK}:{S_MASK + 1}]')
    a(f'ds_read_b128 {vr(A_V[0], 4)}, v{A_VA}')
    a(f'ds_read_b128 {vr(A_V[0] + 4, 4)}, v{A_VA} offset:512')
    a('s_mov_b64 exec, -1')
    for i in range(16):
        a(f'v_mov_b32 v{A_O + i}, 0')
    for i in range(8):
        a(f'v_mov_b32 v{A_P + i}, 0')
    a('s_waitcnt lgkmcnt(2)')
    a(f'v_readfirstlane_b32 s{S_MODE}, v7')
    a(f'v_mfma_f32_32x32x16_bf16 {vr(A_S[0], 16)}, {vr(A_K[0], 4)}, {vr(A_Q, 4)}, 0')
    a('s_nop 7')
    a('s_nop 3')


def attn_tile(g, u, top=None, mid=None):
    a = g.a
    cur = u & 1
    nxt = cur ^ 1
    S, P = A_S[cur], A_P

    def ex(i):
        a(f'v_exp_f32 v{S + i}, v{S + i}')

    def cv(k):
        a(f'v_cvt_pk_bf16_f32 v{P + k}, v{S + 2 * k}, v{S + 2 * k + 1}')

    if top:
        top()
    a(f'ds_read_b128 {vr(A_K[nxt], 4)}, v{A_KA} offset:{toff(u + 1)}')
    ex(0); ex(1); ex(2); cv(0); ex(3)
    a(f'v_mfma_f32_32x32x16_bf16 {vr(A_O, 16)}, {vr(A_V[nxt] + 4, 4)}, {vr(P + 4, 4)}, {vr(A_O, 16)}')
    a(f's_mov_b64 exec, s[{S_MASK}:{S_MASK + 1}]')
    a(f'ds_read_b128 {vr(A_V[nxt], 4)}, v{A_VA} offset:{toff(u + 1)}')
    a(f'ds_read_b128 {vr(A_V[nxt] + 4, 4)}, v{A_VA} offset:{toff(u + 1) + 512}')
    a('s_mov_b64 exec, -1')
    ex(4); cv(1); ex(5); ex(6); cv(2)
    a('s_waitcnt lgkmcnt(2)')
    a(f'v_mfma_f32_32x32x16_bf16 {vr(A_S[nxt], 16)}, {vr(A_K[nxt], 4)}, {vr(A_Q, 4)}, 0')
    ex(7); ex(8); cv(3); ex(9); ex(10)
    a(f'v_mfma_f32_32x32x16_bf16 {vr(A_O, 16)}, {vr(A_V[cur], 4)}, {vr(P, 4)}, {vr(A_O, 16)}')
    if mid:
        mid()
    cv(4); ex(11); ex(12); cv(5); ex(13); ex(14); ex(15); cv(6); cv(7)


def dma_waves_only(g, body, name):
    a = g.a
    a(f's_and_b32 s{S_T0}, s{S_WV}, 12')
    a(f's_cmp_eq_u32 s{S_T0}, 4')
    a(f's_cbranch_scc0 {name}')
    body()
    a.label(name)


def attn_first_trip(g):
    a = g.a

    def blocks(*js):
        def f():
            for j in js:
                g.kv_dma(j, WS_KR, WS_VR)
        return f

    def first():
        g.ws_spin(A_PA, A_PV, 64, 'rem', preissued=True, ignore=S_IGN)
        g.stamp('rem_ok')
        blocks(2, 3)()

    def remflags():
        a(f's_cmp_lt_u32 s{S_WV}, 4')
        a('s_cbranch_scc0 L_at_norf')
        a(f'v_and_b32 v2, 1, v{V_LANE}')
        a('v_lshlrev_b32 v2, 3, v2')
        a(f'v_lshrrev_b32 v3, 1, v{V_LANE}')
        a('v_add_u32 v2, v2, v3')
        a('v_lshlrev_b32 v2, 11, v2')
        a(f'v_mov_b32 v3, s{S_TOK}')
        a('s_waitcnt vmcnt(0)')
        g.stamp('st_rem')
        a('s_mov_b64 exec, 0xffff')
        a(f'buffer_store_dword v3, v2, {WSR}, s{S_A} offen sc1')
        a('s_mov_b64 exec, -1')
        a.label('L_at_norf')

    def uload():
        a(f's_cmp_eq_u32 s{S_WV}, 14')
        a('s_cbranch_scc0 L_at_noul')
        g.u_load()
        a.label('L_at_noul')

    def barrier(n, name):
        def f():
            g.stamp(name + 'a')
            a(f's_waitcnt vmcnt({n})')
            a('s_barrier')
            g.stamp(name + 'b')
        return f

    mids = {0: lambda: (remflags(), dma_waves_only(g, first, 'L_at_d0')),
            1: lambda: dma_waves_only(g, blocks(4, 5), 'L_at_d1'),
            2: lambda: dma_waves_only(g, blocks(6, 7), 'L_at_d2'),
            3: lambda: dma_waves_only(g, blocks(8, 9), 'L_at_d3'),
            4: lambda: (dma_waves_only(g, blocks(10, 11), 'L_at_d4'), uload()),
            5: lambda: dma_waves_only(g, blocks(12, 13), 'L_at_d5'),
            6: lambda: dma_waves_only(g, blocks(14, 15), 'L_at_d6')}
    tops = {3: barrier(8, 'r1'), 7: barrier(12, 'r2')}
    for u in range(8):
        attn_tile(g, u, tops.get(u), mids.get(u))
    a(f'v_add_u32 v{A_KA}, 16384, v{A_KA}')
    a(f'v_add_u32 v{A_VA}, 16384, v{A_VA}')


def attn_loop(g):
    a = g.a
    a(f's_mov_b32 s{S_J}, 1')
    a('.p2align 6')
    a.label('L_at_loop')
    a('s_branch L_at_hook')
    a.label('L_at_back')

    def mid():
        a(f's_cmp_eq_u32 s{S_J}, 3')
        a('s_cbranch_scc1 L_at_mid')
        a.label('L_at_midback')
    for u in range(8):
        attn_tile(g, u, mid if u == 4 else None)
    a(f'v_add_u32 v{A_KA}, 16384, v{A_KA}')
    a(f'v_add_u32 v{A_VA}, 16384, v{A_VA}')
    a(f's_add_u32 s{S_J}, s{S_J}, 1')
    a(f's_cmp_lt_u32 s{S_J}, 4')
    a('s_cbranch_scc1 L_at_loop')
    a(f'v_mfma_f32_32x32x16_bf16 {vr(A_O, 16)}, {vr(A_V[1] + 4, 4)}, {vr(A_P + 4, 4)}, {vr(A_O, 16)}')
    a('s_waitcnt lgkmcnt(0)')


def attn_hooks(g):
    a = g.a
    a.label('L_at_hook')
    a(f's_cmp_eq_u32 s{S_J}, 1')
    a('s_cbranch_scc0 L_at_hook2')
    a(f's_cmp_eq_u32 s{S_WV}, 14')
    a('s_cbranch_scc0 L_at_back')
    g.u_transpose()
    a('s_branch L_at_back')
    a.label('L_at_hook2')
    a(f's_cmp_eq_u32 s{S_J}, 2')
    a('s_cbranch_scc0 L_at_hook3')
    a('s_waitcnt vmcnt(0)')
    a('s_barrier')
    a(f's_cmp_eq_u32 s{S_WV}, 14')
    a('s_cbranch_scc0 L_at_back')
    a(f's_lshl_b32 s{S_T0}, s{S_XC}, 11')
    a(f's_lshl_b32 s{S_T1}, s{S_IDX}, 2')
    a(f's_add_u32 s{S_T0}, s{S_T0}, s{S_T1}')
    a(f's_add_u32 s{S_T0}, s{S_T0}, {WS_INBOX + IB_U}')
    a(f'v_lshlrev_b32 v2, 14, v{V_LANE}')
    a(f'v_mov_b32 v3, s{S_TOK}')
    g.lanes(32)
    g.store_mode([f'buffer_store_dword v3, v2, {WSR}, s{S_T0} offen {{M}}'])
    g.lanes(64)
    a('s_branch L_at_back')
    a.label('L_at_hook3')
    a('s_barrier')
    a(f'v_lshrrev_b32 v2, 2, v{V_LANE}')
    a('v_and_b32 v2, 7, v2')
    a('v_lshlrev_b32 v2, 10, v2')
    a(f'v_lshrrev_b32 v3, 5, v{V_LANE}')
    a('v_lshl_add_u32 v2, v3, 6, v2')
    a(f'v_and_b32 v3, 3, v{V_LANE}')
    a('v_lshl_add_u32 v2, v3, 4, v2')
    a(f's_lshl_b32 s{S_T0}, s{S_WV}, 15')
    a(f's_lshr_b32 s{S_T1}, s{S_IDX}, 2')
    a(f's_lshl_b32 s{S_T1}, s{S_T1}, 7')
    a(f's_add_u32 s{S_T0}, s{S_T0}, s{S_T1}')
    a(f's_lshl_b32 s{S_T2}, s{S_WV}, 12')
    a(f's_cmp_ge_u32 s{S_WV}, 8')
    a(f's_cselect_b32 s{S_T3}, 32768, 0')
    a(f's_add_u32 s{S_T2}, s{S_T2}, s{S_T3}')
    for i in range(4):
        a(f's_add_u32 m0, s{S_T2}, {1024 * i}')
        a(f's_add_u32 s{S_T1}, s{S_T0}, {8192 * i}')
        a(f'buffer_load_dwordx4 v2, s[{R_WO}:{R_WO + 3}], s{S_T1} offen lds')
    a(f's_cmp_lt_u32 s{S_WV}, 8')
    a('s_cbranch_scc1 L_at_back')
    a(f'v_lshlrev_b32 v{A_PA}, 2, v{V_LANE}')
    a(f's_add_u32 s{S_T0}, s{S_INB}, {IB_U}')
    a(f'v_add_u32 v{A_PA}, s{S_T0}, v{A_PA}')
    g.lanes(32)
    a(f'buffer_load_dword v{A_PV}, v{A_PA}, {WSR}, 0 offen sc1')
    g.lanes(64)
    a('s_branch L_at_back')
    a.label('L_at_mid')
    a(f's_cmp_lt_u32 s{S_WV}, 8')
    a('s_cbranch_scc1 L_at_midback')
    g.ws_spin(A_PA, A_PV, 32, 'uf', preissued=True)
    a(f's_lshl_b32 s{S_T0}, s{S_XC}, 18')
    a(f's_lshl_b32 s{S_T1}, s{S_IDX}, 13')
    a(f's_add_u32 s{S_T0}, s{S_T0}, s{S_T1}')
    a(f's_and_b32 s{S_T2}, s{S_WV}, 7')
    a(f's_lshl_b32 s{S_T1}, s{S_T2}, 10')
    a(f's_add_u32 s{S_T0}, s{S_T0}, s{S_T1}')
    a(f's_add_u32 s{S_T0}, s{S_T0}, {WS_UT}')
    a(f's_lshr_b32 s{S_T1}, s{S_T2}, 2')
    a(f's_mul_i32 s{S_T1}, s{S_T1}, {UL_SZ}')
    a(f's_and_b32 s{S_T2}, s{S_WV}, 3')
    a(f's_lshl_b32 s{S_T3}, s{S_T2}, 10')
    a(f's_add_u32 s{S_T3}, s{S_T3}, s{S_T1}')
    a(f's_add_u32 m0, s{S_T3}, {L_UL + 512}')
    a('s_nop 0')
    a(f'buffer_load_dwordx4 v{A_L16}, {WSR}, s{S_T0} offen sc1 lds')
    a(f's_cmp_eq_u32 s{S_T2}, 0')
    a('s_cbranch_scc0 L_at_midback')
    a(f's_add_u32 s{S_T1}, s{S_T1}, {L_UL}')
    a(f'v_lshlrev_b32 v2, 3, v{V_LANE}')
    a(f'v_add_u32 v2, s{S_T1}, v2')
    a('v_mov_b32 v98, 0')
    a('v_mov_b32 v99, 0')
    a('ds_write_b64 v2, v[98:99]')
    a('s_waitcnt lgkmcnt(0)')
    a('s_branch L_at_midback')


def attn_finish(g):
    a = g.a
    a(f's_and_b32 s{S_T0}, s{S_WV}, 3')
    a(f's_mul_i32 s{S_T0}, s{S_T0}, {PART_SZ}')
    a(f's_bfe_u32 s{S_T1}, s{S_WV}, 0x10002')
    a(f's_lshl_b32 s{S_T1}, s{S_T1}, 16')
    a(f's_add_u32 s{S_T0}, s{S_T0}, s{S_T1}')
    a(f's_add_u32 s{S_T0}, s{S_T0}, {L_HALF[0]}')
    a(f'v_add_u32 v2, s{S_T0}, v{A_L16}')
    a(f'v_lshlrev_b32 v3, 2, v{V_LANE}')
    a(f'v_add_u32 v3, s{S_T0}, v3')
    a(f's_cmp_lt_u32 s{S_WV}, 8')
    a('s_cbranch_scc1 L_at_recv')
    a('s_nop 1')
    a(f'ds_write_b128 v2, {vr(A_O, 4)}')
    a(f'ds_write_b128 v2, {vr(A_O + 4, 4)} offset:1024')
    a(f'ds_write_b32 v3, v{A_O + 8} offset:2048')
    a('s_waitcnt vmcnt(0) lgkmcnt(0)')
    a('s_barrier')
    g.stamp('attn1')
    a('s_branch L_conv')
    a.label('L_at_recv')
    a('s_waitcnt vmcnt(0)')
    a('s_barrier')
    g.stamp('attn1')
    a(f'ds_read_b128 {vr(A_S[0], 4)}, v2')
    a(f'ds_read_b128 {vr(A_S[0] + 4, 4)}, v2 offset:1024')
    a(f'ds_read_b32 v{A_S[0] + 8}, v3 offset:2048')
    a('s_waitcnt lgkmcnt(0)')
    for i in range(9):
        a(f'v_add_f32 v{A_O + i}, v{A_O + i}, v{A_S[0] + i}')
    a(f's_mov_b32 s{S_J}, 0')
    a.label('L_at_norm')
    a(f'v_rcp_f32 v2, v{A_O + 8}')
    a(f's_mov_b32 s{S_T6}, {fbits(2.0 ** -40)}')
    a(f's_mov_b32 s{S_T7}, {fbits(2.0 ** 100)}')
    for i in range(8):
        a(f'v_mul_f32 v{A_P + i}, v{A_O + i}, v2')
    a(f'v_add_f32 v3, |v{A_P}|, |v{A_P + 1}|')
    for i in range(2, 8):
        a(f'v_add_f32 v3, v3, |v{A_P + i}|')
    a(f'v_cmp_nle_f32 vcc, s{S_T6}, v{A_O + 8}')
    a(f'v_cmp_nge_f32 s[{S_T0}:{S_T0 + 1}], s{S_T7}, v{A_O + 8}')
    a(f'v_cmp_nge_f32 s[{S_T2}:{S_T2 + 1}], s{S_T7}, v3')
    a('s_nop 1')
    a(f's_or_b64 vcc, vcc, s[{S_T0}:{S_T0 + 1}]')
    a(f's_or_b64 vcc, vcc, s[{S_T2}:{S_T2 + 1}]')
    a(f's_cmp_eq_u32 s{S_J}, 1')
    a('s_cbranch_scc1 L_at_normok')
    a('s_cbranch_vccnz L_at_fallback')
    a.label('L_at_normok')
    for k in range(4):
        a(f'v_cvt_pk_bf16_f32 v{A_P + k}, v{A_P + 2 * k}, v{A_P + 2 * k + 1}')
    a(f's_lshl_b32 s{S_T0}, s{S_XC}, 3')
    a(f's_add_u32 s{S_T0}, s{S_T0}, s{S_WV}')
    a(f's_lshl_b32 s{S_T0}, s{S_T0}, 5')
    a(f's_add_u32 s{S_T0}, s{S_T0}, s{S_H}')
    a(f's_lshl_b32 s{S_T0}, s{S_T0}, 10')
    a(f's_add_u32 s{S_T0}, s{S_T0}, {WS_OF}')
    g.store_mode([f'buffer_store_dwordx4 {vr(A_P, 4)}, v{A_L16}, {WSR}, s{S_T0} offen {{M}}'])
    a('s_barrier')
    a(f's_lshr_b32 s{S_T0}, s{S_WV}, 1')
    a(f's_lshl_b32 s{S_T0}, s{S_T0}, 14')
    a(f's_lshl_b32 s{S_T1}, s{S_XC}, 11')
    a(f's_add_u32 s{S_T0}, s{S_T0}, s{S_T1}')
    a(f's_lshl_b32 s{S_T1}, s{S_H}, 3')
    a(f's_add_u32 s{S_T0}, s{S_T0}, s{S_T1}')
    a(f's_and_b32 s{S_T1}, s{S_WV}, 1')
    a(f's_lshl_b32 s{S_T1}, s{S_T1}, 2')
    a(f's_add_u32 s{S_T0}, s{S_T0}, s{S_T1}')
    a(f's_add_u32 s{S_T0}, s{S_T0}, {WS_INBOX + IB_O}')
    a(f'v_lshlrev_b32 v6, 16, v{V_LANE}')
    a(f'v_mov_b32 v7, s{S_TOK}')
    a('s_waitcnt vmcnt(0)')
    g.lanes(8)
    g.store_mode([f'buffer_store_dword v7, v6, {WSR}, s{S_T0} offen {{M}}'])
    g.lanes(64)
    g.stamp('oflag')
    a('s_barrier')
    a(f's_cmp_eq_u32 s{S_WV}, 0')
    a('s_cbranch_scc0 L_e3')
    a(f'v_lshlrev_b32 v2, 2, v{V_LANE}')
    a(f's_add_u32 s{S_T0}, s{S_INB}, {IB_O}')
    a(f'v_add_u32 v2, s{S_T0}, v2')
    g.ws_spin(2, 3, 64, 'of')
    g.stamp('of_ok')
    a('s_branch L_e3')


def attn_fallback(g):
    a = g.a
    S, C = A_S[0], A_S[1]

    def src():
        a(f's_lshr_b32 s{S_T0}, s{S_K}, 2')
        a(f's_lshl_b32 s{S_T1}, s{S_XC}, 1')
        a(f's_add_u32 s{S_T1}, s{S_T1}, s{S_T0}')
        a(f's_and_b32 s{S_T1}, s{S_T1}, 15')
        a(f's_lshl_b32 s{S_T1}, s{S_T1}, 12')
        a(f's_and_b32 s{S_T2}, s{S_K}, 3')
        a(f's_lshl_b32 s{S_T2}, s{S_T2}, 10')
        a(f's_add_u32 s{S_T1}, s{S_T1}, s{S_T2}')
        a(f's_lshl_b32 s{S_T2}, s{S_H}, 16')
        a(f's_add_u32 s{S_T1}, s{S_T1}, s{S_T2}')
        a(f's_cmp_lt_u32 s{S_T0}, 2')
        a(f's_cselect_b32 s{S_T2}, {WS_KL - WS_KR}, 0')
        a(f's_add_u32 s{S_T1}, s{S_T1}, s{S_T2}')
        a(f's_add_u32 s{S_T3}, s{S_T1}, {WS_VR}')
        a(f's_add_u32 s{S_T1}, s{S_T1}, {WS_KR}')

    assert WS_KL - WS_KR == WS_VL - WS_VR
    a.label('L_at_fallback')
    a(f'v_mov_b32 v2, {fbits(-3.0e38)}')
    a(f's_mov_b32 s{S_K}, 0')
    a.label('L_fb_max')
    src()
    a(f'buffer_load_dwordx4 {vr(A_K[0], 4)}, v{A_L16}, {WSR}, s{S_T1} offen sc1')
    a('s_waitcnt vmcnt(0)')
    a(f'v_mfma_f32_32x32x16_bf16 {vr(S, 16)}, {vr(A_K[0], 4)}, {vr(A_Q, 4)}, 0')
    a('s_nop 7')
    a('s_nop 3')
    for i in range(0, 16, 2):
        a(f'v_max3_f32 v2, v2, v{S + i}, v{S + i + 1}')
    a(f's_add_u32 s{S_K}, s{S_K}, 1')
    a(f's_cmp_lt_u32 s{S_K}, 64')
    a('s_cbranch_scc1 L_fb_max')
    a('v_mov_b32 v3, v2')
    a('s_nop 1')
    a('v_permlane32_swap_b32 v2, v3')
    a('s_nop 1')
    a('v_max_f32 v2, v2, v3')
    for i in range(16):
        a(f'v_sub_f32 v{C + i}, 0, v2')
    for i in range(16):
        a(f'v_mov_b32 v{A_O + i}, 0')
    a(f'v_lshrrev_b32 v2, 5, v{V_LANE}')
    a('v_lshlrev_b32 v2, 8, v2')
    a(f'v_and_b32 v3, 15, v{V_LANE}')
    a(f'v_lshl_add_u32 v{A_VA}, v3, 4, v2')
    a(f's_mov_b32 s{S_K}, 0')
    a.label('L_fb_sum')
    src()
    a(f'buffer_load_dwordx4 {vr(A_K[0], 4)}, v{A_L16}, {WSR}, s{S_T1} offen sc1')
    a(f's_mov_b64 exec, s[{S_MASK}:{S_MASK + 1}]')
    a(f'buffer_load_dwordx4 {vr(A_V[0], 4)}, v{A_VA}, {WSR}, s{S_T3} offen sc1')
    a(f'buffer_load_dwordx4 {vr(A_V[0] + 4, 4)}, v{A_VA}, {WSR}, s{S_T3} offen offset:512 sc1')
    a('s_mov_b64 exec, -1')
    a('s_waitcnt vmcnt(0)')
    a(f'v_mfma_f32_32x32x16_bf16 {vr(S, 16)}, {vr(A_K[0], 4)}, {vr(A_Q, 4)}, {vr(C, 16)}')
    a('s_nop 7')
    a('s_nop 3')
    for i in range(16):
        a(f'v_exp_f32 v{S + i}, v{S + i}')
    a('s_nop 0')
    for k in range(8):
        a(f'v_cvt_pk_bf16_f32 v{A_P + k}, v{S + 2 * k}, v{S + 2 * k + 1}')
    a('s_nop 1')
    a(f'v_mfma_f32_32x32x16_bf16 {vr(A_O, 16)}, {vr(A_V[0], 4)}, {vr(A_P, 4)}, {vr(A_O, 16)}')
    a(f'v_mfma_f32_32x32x16_bf16 {vr(A_O, 16)}, {vr(A_V[0] + 4, 4)}, {vr(A_P + 4, 4)}, {vr(A_O, 16)}')
    a(f's_add_u32 s{S_K}, s{S_K}, 1')
    a(f's_cmp_lt_u32 s{S_K}, 64')
    a('s_cbranch_scc1 L_fb_sum')
    a(f's_mov_b32 s{S_J}, 1')
    a('s_nop 7')
    a('s_nop 3')
    a('s_branch L_at_norm')


def conv(g):
    a = g.a
    a.label('L_conv')
    vA, vB, vT = 2, 3, 4
    ACC, AF, BF = 8, 40, 72
    a(f's_lshl_b32 s{S_T0}, s{S_XC}, 6')
    a(f's_lshl_b32 s{S_T1}, s{S_IDX}, 1')
    a(f's_add_u32 s{S_T0}, s{S_T0}, s{S_T1}')
    a(f's_lshl_b32 s{S_T0}, s{S_T0}, 1')
    a(f's_load_dword s{S_DSKV}, s[{S_DSK}:{S_DSK + 1}], s{S_T0}')
    a(f's_bfe_u32 s{S_A}, s{S_WV}, 0x10002')
    a(f's_and_b32 s{S_B}, s{S_WV}, 3')
    a(f's_mul_i32 s{S_T0}, s{S_A}, {UL_SZ}')
    a(f's_lshl_b32 s{S_T1}, s{S_B}, 7')
    a(f's_sub_u32 s{S_T0}, s{S_T0}, s{S_T1}')
    a(f's_add_u32 s{S_T0}, s{S_T0}, {L_UL + 480}')
    a(f'v_and_b32 v5, 15, v{V_LANE}')
    a(f'v_lshrrev_b32 v6, 4, v{V_LANE}')
    a('v_lshlrev_b32 v7, 5, v5')
    a('v_lshl_add_u32 v7, v6, 4, v7')
    a(f'v_add_u32 v{vB}, s{S_T0}, v7')
    a(f's_mul_i32 s{S_T0}, s{S_A}, {R_SZ}')
    a(f's_sub_u32 s{S_T0}, s{S_T0}, s{S_T1}')
    a(f's_add_u32 s{S_T0}, s{S_T0}, {L_R + 4 * 1015}')
    a('v_lshrrev_b32 v7, 1, v5')
    a('v_lshlrev_b32 v7, 2, v7')
    a('v_lshlrev_b32 v6, 4, v6')
    a('v_sub_u32 v6, v6, v7')
    a('v_and_b32 v5, 1, v5')
    a('v_cmp_eq_u32 vcc, 0, v5')
    a(f'v_mov_b32 v7, {R_O}')
    a('s_nop 0')
    a('v_cndmask_b32 v5, 0, v7, vcc')
    a('v_add_u32 v6, v6, v5')
    a(f'v_add_u32 v{vA}, s{S_T0}, v6')

    def one_class(first):
        q = LdsQueue()

        def rd_b(i):
            a(f'ds_read_b128 {vr(BF + 4 * i, 4)}, v{vB} offset:{512 * i}')
            q.push(f'b{i}')

        def rd_a(j):
            if j % 2 == 0:
                a(f'v_subrev_u32 v{vT + (j // 2) % 2}, {512 * (j + 1)}, v{vA}')
            base = vT + (j // 2) % 2
            o = 128 if j % 2 == 0 else 0
            a(f'ds_read2_b32 {vr(AF + 4 * j, 2)}, v{base} offset0:{o} offset1:{o + 1}')
            a(f'ds_read2_b32 {vr(AF + 4 * j + 2, 2)}, v{base} offset0:{o + 2} offset1:{o + 3}')
            q.push(f'a{j}')
            q.push(f'a{j}')

        rd_a(0)
        for i in range(8):
            rd_b(i)
        rd_a(1)
        for j in range(8):
            for i in range(8 - j):
                if j == 0:
                    q.wait(a, f'b{i}')
                elif i == 0:
                    q.wait(a, f'a{j}')
                t = i + j
                c = '0' if (first and j == 0) else vr(ACC + 4 * t, 4)
                a(f'v_mfma_f32_16x16x32_bf16 {vr(ACC + 4 * t, 4)}, {vr(AF + 4 * j, 4)}, {vr(BF + 4 * i, 4)}, {c}')
                if j == 0 and i in (1, 3, 5):
                    rd_a(2 + (i - 1) // 2)
                if j == 1 and i in (0, 2, 4):
                    rd_a(5 + i // 2)

    one_class(True)
    a(f'v_subrev_u32 v{vA}, 64, v{vA}')
    a(f'v_subrev_u32 v{vB}, 64, v{vB}')
    a('s_barrier')
    one_class(False)
    g.stamp('cv_mf')
    a(f'v_lshlrev_b32 v5, 4, v{V_LANE}')
    a(f's_lshl_b32 s{S_T2}, s{S_A}, 16')
    a(f's_add_u32 s{S_T2}, s{S_T2}, {L_HALF[0]}')
    a(f's_lshl_b32 s{S_T0}, s{S_B}, 13')
    a(f's_add_u32 s{S_T0}, s{S_T0}, s{S_T2}')
    a(f'v_add_u32 v6, s{S_T0}, v5')
    a('s_waitcnt lgkmcnt(0)')
    for t in range(8):
        a(f'ds_write_b128 v6, {vr(ACC + 4 * t, 4)} offset:{1024 * t}')
    a('s_waitcnt lgkmcnt(0)')
    a('s_barrier')
    a(f's_lshl_b32 s{S_T1}, s{S_B}, 11')
    a(f's_add_u32 s{S_T0}, s{S_T2}, s{S_T1}')
    a(f'v_add_u32 v6, s{S_T0}, v5')
    for s in range(4):
        for tt in range(2):
            a(f'ds_read_b128 {vr(40 + 16 * tt + 4 * s, 4)}, v6 offset:{8192 * s + 1024 * tt}')
    a(f's_mul_i32 s{S_T0}, s{S_A}, {UL_SZ}')
    a(f's_lshl_b32 s{S_T1}, s{S_B}, 10')
    a(f's_add_u32 s{S_T0}, s{S_T0}, s{S_T1}')
    a(f's_add_u32 s{S_T0}, s{S_T0}, {L_UL + 512}')
    a(f'v_and_b32 v7, 15, v{V_LANE}')
    a('v_lshlrev_b32 v7, 5, v7')
    a(f'v_lshrrev_b32 v8, 4, v{V_LANE}')
    a('v_lshl_add_u32 v7, v8, 3, v7')
    a(f'v_add_u32 v7, s{S_T0}, v7')
    a('ds_read_b64 v[72:73], v7')
    a('ds_read_b64 v[74:75], v7 offset:512')
    a('s_waitcnt lgkmcnt(0)')
    a(f's_lshl_b32 s{S_T1}, s{S_A}, 4')
    a(f's_lshr_b32 s{S_DSKV}, s{S_DSKV}, s{S_T1}')
    a(f's_lshl_b32 s{S_DSKV}, s{S_DSKV}, 16')
    for tt in range(2):
        b = 40 + 16 * tt
        for r in range(4):
            a(f'v_add_f32 v{b + r}, v{b + r}, v{b + 4 + r}')
            a(f'v_add_f32 v{b + 8 + r}, v{b + 8 + r}, v{b + 12 + r}')
        for r in range(4):
            a(f'v_add_f32 v{b + r}, v{b + r}, v{b + 8 + r}')
        a(f'v_cvt_pk_bf16_f32 v{b + 4}, v{b}, v{b + 1}')
        a(f'v_cvt_pk_bf16_f32 v{b + 5}, v{b + 2}, v{b + 3}')
        u = 72 + 2 * tt
        a(f'v_lshlrev_b32 v{b + 8}, 16, v{u}')
        a(f'v_and_b32 v{b + 9}, 0xffff0000, v{u}')
        a(f'v_lshlrev_b32 v{b + 10}, 16, v{u + 1}')
        a(f'v_and_b32 v{b + 11}, 0xffff0000, v{u + 1}')
        for r in range(4):
            a(f'v_mul_f32 v{b + 8 + r}, s{S_DSKV}, v{b + 8 + r}')
        a(f'v_cvt_pk_bf16_f32 v{b + 6}, v{b + 8}, v{b + 9}')
        a(f'v_cvt_pk_bf16_f32 v{b + 7}, v{b + 10}, v{b + 11}')
        for k in range(2):
            a(f'v_lshlrev_b32 v{b + 8}, 16, v{b + 4 + k}')
            a(f'v_and_b32 v{b + 9}, 0xffff0000, v{b + 4 + k}')
            a(f'v_lshlrev_b32 v{b + 10}, 16, v{b + 6 + k}')
            a(f'v_and_b32 v{b + 11}, 0xffff0000, v{b + 6 + k}')
            a(f'v_add_f32 v{b + 8}, v{b + 8}, v{b + 10}')
            a(f'v_add_f32 v{b + 9}, v{b + 9}, v{b + 11}')
            a(f'v_cvt_pk_bf16_f32 v{76 + 2 * tt + k}, v{b + 8}, v{b + 9}')
    a(f's_lshl_b32 s{S_T0}, s{S_XC}, 6')
    a(f's_lshl_b32 s{S_T1}, s{S_IDX}, 1')
    a(f's_add_u32 s{S_T0}, s{S_T0}, s{S_T1}')
    a(f's_add_u32 s{S_T0}, s{S_T0}, s{S_A}')
    a(f's_lshl_b32 s{S_T0}, s{S_T0}, 2')
    a(f's_add_u32 s{S_T0}, s{S_T0}, s{S_B}')
    a(f's_lshl_b32 s{S_T0}, s{S_T0}, 10')
    a(f's_add_u32 s{S_T0}, s{S_T0}, {WS_YT}')
    g.store_mode([f'buffer_store_dwordx4 v[76:79], v5, {WSR}, s{S_T0} offen {{M}}'])
    a(f's_lshl_b32 s{S_T0}, s{S_B}, 17')
    a(f's_lshl_b32 s{S_T1}, s{S_XC}, 11')
    a(f's_add_u32 s{S_T0}, s{S_T0}, s{S_T1}')
    a(f's_lshl_b32 s{S_T1}, s{S_IDX}, 3')
    a(f's_add_u32 s{S_T0}, s{S_T0}, s{S_T1}')
    a(f's_lshl_b32 s{S_T1}, s{S_A}, 2')
    a(f's_add_u32 s{S_T0}, s{S_T0}, s{S_T1}')
    a(f's_add_u32 s{S_T0}, s{S_T0}, {WS_INBOX + IB_Y}')
    a(f'v_lshlrev_b32 v6, 14, v{V_LANE}')
    a(f'v_mov_b32 v7, s{S_TOK}')
    a('s_waitcnt vmcnt(0)')
    g.lanes(8)
    g.store_mode([f'buffer_store_dword v7, v6, {WSR}, s{S_T0} offen {{M}}'])
    g.lanes(64)
    g.stamp('conv')


def outproj(g):
    a = g.a
    a.label('L_e3')
    a('s_barrier')
    a(f's_and_b32 s{S_T0}, s{S_IDX}, 3')
    a(f's_lshl_b32 s{S_T0}, s{S_T0}, 1')
    a(f's_lshl_b32 s{S_T1}, s{S_XC}, 3')
    a(f's_add_u32 s{S_T0}, s{S_T0}, s{S_T1}')
    a(f's_lshl_b32 s{S_T0}, s{S_T0}, 15')
    a(f's_lshl_b32 s{S_T2}, s{S_WV}, 12')
    a(f's_add_u32 s{S_T0}, s{S_T0}, s{S_T2}')
    a(f's_add_u32 s{S_T0}, s{S_T0}, {WS_OF}')
    a(f's_cmp_ge_u32 s{S_WV}, 8')
    a(f's_cselect_b32 s{S_T3}, 32768, 0')
    a(f's_add_u32 s{S_T2}, s{S_T2}, s{S_T3}')
    a(f'v_lshlrev_b32 v5, 4, v{V_LANE}')
    for i in range(4):
        a(f's_add_u32 m0, s{S_T2}, {L_HALF[0] + i * 1024}')
        a(f's_add_u32 s{S_T1}, s{S_T0}, {i * 1024}')
        a(f'buffer_load_dwordx4 v5, {WSR}, s{S_T1} offen sc1 lds')
    a(f's_cmp_ge_u32 s{S_WV}, 4')
    a('s_cbranch_scc1 L_ys')
    vW, vW2, vO, ACC, WF, OF = 6, 8, 7, 16, 32, 64
    a(f'v_lshrrev_b32 v2, 5, v{V_LANE}')
    a(f'v_bfe_u32 v3, v{V_LANE}, 2, 2')
    a('v_lshl_add_u32 v2, v2, 2, v3')
    a('v_lshlrev_b32 v2, 6, v2')
    a(f'v_bfe_u32 v3, v{V_LANE}, 4, 1')
    a('v_lshl_add_u32 v2, v3, 5, v2')
    a(f'v_and_b32 v3, 3, v{V_LANE}')
    a('v_lshl_add_u32 v2, v3, 3, v2')
    a(f's_lshr_b32 s{S_T0}, s{S_WV}, 1')
    a(f's_lshl_b32 s{S_T0}, s{S_T0}, 9')
    a(f'v_add_u32 v{vW}, s{S_T0}, v2')
    a(f'v_add_u32 v{vW2}, {L_V}, v{vW}')
    a(f's_and_b32 s{S_T0}, s{S_WV}, 1')
    a(f's_lshl_b32 s{S_T0}, s{S_T0}, 16')
    a(f's_add_u32 s{S_T0}, s{S_T0}, {L_HALF[0]}')
    a(f'v_add_u32 v{vO}, s{S_T0}, v5')
    a('s_waitcnt vmcnt(0)')
    a('s_barrier')
    g.stamp('e4')
    q = LdsQueue()
    DEPTH = 4

    def rd(h):
        b = h % (DEPTH + 1)
        w = vW if h < 16 else vW2
        a(f'ds_read_b64_tr_b16 {vr(WF + 4 * b, 2)}, v{w} offset:{2048 * (h & 15)}')
        a(f'ds_read_b64_tr_b16 {vr(WF + 4 * b + 2, 2)}, v{w} offset:{2048 * (h & 15) + 1024}')
        a(f'ds_read_b128 {vr(OF + 4 * b, 4)}, v{vO} offset:{1024 * h}')
        for _ in range(3):
            q.push(h)
    for h in range(DEPTH):
        rd(h)
    for h in range(32):
        if h + DEPTH < 32:
            rd(h + DEPTH)
        q.wait(a, h)
        b = h % (DEPTH + 1)
        c = '0' if h == 0 else vr(ACC, 16)
        a(f'v_mfma_f32_32x32x16_bf16 {vr(ACC, 16)}, {vr(WF + 4 * b, 4)}, {vr(OF + 4 * b, 4)}, {c}')
    a(f'v_and_b32 v2, 31, v{V_LANE}')
    a(f's_and_b32 s{S_T0}, s{S_WV}, 1')
    a(f's_lshl_b32 s{S_T0}, s{S_T0}, 5')
    a(f'v_add_u32 v2, s{S_T0}, v2')
    a(f'v_mul_u32_u24 v2, {OUT_P}, v2')
    a(f'v_lshrrev_b32 v3, 5, v{V_LANE}')
    a('v_lshl_add_u32 v2, v3, 3, v2')
    a(f's_lshr_b32 s{S_T0}, s{S_WV}, 1')
    a(f's_lshl_b32 s{S_T0}, s{S_T0}, 6')
    a(f's_add_u32 s{S_T0}, s{S_T0}, {L_OUT}')
    a(f'v_add_u32 v2, s{S_T0}, v2')
    a('s_nop 3')
    for gq in range(4):
        a(f'v_cvt_pk_bf16_f32 v{32 + 2 * gq}, v{ACC + 4 * gq}, v{ACC + 4 * gq + 1}')
        a(f'v_cvt_pk_bf16_f32 v{33 + 2 * gq}, v{ACC + 4 * gq + 2}, v{ACC + 4 * gq + 3}')
        a(f'ds_write_b64 v2, {vr(32 + 2 * gq, 2)} offset:{16 * gq}')
    a('s_waitcnt lgkmcnt(0)')
    g.stamp('op_mf')
    a('s_barrier')
    a.label('L_outstore')
    a(f'v_lshrrev_b32 v2, 3, v{V_LANE}')
    a(f's_lshl_b32 s{S_T0}, s{S_WV}, 3')
    a(f'v_add_u32 v2, s{S_T0}, v2')
    a(f'v_mul_u32_u24 v3, {OUT_P}, v2')
    a(f'v_and_b32 v4, 7, v{V_LANE}')
    a('v_lshl_add_u32 v3, v4, 4, v3')
    a(f'v_add_u32 v3, {L_OUT}, v3')
    a('ds_read_b128 v[8:11], v3')
    a('v_lshlrev_b32 v2, 11, v2')
    a('v_lshl_add_u32 v2, v4, 4, v2')
    a(f's_lshl_b32 s{S_T0}, s{S_XC}, 19')
    a(f's_and_b32 s{S_T2}, s{S_IDX}, 3')
    a(f's_lshl_b32 s{S_T2}, s{S_T2}, 17')
    a(f's_add_u32 s{S_T0}, s{S_T0}, s{S_T2}')
    a(f's_lshr_b32 s{S_T2}, s{S_IDX}, 2')
    a(f's_lshl_b32 s{S_T2}, s{S_T2}, 7')
    a(f's_add_u32 s{S_T0}, s{S_T0}, s{S_T2}')
    a('s_waitcnt lgkmcnt(0)')
    a(f'buffer_store_dwordx4 v[8:11], v2, s[{R_OUT}:{R_OUT + 3}], s{S_T0} offen')
    a('s_branch L_finish')


def ystage(g):
    a = g.a
    a.label('L_ys')
    a('s_waitcnt vmcnt(0)')
    a('s_barrier')
    a(f's_cmp_lt_u32 s{S_WV}, 8')
    a('s_cbranch_scc1 L_ys_idle')
    a(f'v_lshlrev_b32 v2, 2, v{V_LANE}')
    a(f's_add_u32 s{S_T0}, s{S_INB}, {IB_Y}')
    a(f'v_add_u32 v2, s{S_T0}, v2')
    g.ws_spin(2, 3, 64, 'yf')
    a(f'v_lshrrev_b32 v2, 4, v{V_LANE}')
    a('v_lshlrev_b32 v2, 12, v2')
    a(f'v_bfe_u32 v3, v{V_LANE}, 2, 2')
    a('v_lshl_add_u32 v2, v3, 8, v2')
    a(f'v_and_b32 v3, 3, v{V_LANE}')
    a('v_lshl_add_u32 v2, v3, 4, v2')
    a(f's_lshl_b32 s{S_T0}, s{S_XC}, 18')
    a(f's_lshr_b32 s{S_T1}, s{S_IDX}, 3')
    a(f's_lshl_b32 s{S_T1}, s{S_T1}, 10')
    a(f's_add_u32 s{S_T0}, s{S_T0}, s{S_T1}')
    a(f's_and_b32 s{S_T1}, s{S_IDX}, 3')
    a(f's_lshl_b32 s{S_T1}, s{S_T1}, 6')
    a(f's_add_u32 s{S_T0}, s{S_T0}, s{S_T1}')
    a(f's_and_b32 s{S_T2}, s{S_WV}, 7')
    a(f's_lshl_b32 s{S_T1}, s{S_T2}, 15')
    a(f's_add_u32 s{S_T0}, s{S_T0}, s{S_T1}')
    a(f's_add_u32 s{S_T0}, s{S_T0}, {WS_YT}')
    a(f's_mul_i32 s{S_T3}, s{S_T2}, {2 * 1040}')
    for i in range(2):
        a(f's_add_u32 m0, s{S_T3}, {L_YS + i * 1040}')
        a(f's_add_u32 s{S_T1}, s{S_T0}, {i * 16384}')
        a(f'buffer_load_dwordx4 v2, {WSR}, s{S_T1} offen sc1 lds')
    a('s_waitcnt vmcnt(0)')
    a('s_barrier')
    a(f'v_and_b32 v3, 7, v{V_LANE}')
    a('v_mul_u32_u24 v4, 2080, v3')
    a(f'v_bfe_u32 v5, v{V_LANE}, 5, 1')
    a('v_lshl_add_u32 v4, v5, 6, v4')
    a(f'v_bfe_u32 v5, v{V_LANE}, 3, 2')
    a('v_lshl_add_u32 v4, v5, 1, v4')
    a(f's_bfe_u32 s{S_T0}, s{S_IDX}, 0x10002')
    a(f's_lshl_b32 s{S_T0}, s{S_T0}, 3')
    a(f's_lshr_b32 s{S_T1}, s{S_T2}, 1')
    a(f's_lshl_b32 s{S_T1}, s{S_T1}, 4')
    a(f's_add_u32 s{S_T0}, s{S_T0}, s{S_T1}')
    a(f's_and_b32 s{S_T1}, s{S_T2}, 1')
    a(f's_lshl_b32 s{S_T1}, s{S_T1}, 7')
    a(f's_add_u32 s{S_T0}, s{S_T0}, s{S_T1}')
    a(f's_add_u32 s{S_T0}, s{S_T0}, {L_YS}')
    a(f'v_add_u32 v4, s{S_T0}, v4')
    for e in range(8):
        op = 'ds_read_u16' if e % 2 == 0 else 'ds_read_u16_d16_hi'
        a(f'{op} v{16 + e}, v4 offset:{(e >> 2) * 1040 + (e & 3) * 256}')
    a(f'v_lshrrev_b32 v2, 3, v{V_LANE}')
    a(f's_lshl_b32 s{S_T1}, s{S_T2}, 3')
    a(f'v_add_u32 v2, s{S_T1}, v2')
    a('v_lshlrev_b32 v2, 11, v2')
    a('v_lshl_add_u32 v2, v3, 4, v2')
    a(f's_lshl_b32 s{S_T0}, s{S_IDX}, 17')
    a(f's_lshl_b32 s{S_T1}, s{S_XC}, 7')
    a(f's_add_u32 s{S_T0}, s{S_T0}, s{S_T1}')
    a(f's_add_u32 s{S_T0}, s{S_T0}, 1024')
    a('s_waitcnt lgkmcnt(0)')
    for i in range(4):
        a(f'v_or_b32 v{8 + i}, v{16 + 2 * i}, v{17 + 2 * i}')
    a(f'buffer_store_dwordx4 v[8:11], v2, s[{R_OUT}:{R_OUT + 3}], s{S_T0} offen')
    a('s_branch L_finish')
    a.label('L_ys_idle')
    a('s_barrier')
    a('s_branch L_outstore')


def rest(g):
    a = g.a
    if g.stop == 'p1':
        a('s_branch L_finish')
        return
    attn_setup(g)
    attn_first_trip(g)
    attn_loop(g)
    attn_finish(g)
    conv(g)
    outproj(g)
    ystage(g)
    attn_hooks(g)
    attn_fallback(g)
```

```python
import os
import struct
import sys

sys.path.insert(0, os.path.dirname(os.path.abspath(__file__)))
from asmlib import Asm, VmQueue, check_hazards, vr

NAME = 'concat_heads__softmax_full_mha__ssm_conv_s4d__prompt'
KERNEL = NAME + '_kernel'

WS_G = 0x0
WS_INBOX = 0x100000
IB_KV, IB_U, IB_X, IB_L, IB_O, IB_Y = 0, 256, 512, 768, 1024, 1280
WS_UT = 0x200000
WS_KR = 0x400000
WS_VR = 0x600000
WS_QL = 0x800000
WS_KL = 0xA00000
WS_VL = 0xC00000
WS_OF = 0xE00000
WS_YT = 0x1000000
WS_PROF = 0x1400000
WS_SIZE = 0x1800000

LDS_BYTES = 163840
SLOT, NSLOT = 32768, 3
L_USTAGE = 148096
L_KG = 98304
ROWP = 272
KG_Y = 25 * ROWP
KG_SZ = KG_Y + 32 * ROWP
L_KPART = 98304
L_KSP = 114688
KSP_SZ = 4608
L_K, L_V = 0, 65536
L_R = 131072
R_O, R_SZ = 4160, 8320
L_UL = L_R + 2 * R_SZ
UL_SZ = 4608
L_QS = 148096
L_MISC = 163520
M_MODE = L_MISC
M_F = L_MISC + 16
M_I = L_MISC + 96
M_C = L_MISC + 144
M_KT = L_MISC - 32
M_SL = L_MISC - 48
L_HALF = (32768, 98304)
L_OUT = L_R
OUT_P = 144
L_YS = L_R + 64 * OUT_P
PART_SZ = 2304

S_X, S_WQKV, S_WO, S_U, S_LOGA, S_AIM, S_CRE, S_CIM, S_LOGDT, S_DSK, S_OUT, S_DBG, S_WS = range(8, 34, 2)
R_X, R_W, R_WS, R_U, R_WO, R_OUT = 36, 40, 44, 48, 52, 56
S_XC, S_IDX, S_CG, S_RB, S_S0, S_WV, S_TOK, S_MODE, S_H, S_XCC = range(60, 70)
S_T0, S_T1, S_T2, S_T3, S_T4, S_T5, S_T6, S_T7 = range(70, 78)
S_MASK = 78
S_RET = 80
S_K, S_SLOT, S_CNT, S_DT, S_INB = 82, 83, 84, 85, 86
S_A, S_B, S_C = 3, 4, 5
S_IGN = 6
S_J, S_SRC = 34, 35
S_PROF = 88

V_LANE = 1
LOG2E = 1.4426950408889634
INV2PI = 0.15915494309189535
QSCALE = 0.25 * LOG2E
SPIN_MAX = 400000
HI0 = [0, 256, 512, 768, 1024, 1280, 1536, 1792, 1, 2, 3, 258, 2048]
WSR = f's[{R_WS}:{R_WS + 3}]'

A_L16, A_PA, A_PV, A_KA, A_VA, A_Q, A_O = 4, 5, 6, 8, 9, 12, 16
A_S, A_P, A_K, A_V = (32, 48), 64, (72, 76), (80, 88)


def fbits(x):
    return '0x%08x' % struct.unpack('<I', struct.pack('<f', x))[0]


class LdsQueue:
    def __init__(self):
        self.q = []

    def push(self, tag):
        self.q.append(tag)

    def wait(self, a, tag):
        idx = max(i for i, t in enumerate(self.q) if t == tag)
        n = len(self.q) - 1 - idx
        assert n <= 15
        a(f's_waitcnt lgkmcnt({n})')


class Gen:
    def __init__(self, stop=None, prof='', points='', exp=''):
        self.a = Asm()
        self.stop = stop
        self.prof = prof
        self.points = points.split(',') if points else []
        self.exp = set(exp.split(',')) if exp else set()
        assert len(self.points) <= 7

    def srd(self, r, base, size):
        a = self.a
        a(f's_mov_b32 s{r}, s{base}')
        a(f's_mov_b32 s{r + 1}, s{base + 1}')
        a(f's_mov_b32 s{r + 2}, {size}')
        a(f's_mov_b32 s{r + 3}, 0x20000')

    def lanes(self, n):
        if n == 64:
            self.a('s_mov_b64 exec, -1')
        elif n >= 32:
            self.a(f's_mov_b32 exec_hi, {hex((1 << (n - 32)) - 1)}')
        else:
            self.a(f's_mov_b64 exec, {hex((1 << n) - 1)}')

    def stamp(self, name):
        if self.prof and name in self.points:
            i = self.points.index(name)
            op = 's_memtime' if self.prof == 'cyc' else 's_memrealtime'
            self.a(f'{op} s[{S_PROF + 2 * i}:{S_PROF + 2 * i + 1}]')

    def stamp_k(self, prefix):
        for k in range(8):
            if self.prof and f'{prefix}{k}' in self.points:
                lb = self.a.uid('nost')
                self.a(f's_cmp_eq_u32 s{S_K}, {k}')
                self.a(f's_cbranch_scc0 {lb}')
                self.stamp(f'{prefix}{k}')
                self.a.label(lb)

    def lds_check(self, vtmp, n):
        a = self.a
        a(f'v_cmp_ne_u32 vcc, s{S_TOK}, v{vtmp}')
        for i in range(1, n):
            a(f'v_cmp_ne_u32 s[{S_IGN}:{S_IGN + 1}], s{S_TOK}, v{vtmp + i}')
            a('s_nop 0')
            a(f's_or_b64 vcc, vcc, s[{S_IGN}:{S_IGN + 1}]')

    def lds_spin(self, vaddr, vtmp, n, off=0, sleep=0):
        a = self.a
        lp = a.uid('lspin')
        rd = {1: 'ds_read_b32', 2: 'ds_read_b64', 4: 'ds_read_b128'}[n]
        a(f's_mov_b32 s{S_CNT}, 0')
        a.label(lp)
        a(f'{rd} {vr(vtmp, n)}, v{vaddr} offset:{off}')
        a(f's_add_u32 s{S_CNT}, s{S_CNT}, 1')
        a('s_waitcnt lgkmcnt(0)')
        self.lds_check(vtmp, n)
        a(f's_cbranch_vccz {lp}_x')
        if sleep:
            a(f's_sleep {sleep}')
        a(f's_cmp_gt_u32 s{S_CNT}, {SPIN_MAX}')
        a(f's_cbranch_scc0 {lp}')
        a.label(lp + '_x')

    def ws_spin(self, voff, vtmp, nlanes, name, preissued=False, ignore=None):
        a = self.a
        lp, done = a.uid(name), a.uid(name + '_ok')
        a(f's_mov_b32 s{S_CNT}, 0')
        if nlanes < 64:
            self.lanes(nlanes)
        if not preissued:
            a(f'buffer_load_dword v{vtmp}, v{voff}, {WSR}, 0 offen sc1')
        a.label(lp)
        a('s_waitcnt vmcnt(0)')
        a(f'v_cmp_ne_u32 vcc, s{S_TOK}, v{vtmp}')
        a(f's_add_u32 s{S_CNT}, s{S_CNT}, 1')
        a('s_nop 0')
        if ignore is not None:
            a(f's_andn2_b64 vcc, vcc, s[{ignore}:{ignore + 1}]')
        else:
            a('s_and_b64 vcc, vcc, exec')
        a(f's_cbranch_scc0 {done}')
        a(f's_cmp_gt_u32 s{S_CNT}, {SPIN_MAX}')
        a(f's_cbranch_scc1 {done}')
        a(f'buffer_load_dword v{vtmp}, v{voff}, {WSR}, 0 offen sc1')
        a(f's_branch {lp}')
        a.label(done)
        if nlanes < 64:
            self.lanes(64)

    def store_mode(self, lines):
        a = self.a
        wt, done = a.uid('wt'), a.uid('std')
        a(f's_cmp_eq_u32 s{S_MODE}, 0')
        a(f's_cbranch_scc1 {wt}')
        for ln in lines:
            a(ln.replace('{M}', ''))
        a(f's_branch {done}')
        a.label(wt)
        for ln in lines:
            a(ln.replace('{M}', 'sc1'))
        a.label(done)

    def token(self):
        a = self.a
        a('s_waitcnt lgkmcnt(0)')
        a(f's_mul_i32 s{S_TOK}, s{S_TOK}, 0x9e3779b1')
        a(f's_add_u32 s{S_TOK}, s{S_TOK}, 0x7f4a7c15')

    def common_setup(self):
        a = self.a
        a(f's_load_dword s{S_TOK}, s[{S_WS}:{S_WS + 1}], {WS_G}')
        a(f's_getreg_b32 s{S_XCC}, hwreg(HW_REG_XCC_ID)')
        self.srd(R_WS, S_WS, WS_SIZE)
        self.srd(R_U, S_U, 2048 * 1024)
        self.srd(R_WO, S_WO, 512 * 1024)
        self.srd(R_OUT, S_OUT, 2048 * 2048)
        a(f's_mov_b32 s{S_H}, s{S_IDX}')
        a(f's_and_b32 s{S_XCC}, s{S_XCC}, 15')
        a(f's_lshl_b32 s{S_INB}, s2, 11')
        a(f's_add_u32 s{S_INB}, s{S_INB}, {WS_INBOX}')
        a(f's_mov_b32 s{S_MASK}, 0x0000ffff')
        a(f's_mov_b32 s{S_MASK + 1}, 0x0000ffff')

    def prologue(self):
        a = self.a
        a('s_cmp_ge_u32 s2, 256')
        a('s_cbranch_scc1 L_exit')
        a('s_load_dwordx16 s[8:23], s[0:1], 0')
        a('s_load_dwordx8 s[24:31], s[0:1], 64')
        a('s_load_dwordx2 s[32:33], s[0:1], 96')
        if self.prof:
            for i in range(14):
                a(f's_mov_b32 s{S_PROF + i}, 0')
        self.stamp('entry')
        a('s_getpc_b64 s[70:71]')
        a.label('L_pc')
        a('v_lshrrev_b32 v2, 6, v0')
        a(f'v_and_b32 v{V_LANE}, 63, v0')
        a(f's_lshr_b32 s{S_IDX}, s2, 3')
        a(f's_lshl_b32 s{S_T2}, s{S_IDX}, 10')
        a(f'v_lshl_add_u32 v3, v0, 7, s{S_T2}')
        a('v_min_u32 v3, L_code_end-L_pc-4, v3')
        a('v_cmp_gt_u32 vcc, 8, v0')
        a(f's_and_saveexec_b64 s[{S_T4}:{S_T4 + 1}], vcc')
        a('s_cbranch_execz L_nocodepf')
        a('global_load_dword v9, v3, s[70:71]')
        a.label('L_nocodepf')
        a('s_mov_b64 exec, -1')
        a(f's_and_b32 s{S_XC}, s2, 7')
        a(f'v_readfirstlane_b32 s{S_WV}, v2')
        a(f's_lshr_b32 s{S_CG}, s{S_IDX}, 2')
        a(f's_and_b32 s{S_RB}, s{S_IDX}, 3')
        a(f's_lshl_b32 s{S_S0}, s{S_RB}, 1')
        a(f's_add_u32 s{S_S0}, s{S_S0}, s{S_CG}')
        a(f's_sub_u32 s{S_T0}, s{S_WV}, 4')
        a(f's_cmp_lt_u32 s{S_T0}, 6')
        a('s_cbranch_scc0 L_notloader')

    def issue_chunk(self):
        a = self.a
        if 'nodma' in self.exp:
            return
        a(f's_add_u32 s{S_T2}, s{S_S0}, s{S_K}')
        a(f's_and_b32 s{S_T2}, s{S_T2}, 7')
        a(f's_lshl_b32 s{S_T0}, s{S_T2}, 7')
        a(f's_add_u32 s{S_T0}, s{S_T0}, s{S_A}')
        a(f's_mul_i32 s{S_T4}, s{S_T2}, {64 * 3072}')
        a(f's_add_u32 s{S_T4}, s{S_T4}, s{S_B}')
        for j in range(4):
            a(f's_add_u32 m0, s{S_C}, {j * 1024}')
            a(f's_add_u32 s{S_T1}, s{S_T0}, {j * 8192}')
            a(f'buffer_load_dwordx4 v{10 + (j & 1)}, s[{R_X}:{R_X + 3}], s{S_T1} offen lds')
            for c in range(3):
                a(f's_add_u32 m0, s{S_C}, {8192 + c * 8192 + j * 1024}')
                a(f's_add_u32 s{S_T1}, s{S_T4}, {j * 8 * 3072 + c * 1024}')
                a(f'buffer_load_dwordx4 v12, s[{R_W}:{R_W + 3}], s{S_T1} offen lds')

    def loader_waves(self):
        a = self.a
        a('s_setprio 2')
        a(f'v_lshrrev_b32 v4, 3, v{V_LANE}')
        a(f'v_and_b32 v5, 7, v{V_LANE}')
        a('v_lshrrev_b32 v6, 1, v4')
        a('v_xor_b32 v7, v5, v6')
        a('v_lshlrev_b32 v7, 4, v7')
        a('v_lshl_add_u32 v10, v4, 10, v7')
        a('v_xor_b32 v11, 64, v10')
        a(f'v_bfe_u32 v4, v{V_LANE}, 2, 3')
        a('v_mul_u32_u24 v4, 3072, v4')
        a(f'v_lshrrev_b32 v5, 5, v{V_LANE}')
        a('v_lshl_add_u32 v4, v5, 6, v4')
        a(f'v_and_b32 v5, 3, v{V_LANE}')
        a('v_lshl_add_u32 v12, v5, 4, v4')
        a(f's_and_b32 s{S_T1}, s{S_T0}, 1')
        a(f's_lshr_b32 s{S_K}, s{S_T0}, 1')
        a(f's_lshl_b32 s{S_C}, s{S_K}, 15')
        a(f's_lshl_b32 s{S_T2}, s{S_T1}, 12')
        a(f's_add_u32 s{S_C}, s{S_C}, s{S_T2}')
        a(f's_lshl_b32 s{S_A}, s{S_XC}, 18')
        a(f's_lshl_b32 s{S_T2}, s{S_RB}, 16')
        a(f's_add_u32 s{S_A}, s{S_A}, s{S_T2}')
        a(f's_lshl_b32 s{S_T2}, s{S_T1}, 15')
        a(f's_add_u32 s{S_A}, s{S_A}, s{S_T2}')
        a(f's_mul_i32 s{S_B}, s{S_T1}, {32 * 3072}')
        a(f's_lshl_b32 s{S_T2}, s{S_CG}, 7')
        a(f's_add_u32 s{S_B}, s{S_B}, s{S_T2}')
        vF, vC, vT = 13, 14, 20
        a(f's_lshl_b32 s{S_T1}, s{S_T1}, 2')
        a(f's_add_u32 s{S_T2}, s{S_T1}, {M_F}')
        a(f'v_mov_b32 v{vF}, s{S_T2}')
        a(f's_lshl_b32 s{S_T2}, s{S_K}, 3')
        a(f's_add_u32 s{S_T2}, s{S_T2}, s{S_T1}')
        a(f's_add_u32 s{S_T2}, s{S_T2}, {M_I}')
        a(f'v_mov_b32 v17, s{S_T2}')
        a('s_waitcnt lgkmcnt(0)')
        self.srd(R_X, S_X, 2048 * 1024)
        self.srd(R_W, S_WQKV, 512 * 3072)
        a(f's_cmp_eq_u32 s{S_K}, 0')
        a('s_cbranch_scc1 L_ld_first')
        self.common_setup()
        self.token()
        a(f's_lshl_b32 s{S_T2}, s{S_K}, 3')
        a(f's_add_u32 s{S_T2}, s{S_T2}, {M_I - 8}')
        a(f'v_mov_b32 v{vC}, s{S_T2}')
        self.lds_spin(vC, vT, 2)
        self.issue_chunk()
        a('s_branch L_ld_issued')
        a.label('L_ld_first')
        self.stamp('iss0')
        self.issue_chunk()
        self.common_setup()
        self.token()
        a.label('L_ld_issued')
        self.stamp('iss1')
        a(f'v_mov_b32 v15, s{S_TOK}')
        a('ds_write_b32 v17, v15')
        a(f'v_mov_b32 v{vC}, {M_C}')
        a.label('L_ld_loop')
        a(f's_lshl_b32 s{S_T0}, s{S_K}, 3')
        a(f'v_add_u32 v18, s{S_T0}, v{vF}')
        a('s_waitcnt vmcnt(0)')
        a('ds_write_b32 v18, v15')
        self.stamp_k('lF')
        a(f's_add_u32 s{S_K}, s{S_K}, 3')
        a(f's_cmp_ge_u32 s{S_K}, 8')
        a('s_cbranch_scc1 L_ld_done')
        a(f's_lshl_b32 s{S_T0}, s{S_K}, 4')
        a(f's_add_u32 s{S_T0}, s{S_T0}, {M_C - 48}')
        a(f'v_mov_b32 v{vC}, s{S_T0}')
        self.lds_spin(vC, vT, 4, sleep=1)
        self.stamp_k('lC')
        self.issue_chunk()
        self.stamp_k('lI')
        a('s_branch L_ld_loop')
        a.label('L_ld_done')
        self.stamp('lb7')
        a(f's_cmp_ge_u32 s{S_WV}, 8')
        a('s_cbranch_scc1 L_gap1_join')
        self.stage_local()
        a('s_branch L_gap1_join')

    def kv_src(self):
        a = self.a
        a(f's_lshl_b32 s{S_C}, s{S_XC}, 1')
        a(f's_lshl_b32 s{S_T0}, s{S_H}, 16')
        a(f's_and_b32 s{S_B}, s{S_WV}, 3')
        a(f's_lshl_b32 s{S_B}, s{S_B}, 10')
        a(f's_add_u32 s{S_SRC}, s{S_T0}, s{S_B}')
        a(f'v_lshlrev_b32 v{A_L16}, 4, v{V_LANE}')

    def kv_dma(self, j, kbase, vbase):
        a = self.a
        a(f's_add_u32 s{S_T0}, s{S_C}, {j}')
        a(f's_and_b32 s{S_T0}, s{S_T0}, 15')
        a(f's_lshl_b32 s{S_T0}, s{S_T0}, 12')
        a(f's_add_u32 s{S_T0}, s{S_T0}, s{S_SRC}')
        a(f's_add_u32 m0, s{S_B}, {L_K + 4096 * j}')
        a(f's_add_u32 s{S_T4}, s{S_T0}, {kbase}')
        a(f'buffer_load_dwordx4 v{A_L16}, {WSR}, s{S_T4} offen sc1 lds')
        a(f's_add_u32 m0, s{S_B}, {L_V + 4096 * j}')
        a(f's_add_u32 s{S_T4}, s{S_T0}, {vbase}')
        a(f'buffer_load_dwordx4 v{A_L16}, {WSR}, s{S_T4} offen sc1 lds')

    def stage_local(self):
        a = self.a
        self.kv_src()
        a(f'v_lshlrev_b32 v2, 2, v{V_LANE}')
        a(f's_add_u32 s{S_T0}, s{S_INB}, {IB_L}')
        a('v_add_u32 v2, s70, v2')
        self.ws_spin(2, 3, 8, 'loc')
        self.stamp('loc_ok')
        for j in range(2):
            self.kv_dma(j, WS_KL, WS_VL)
        a(f's_lshl_b32 s{S_T0}, s{S_H}, 16')
        a(f's_lshl_b32 s{S_T1}, s{S_XC}, 13')
        a(f's_add_u32 s{S_T0}, s{S_T0}, s{S_T1}')
        a(f's_lshl_b32 s{S_T1}, s{S_B}, 1')
        a(f's_add_u32 s{S_T0}, s{S_T0}, s{S_T1}')
        a(f's_add_u32 s{S_T0}, s{S_T0}, {WS_QL}')
        for i in range(2):
            a(f's_add_u32 m0, s{S_T1}, {L_QS + 1024 * i}')
            a(f's_add_u32 s{S_T4}, s{S_T0}, {1024 * i}')
            a(f'buffer_load_dwordx4 v{A_L16}, {WSR}, s{S_T4} offen sc1 lds')
        a(f's_and_b32 s{S_T0}, s{S_WV}, 3')
        a(f's_lshl_b32 s{S_T0}, s{S_T0}, 2')
        a(f's_add_u32 s{S_T0}, s{S_T0}, {M_SL}')
        a(f'v_mov_b32 v2, s{S_T0}')
        a(f'v_mov_b32 v3, s{S_TOK}')
        a('ds_write_b32 v2, v3')
        a(f'v_lshlrev_b32 v{A_PA}, 2, v{V_LANE}')
        a(f's_add_u32 s{S_T0}, s{S_INB}, {IB_KV}')
        a(f'v_add_u32 v{A_PA}, s{S_T0}, v{A_PA}')
        a(f'buffer_load_dword v{A_PV}, v{A_PA}, {WSR}, 0 offen sc1')
        a('s_waitcnt vmcnt(1)')

    def gemm_waves(self):
        a = self.a
        vXa, vWa, vF, vC, vT = 10, 14, 15, 6, 2
        ACCQ, ACCK, ACCV = 16, 32, 48
        XF, WF = 64, 80
        a.label('L_gemm')
        if 'noprio' not in self.exp:
            a('s_setprio 3')
        a(f'v_and_b32 v2, 31, v{V_LANE}')
        a(f'v_lshrrev_b32 v3, 5, v{V_LANE}')
        a('v_bfe_u32 v4, v2, 1, 3')
        a('v_xor_b32 v4, v4, v3')
        a('v_lshlrev_b32 v4, 4, v4')
        a(f's_and_b32 s{S_T0}, s{S_WV}, 1')
        a(f's_lshl_b32 s{S_T0}, s{S_T0}, 12')
        a('v_lshl_add_u32 v4, v2, 7, v4')
        a(f'v_add_u32 v{vXa}, s{S_T0}, v4')
        for ks in range(1, 4):
            a(f'v_xor_b32 v{vXa + ks}, {32 * ks}, v{vXa}')
        a(f'v_bfe_u32 v4, v{V_LANE}, 2, 2')
        a('v_lshlrev_b32 v4, 6, v4')
        a('v_lshl_add_u32 v4, v3, 10, v4')
        a(f'v_bfe_u32 v5, v{V_LANE}, 4, 1')
        a('v_lshl_add_u32 v4, v5, 5, v4')
        a(f'v_and_b32 v5, 3, v{V_LANE}')
        a('v_lshl_add_u32 v4, v5, 3, v4')
        a(f's_lshr_b32 s{S_T0}, s{S_WV}, 1')
        a(f's_lshl_b32 s{S_T0}, s{S_T0}, 9')
        a(f's_add_u32 s{S_T0}, s{S_T0}, 8192')
        a(f'v_add_u32 v{vWa}, s{S_T0}, v4')
        for i in range(48):
            a(f'v_mov_b32 v{ACCQ + i}, 0')
        a(f's_mov_b32 s{S_K}, 0')
        a(f's_mov_b32 s{S_SLOT}, 0')
        a(f'v_mov_b32 v{vF}, {M_F}')
        a(f's_lshl_b32 s{S_T0}, s{S_WV}, 2')
        a(f's_add_u32 s{S_T0}, s{S_T0}, {M_C}')
        a(f'v_mov_b32 v{vC}, s{S_T0}')
        self.token()
        a(f'v_mov_b32 v7, s{S_TOK}')

        def loads(ks):
            a(f'ds_read_b128 {vr(XF + 4 * ks, 4)}, v{vXa + ks}')
            for c in range(3):
                base = WF + 12 * ks + 4 * c
                a(f'ds_read_b64_tr_b16 {vr(base, 2)}, v{vWa} offset:{c * 8192 + ks * 2048}')
                a(f'ds_read_b64_tr_b16 {vr(base + 2, 2)}, v{vWa} offset:{c * 8192 + ks * 2048 + 256}')

        def mfmas(ks):
            xf = vr(XF + 4 * ks, 4)
            w = [vr(WF + 12 * ks + 4 * c, 4) for c in range(3)]
            a(f'v_mfma_f32_32x32x16_bf16 {vr(ACCQ, 16)}, {w[0]}, {xf}, {vr(ACCQ, 16)}')
            a(f'v_mfma_f32_32x32x16_bf16 {vr(ACCK, 16)}, {w[1]}, {xf}, {vr(ACCK, 16)}')
            a(f'v_mfma_f32_32x32x16_bf16 {vr(ACCV, 16)}, {xf}, {w[2]}, {vr(ACCV, 16)}')

        self.lds_spin(vF, vT, 2)
        self.stamp('b0')
        loads(0)
        loads(1)
        a(f'ds_read_b32 v8, v{vF}')
        a.label('L_g_chunk')
        a('s_waitcnt lgkmcnt(8)')
        loads(2)
        mfmas(0)
        a('s_waitcnt lgkmcnt(7)')
        a(f'ds_read_b64 v[2:3], v{vF} offset:8')
        loads(3)
        mfmas(1)
        a('s_waitcnt lgkmcnt(7)')
        a(f's_add_u32 s{S_K}, s{S_K}, 1')
        a(f's_cmp_eq_u32 s{S_K}, 8')
        a('s_cbranch_scc1 L_g_go')
        self.lds_check(2, 2)
        a('s_cbranch_vccnz L_g_wait')
        a.label('L_g_go')
        a(f's_add_u32 s{S_SLOT}, s{S_SLOT}, 1')
        a(f's_mov_b32 s{S_T0}, {SLOT}')
        a(f's_cmp_eq_u32 s{S_SLOT}, {NSLOT}')
        a(f's_cselect_b32 s{S_T0}, {(-(NSLOT - 1) * SLOT) & 0xffffffff}, s{S_T0}')
        a(f's_cselect_b32 s{S_SLOT}, 0, s{S_SLOT}')
        for i in range(5):
            a(f'v_add_u32 v{vXa + i}, s{S_T0}, v{vXa + i}')
        a(f'v_add_u32 v{vF}, 8, v{vF}')
        loads(0)
        mfmas(2)
        a('s_waitcnt lgkmcnt(7)')
        loads(1)
        a(f'ds_write_b32 v{vC}, v7')
        a(f'v_add_u32 v{vC}, 16, v{vC}')
        mfmas(3)
        a(f's_cmp_lt_u32 s{S_K}, 8')
        a('s_cbranch_scc1 L_g_chunk')
        self.stamp('gemm')
        a('s_waitcnt lgkmcnt(0)')
        a(f'v_mov_b32 v6, {M_MODE}')
        self.lds_spin(6, 2, 1, off=4)
        a('ds_read_b32 v2, v6')

        PQ, PK, PV = 64, 72, 80
        for i in range(8):
            a(f'v_cvt_pk_bf16_f32 v{PK + i}, v{ACCK + 2 * i}, v{ACCK + 2 * i + 1}')
        for i in range(8):
            a(f'v_cvt_pk_bf16_f32 v{PV + i}, v{ACCV + 2 * i}, v{ACCV + 2 * i + 1}')
        a(f's_mov_b32 s{S_T7}, {fbits(QSCALE)}')
        a('s_waitcnt lgkmcnt(0)')
        a(f'v_readfirstlane_b32 s{S_MODE}, v2')
        vL, vV = 2, 3
        a(f'v_lshlrev_b32 v{vL}, 4, v{V_LANE}')
        a(f'v_bfe_u32 v4, v{V_LANE}, 4, 1')
        a('v_lshlrev_b32 v4, 16, v4')
        a(f'v_lshrrev_b32 v5, 5, v{V_LANE}')
        a('v_lshlrev_b32 v5, 8, v5')
        a(f'v_and_b32 v6, 15, v{V_LANE}')
        a('v_lshl_add_u32 v5, v6, 4, v5')
        a(f'v_add_u32 v{vV}, v4, v5')
        a(f's_and_b32 s{S_T6}, s{S_WV}, 2')
        a(f's_lshl_b32 s{S_T1}, s{S_CG}, 2')
        a(f's_add_u32 s{S_T6}, s{S_T6}, s{S_T1}')
        a(f's_lshl_b32 s{S_T5}, s{S_XC}, 3')
        a(f's_lshl_b32 s{S_T1}, s{S_RB}, 1')
        a(f's_add_u32 s{S_T5}, s{S_T5}, s{S_T1}')
        a(f's_and_b32 s{S_T1}, s{S_WV}, 1')
        a(f's_add_u32 s{S_T5}, s{S_T5}, s{S_T1}')
        a(f's_lshl_b32 s{S_T0}, s{S_T6}, 6')
        a(f's_add_u32 s{S_T0}, s{S_T0}, s{S_T5}')
        a(f's_lshl_b32 s{S_T0}, s{S_T0}, 10')
        a(f's_add_u32 s{S_T1}, s{S_T0}, {WS_KL}')
        a(f's_add_u32 s{S_T2}, s{S_T1}, 65536')
        a(f's_add_u32 s{S_T3}, s{S_T0}, {WS_VL}')
        self.store_mode([
            f'buffer_store_dwordx4 {vr(PK, 4)}, v{vL}, {WSR}, s{S_T1} offen {{M}}',
            f'buffer_store_dwordx4 {vr(PK + 4, 4)}, v{vL}, {WSR}, s{S_T2} offen {{M}}',
            f'buffer_store_dwordx4 {vr(PV, 4)}, v{vV}, {WSR}, s{S_T3} offen {{M}}',
            f'buffer_store_dwordx4 {vr(PV + 4, 4)}, v{vV}, {WSR}, s{S_T3} offen offset:512 {{M}}',
        ])
        for i in range(16):
            a(f'v_mul_f32 v{ACCQ + i}, s{S_T7}, v{ACCQ + i}')
        for i in range(8):
            a(f'v_cvt_pk_bf16_f32 v{PQ + i}, v{ACCQ + 2 * i}, v{ACCQ + 2 * i + 1}')
        a(f's_add_u32 s{S_T4}, s{S_T0}, {WS_QL}')
        a(f's_add_u32 s{S_T7}, s{S_T4}, 65536')
        self.store_mode([
            f'buffer_store_dwordx4 {vr(PQ, 4)}, v{vL}, {WSR}, s{S_T4} offen {{M}}',
            f'buffer_store_dwordx4 {vr(PQ + 4, 4)}, v{vL}, {WSR}, s{S_T7} offen {{M}}',
        ])
        a(f's_lshl_b32 s{S_T1}, s{S_T6}, 14')
        a(f's_lshl_b32 s{S_T2}, s{S_XC}, 11')
        a(f's_add_u32 s{S_T1}, s{S_T1}, s{S_T2}')
        a(f's_and_b32 s{S_T2}, s{S_T5}, 7')
        a(f's_lshl_b32 s{S_T2}, s{S_T2}, 2')
        a(f's_add_u32 s{S_T1}, s{S_T1}, s{S_T2}')
        a(f's_add_u32 s{S_T1}, s{S_T1}, {WS_INBOX + IB_L}')
        a(f'v_lshlrev_b32 v4, 14, v{V_LANE}')
        a(f'v_mov_b32 v5, s{S_TOK}')
        self.stamp('st_iss')
        a('s_waitcnt vmcnt(0)')
        self.stamp('st_loc')
        a('s_mov_b64 exec, 3')
        self.store_mode([f'buffer_store_dword v5, v4, {WSR}, s{S_T1} offen {{M}}'])
        a('s_mov_b64 exec, -1')
        if 'early_rem' not in self.exp:
            a(f'v_mov_b32 v6, {M_SL}')
            self.lds_spin(6, 8, 4, sleep=1)
        a(f's_add_u32 s{S_T1}, s{S_T0}, {WS_KR}')
        a(f's_add_u32 s{S_T2}, s{S_T1}, 65536')
        a(f's_add_u32 s{S_T3}, s{S_T0}, {WS_VR}')
        a(f'buffer_store_dwordx4 {vr(PK, 4)}, v{vL}, {WSR}, s{S_T1} offen sc1')
        a(f'buffer_store_dwordx4 {vr(PK + 4, 4)}, v{vL}, {WSR}, s{S_T2} offen sc1')
        a(f'buffer_store_dwordx4 {vr(PV, 4)}, v{vV}, {WSR}, s{S_T3} offen sc1')
        a(f'buffer_store_dwordx4 {vr(PV + 4, 4)}, v{vV}, {WSR}, s{S_T3} offen offset:512 sc1')
        a(f's_lshl_b32 s{S_A}, s{S_T6}, 14')
        a(f's_lshl_b32 s{S_T2}, s{S_T5}, 2')
        a(f's_add_u32 s{S_A}, s{S_A}, s{S_T2}')
        a(f's_add_u32 s{S_A}, s{S_A}, {WS_INBOX + IB_KV}')
        a('s_branch L_gap1_join')
        a.label('L_g_wait')
        self.lds_spin(vF, 2, 2, off=8)
        a('s_branch L_g_go')

    def cexp(self, dst, ar, ai, e, t):
        a = self.a
        a(f'v_mul_f32 v{t}, {fbits(float(e))}, v{ar}')
        a(f'v_mul_f32 v{t + 1}, {fbits(float(e))}, v{ai}')
        a(f'v_exp_f32 v{t}, v{t}')
        a(f'v_fract_f32 v{t + 1}, v{t + 1}')
        a(f'v_cos_f32 v{dst}, v{t + 1}')
        a(f'v_sin_f32 v{dst + 1}, v{t + 1}')
        a('s_nop 0')
        a(f'v_mul_f32 v{dst}, v{t}, v{dst}')
        a(f'v_mul_f32 v{dst + 1}, v{t}, v{dst + 1}')

    def cmul(self, d, x, y):
        a = self.a
        a(f'v_mul_f32 v{d}, v{x}, v{y}')
        a(f'v_mul_f32 v{d + 1}, v{x}, v{y + 1}')
        a(f'v_fma_f32 v{d}, -v{x + 1}, v{y + 1}, v{d}')
        a(f'v_fma_f32 v{d + 1}, v{x + 1}, v{y}, v{d + 1}')

    def kgen_waves(self):
        a = self.a
        S_CH, S_KGB, S_HF = S_A, S_B, S_C
        a.label('L_kgen')
        if 'nokg' in self.exp:
            a('s_branch L_gap1_join')
        a(f's_sub_u32 s{S_J}, s{S_WV}, 10')
        a(f's_lshr_b32 s{S_CH}, s{S_J}, 1')
        a(f's_and_b32 s{S_HF}, s{S_J}, 1')
        a(f's_lshl_b32 s{S_T0}, s{S_XC}, 6')
        a(f's_lshl_b32 s{S_T1}, s{S_IDX}, 1')
        a(f's_add_u32 s{S_T0}, s{S_T0}, s{S_T1}')
        a(f's_lshl_b32 s{S_T3}, s{S_T0}, 1')
        a(f's_load_dword s{S_DT}, s[{S_LOGDT}:{S_LOGDT + 1}], s{S_T3}')
        a(f's_add_u32 s{S_T0}, s{S_T0}, s{S_CH}')
        a(f's_lshl_b32 s{S_T0}, s{S_T0}, 8')
        a(f's_lshl_b32 s{S_T1}, s{S_HF}, 7')
        a(f's_add_u32 s{S_T0}, s{S_T0}, s{S_T1}')
        a(f'v_lshlrev_b32 v2, 1, v{V_LANE}')
        a(f'v_add_u32 v2, s{S_T0}, v2')
        for i, ptr in enumerate((S_LOGA, S_AIM, S_CRE, S_CIM)):
            a(f'global_load_ushort v{20 + i}, v2, s[{ptr}:{ptr + 1}]')
        self.token()
        a(f's_lshl_b32 s{S_T2}, s{S_CH}, 4')
        a(f's_lshr_b32 s{S_T1}, s{S_DT}, s{S_T2}')
        a(f's_lshl_b32 s{S_T1}, s{S_T1}, 16')
        L2E = fbits(LOG2E)
        a(f'v_mov_b32 v4, s{S_T1}')
        a(f'v_mul_f32 v4, {L2E}, v4')
        a('v_exp_f32 v4, v4')
        vA, vR = 8, 9
        a(f's_mul_i32 s{S_KGB}, s{S_J}, {KG_SZ}')
        a(f's_add_u32 s{S_KGB}, s{S_KGB}, {L_KG}')
        a(f'v_lshlrev_b32 v{vA}, 2, v{V_LANE}')
        a(f'v_add_u32 v{vA}, s{S_KGB}, v{vA}')
        a('s_waitcnt vmcnt(0)')
        for i in range(4):
            a(f'v_lshlrev_b32 v{20 + i}, 16, v{20 + i}')
        a(f'v_mul_f32 v20, {L2E}, v20')
        a('v_exp_f32 v20, v20')
        a('s_nop 0')
        a('v_cvt_pk_bf16_f32 v5, v4, v20')
        a('v_and_b32 v20, 0xffff0000, v5')
        a('v_lshlrev_b32 v5, 16, v5')
        for i in range(4):
            a(f'v_mul_f32 v{20 + i}, v{20 + i}, v5')
        a(f'v_mul_f32 v20, {fbits(-LOG2E)}, v20')
        a(f'v_mul_f32 v21, {fbits(INV2PI)}, v21')
        a('v_add_f32 v34, v22, v22')
        a('v_add_f32 v35, v23, v23')
        self.cexp(24, 20, 21, 1, 6)
        self.cexp(30, 20, 21, 4, 6)
        self.cexp(32, 20, 21, 128, 6)
        self.cmul(26, 24, 24)
        self.cmul(28, 26, 24)
        self.stamp('kb0')

        def row(r):
            return ((r & 3) + 8 * (r >> 2)) * ROWP

        G, Y, E = [36, 38], [42, 44], 40

        def put(z, reg, base, off, negim):
            a(f'v_cvt_pk_bf16_f32 v{reg}, v{z}, {"-" if negim else ""}v{z + 1}')
            return f'ds_write_b32 v{base}, v{reg} offset:{off}'

        def two_chains(n, xoffs, yoffs):
            for i in range(n):
                x0, x1 = G[i & 1], G[(i + 1) & 1]
                w = [put(x0, 46, vA, xoffs[i], False)]
                self.cmul(x1, x0, 32)
                for k in range(2):
                    y0, y1 = Y[k], Y[k ^ 1]
                    w.append(put(y0, 47 + k, vR, yoffs[2 * i + k], True))
                    self.cmul(y1, y0, 30)
                for ln in w:
                    a(ln)

        a('v_mov_b32 v36, v34')
        a('v_mov_b32 v37, v35')
        a('v_mov_b32 v42, 1.0')
        a('v_mov_b32 v43, 0')
        a(f'v_add_u32 v{vR}, {KG_Y}, v{vA}')
        a(f'v_mov_b32 v10, v{vA}')
        a(f's_mov_b32 s{S_K}, 0')
        a.label('L_kg_chain')
        vA = 10
        two_chains(8, [(r + 4 * hh) * ROWP for r in range(4) for hh in range(2)], [j * ROWP for j in range(16)])
        vA = 8
        a(f'v_add_u32 v10, {8 * ROWP}, v10')
        a(f'v_add_u32 v{vR}, {16 * ROWP}, v{vR}')
        a(f's_add_u32 s{S_K}, s{S_K}, 1')
        a(f's_cmp_lt_u32 s{S_K}, 2')
        a('s_cbranch_scc1 L_kg_chain')
        a(put(G[0], 46, vA, row(12), False))
        for k, wk in enumerate((24, 26, 28)):
            self.cmul(G[0], 34, wk)
            self.cmul(G[1], G[0], 32)
            w = [put(G[0], 46, vA, row(8 + k), False), put(G[1], 47, vA, row(8 + k) + 4 * ROWP, False)]
            if k == 1:
                self.cmul(E, G[1], 32)
            for ln in w:
                a(ln)
        self.cmul(G[1], E, 32)
        w = [put(E, 46, vA, row(11), False), put(G[1], 47, vA, row(11) + 4 * ROWP, False)]
        for ln in w:
            a(ln)
        self.stamp('kg_ch')
        XA, YA, D, FR = 2, 3, 48, 64
        a(f'v_and_b32 v4, 31, v{V_LANE}')
        a(f'v_mul_u32_u24 v4, {ROWP}, v4')
        a(f'v_lshrrev_b32 v5, 5, v{V_LANE}')
        a('v_lshl_add_u32 v4, v5, 4, v4')
        a(f'v_add_u32 v{XA}, s{S_KGB}, v4')
        a(f'v_add_u32 v{YA}, {KG_Y}, v{XA}')
        a('s_waitcnt lgkmcnt(0)')

        def rd(s):
            a(f'ds_read_b128 {vr(FR + 8 * s, 4)}, v{XA} offset:{32 * s}')
            a(f'ds_read_b128 {vr(FR + 8 * s + 4, 4)}, v{YA} offset:{32 * s}')
        for s in range(6):
            rd(s)
        for s in range(8):
            a(f's_waitcnt lgkmcnt({10 if s < 3 else 2 * (7 - s)})')
            c = '0' if s == 0 else vr(D, 16)
            a(f'v_mfma_f32_32x32x16_bf16 {vr(D, 16)}, {vr(FR + 8 * s, 4)}, {vr(FR + 8 * s + 4, 4)}, {c}')
            if s + 6 < 8:
                rd(s + 6)
        a(f's_mov_b32 s{S_T0}, s{S_J}')
        a(f's_lshl_b32 s{S_T1}, s{S_T0}, 2')
        a(f's_add_u32 s{S_T1}, s{S_T1}, {M_KT}')
        a(f'v_mov_b32 v6, s{S_T1}')
        a(f'v_mov_b32 v7, s{S_TOK}')
        a('ds_write_b32 v6, v7')
        a(f'v_mov_b32 v10, {M_KT}')
        self.lds_spin(10, 12, 4, sleep=2)
        a(f's_lshl_b32 s{S_T1}, s{S_T0}, 12')
        a(f's_add_u32 s{S_T1}, s{S_T1}, {L_KPART}')
        a(f'v_lshlrev_b32 v11, 4, v{V_LANE}')
        a(f'v_add_u32 v12, s{S_T1}, v11')
        for i in range(4):
            a(f'ds_write_b128 v12, {vr(D + 4 * i, 4)} offset:{1024 * i}')
        a('s_waitcnt lgkmcnt(0)')
        a('ds_write_b32 v6, v7 offset:16')
        a('v_xor_b32 v6, 4, v6')
        a('v_xor_b32 v12, 4096, v12')
        self.lds_spin(6, 14, 1, off=16, sleep=1)
        for i in range(4):
            a(f'ds_read_b128 {vr(FR + 4 * i, 4)}, v12 offset:{1024 * i}')
        a(f's_mul_i32 s{S_KGB}, s{S_CH}, {KSP_SZ}')
        a(f's_add_u32 s{S_KGB}, s{S_KGB}, {L_KSP}')
        a(f'v_and_b32 v4, 31, v{V_LANE}')
        a('v_lshlrev_b32 v4, 3, v4')
        a('v_lshl_add_u32 v4, v5, 8, v4')
        a(f'v_add_u32 v4, s{S_KGB}, v4')
        a('s_waitcnt lgkmcnt(0)')
        for i in range(14):
            a(f'v_add_f32 v{D + i}, v{D + i}, v{FR + i}')
        for i in range(0, 14, 2):
            a(f'v_cvt_pk_bf16_f32 v{FR + 16 + i // 2}, v{D + i}, v{D + i + 1}')
        for r in range(13):
            op = 'ds_write_b16' if r % 2 == 0 else 'ds_write_b16_d16_hi'
            a(f'{op} v4, v{FR + 16 + r // 2} offset:{2 * HI0[r]}')
        self.stamp('kg_mf')
        a(f's_mul_i32 s{S_T3}, s{S_CH}, {R_SZ}')
        a(f's_lshl_b32 s{S_T1}, s{S_HF}, 11')
        a(f's_add_u32 s{S_T3}, s{S_T3}, s{S_T1}')
        a(f's_add_u32 s{S_T3}, s{S_T3}, {L_R}')
        a(f'v_lshlrev_b32 v8, 2, v{V_LANE}')
        a(f'v_add_u32 v8, s{S_T3}, v8')
        a(f's_lshl_b32 s{S_T1}, s{S_HF}, 10')
        a(f's_sub_u32 s{S_T1}, 2047, s{S_T1}')
        a(f'v_lshlrev_b32 v9, 1, v{V_LANE}')
        a(f'v_sub_u32 v9, s{S_T1}, v9')
        a('v_cvt_f32_i32 v9, v9')
        a('s_waitcnt lgkmcnt(0)')
        EB = 20

        def gather(k, qq):
            t = EB + 4 * k
            a(f'v_add_f32 v{t}, {fbits(-128.0 * qq)}, v9')
            a(f'v_add_f32 v{t + 1}, -1.0, v{t}')
            a(f'v_cvt_pk_bf16_f32 v{t}, v{t}, v{t + 1}')
            a(f'v_and_b32 v{t + 1}, 0xffff0000, v{t}')
            a(f'v_lshlrev_b32 v{t}, 16, v{t}')
            a(f'v_cvt_u32_f32 v{t}, v{t}')
            a(f'v_cvt_u32_f32 v{t + 1}, v{t + 1}')
            a(f'v_lshl_add_u32 v{t}, v{t}, 1, s{S_KGB}')
            a(f'v_lshl_add_u32 v{t + 1}, v{t + 1}, 1, s{S_KGB}')
            a(f'ds_read_u16 v{t + 2}, v{t}')
            a(f'ds_read_u16_d16_hi v{t + 3}, v{t + 1}')

        for batch in (range(0, 5), range(5, 9)):
            for k, qq in enumerate(batch):
                gather(k, qq)
            a('s_waitcnt lgkmcnt(0)')
            for k, qq in enumerate(batch):
                t = EB + 4 * k
                a(f'v_or_b32 v{t + 2}, v{t + 2}, v{t + 3}')
                if qq < 8:
                    a(f'ds_write_b32 v8, v{t + 2} offset:{256 * qq}')
                else:
                    a(f's_cmp_eq_u32 s{S_HF}, 0')
                    a(f's_cselect_b32 s{S_T1}, -1, 0')
                    a(f'v_and_b32 v{t + 2}, s{S_T1}, v{t + 2}')
                    a(f's_cselect_b32 s{S_T4}, 1, 0xff')
                    a(f's_mov_b32 s{S_T5}, 0')
                    a(f's_mov_b64 exec, s[{S_T4}:{S_T4 + 1}]')
                    a(f'ds_write_b32 v8, v{t + 2} offset:{256 * qq}')
                    a('s_mov_b64 exec, -1')
        a('s_waitcnt lgkmcnt(0)')
        for k in range(8):
            if k % 4 == 0:
                a(f'v_add_u32 v10, {256 * k}, v8')
            a(f'ds_read2_b32 {vr(EB + 2 * k, 2)}, v10 offset0:{64 * (k % 4)} offset1:{64 * (k % 4) + 1}')
        a('s_waitcnt lgkmcnt(0)')
        for k in range(8):
            a(f'v_alignbit_b32 v{EB + 2 * k}, v{EB + 2 * k + 1}, v{EB + 2 * k}, 16')
            a(f'ds_write_b32 v8, v{EB + 2 * k} offset:{R_O + 256 * k}')
        a(f's_cmp_eq_u32 s{S_HF}, 0')
        a('s_cbranch_scc1 L_gap1_join')
        a('v_mov_b32 v4, 0')
        a('s_mov_b64 exec, 0x7f')
        a(f'ds_write_b32 v8, v4 offset:{R_O + 2048}')
        a('s_mov_b64 exec, -1')
        self.stamp('kg_fin')
        a('s_branch L_gap1_join')

    def side_waves(self):
        a = self.a
        a.label('L_side')
        self.token()
        a(f's_cmp_eq_u32 s{S_WV}, 14')
        a('s_cbranch_scc1 L_gap1_join')
        a(f's_add_u32 s{S_T0}, s{S_INB}, {IB_L}')
        a(f'v_lshlrev_b32 v2, 4, v{V_LANE}')
        self.lanes(48)
        a(f'buffer_load_dwordx4 v[12:15], v2, {WSR}, s{S_T0} offen sc1')
        self.lanes(64)
        a(f'v_lshlrev_b32 v2, 14, v{V_LANE}')
        a(f's_lshl_b32 s{S_T0}, s{S_XC}, 11')
        a(f's_lshl_b32 s{S_T1}, s{S_IDX}, 2')
        a(f's_add_u32 s{S_T0}, s{S_T0}, s{S_T1}')
        a(f's_add_u32 s{S_T0}, s{S_T0}, {WS_INBOX + IB_X}')
        a(f's_xor_b32 s{S_T1}, s{S_TOK}, s{S_XCC}')
        a(f's_xor_b32 s{S_T1}, s{S_T1}, 0x80')
        a(f'v_mov_b32 v3, s{S_T1}')
        a(f'v_lshlrev_b32 v9, 2, v{V_LANE}')
        a(f's_add_u32 s{S_T2}, s{S_INB}, {IB_X}')
        a(f'v_add_u32 v9, s{S_T2}, v9')
        self.lanes(32)
        a(f'buffer_store_dword v3, v2, {WSR}, s{S_T0} offen sc1')
        self.lanes(64)
        a(f'v_mov_b32 v17, {M_F}')
        self.lds_spin(17, 12, 2, sleep=4)
        self.lanes(32)
        a(f's_mov_b32 s{S_CNT}, 0')
        a.label('L_x_poll')
        a(f'buffer_load_dword v8, v9, {WSR}, 0 offen sc1')
        a(f's_add_u32 s{S_CNT}, s{S_CNT}, 1')
        a('s_waitcnt vmcnt(0)')
        a(f'v_xor_b32 v7, s{S_TOK}, v8')
        a('v_and_b32 v7, -16, v7')
        a('v_cmp_ne_u32 vcc, 0x80, v7')
        a(f's_cmp_gt_u32 s{S_CNT}, {SPIN_MAX}')
        a('s_cbranch_scc1 L_x_ok')
        a('s_cbranch_vccnz L_x_poll')
        a.label('L_x_ok')
        a(f'v_cmp_ne_u32 vcc, s{S_T1}, v8')
        a('s_nop 1')
        a('s_cmp_eq_u64 vcc, 0')
        a(f's_cselect_b32 s{S_MODE}, 1, 0')
        self.lanes(64)
        a(f'v_mov_b32 v6, {M_MODE}')
        a(f'v_mov_b32 v10, s{S_MODE}')
        a(f'v_mov_b32 v11, s{S_TOK}')
        a('ds_write_b64 v6, v[10:11]')
        a('s_branch L_gap1_join')


    def u_load(self):
        a = self.a
        a(f'v_lshrrev_b32 v3, 3, v{V_LANE}')
        a('v_lshlrev_b32 v3, 10, v3')
        a(f'v_and_b32 v2, 7, v{V_LANE}')
        a('v_lshl_add_u32 v3, v2, 4, v3')
        a(f's_lshl_b32 s{S_T0}, s{S_IDX}, 16')
        a(f's_lshl_b32 s{S_T1}, s{S_XC}, 7')
        a(f's_add_u32 s{S_T2}, s{S_T0}, s{S_T1}')
        for i in range(8):
            a(f's_mov_b32 m0, {L_USTAGE + 1024 * i}')
            a(f's_add_u32 s{S_T1}, s{S_T2}, {8192 * i}')
            a(f'buffer_load_dwordx4 v3, s[{R_U}:{R_U + 3}], s{S_T1} offen lds')

    def u_transpose(self):
        a = self.a
        B = 96
        a(f'v_lshrrev_b32 v2, 4, v{V_LANE}')
        a('v_lshlrev_b32 v2, 10, v2')
        a(f'v_bfe_u32 v3, v{V_LANE}, 2, 2')
        a('v_lshl_add_u32 v2, v3, 7, v2')
        a(f'v_and_b32 v3, 3, v{V_LANE}')
        a('v_lshl_add_u32 v2, v3, 3, v2')
        a(f'v_add_u32 v2, {L_USTAGE}, v2')
        a('s_waitcnt vmcnt(0)')
        for cgp in range(4):
            for oq in range(2):
                r = B + 8 * cgp + 4 * oq
                a(f'ds_read_b64_tr_b16 {vr(r, 2)}, v2 offset:{oq * 4096 + cgp * 32}')
                a(f'ds_read_b64_tr_b16 {vr(r + 2, 2)}, v2 offset:{oq * 4096 + cgp * 32 + 512}')
            if cgp == 2:
                a('s_waitcnt lgkmcnt(4)')
        a(f'v_and_b32 v3, 15, v{V_LANE}')
        a(f'v_lshrrev_b32 v10, 4, v{V_LANE}')
        a('v_and_b32 v11, 7, v3')
        a('v_xor_b32 v10, v10, v11')
        a('v_lshlrev_b32 v10, 4, v10')
        a('v_lshl_add_u32 v3, v3, 7, v10')
        a(f'v_add_u32 v3, {L_USTAGE}, v3')
        a('v_xor_b32 v10, 64, v3')
        a('s_waitcnt lgkmcnt(0)')
        for cgp in range(4):
            a(f'ds_write_b128 v3, {vr(B + 8 * cgp, 4)} offset:{cgp * 2048}')
            a(f'ds_write_b128 v10, {vr(B + 8 * cgp + 4, 4)} offset:{cgp * 2048}')
        a(f'v_lshlrev_b32 v10, 4, v{V_LANE}')
        a(f'v_add_u32 v10, {L_USTAGE}, v10')
        a('s_waitcnt lgkmcnt(0)')
        for k in range(8):
            a(f'ds_read_b128 {vr(B + 4 * k, 4)}, v10 offset:{1024 * k}')
        a(f'v_lshrrev_b32 v2, 3, v{V_LANE}')
        a(f'v_and_b32 v3, 7, v{V_LANE}')
        a('v_xor_b32 v3, v3, v2')
        a('v_lshlrev_b32 v2, 12, v2')
        a('v_lshl_add_u32 v2, v3, 4, v2')
        a(f's_lshl_b32 s{S_T0}, s{S_XC}, 18')
        a(f's_lshl_b32 s{S_T1}, s{S_IDX}, 7')
        a(f's_add_u32 s{S_T0}, s{S_T0}, s{S_T1}')
        a(f's_add_u32 s{S_T0}, s{S_T0}, {WS_UT}')
        a('s_waitcnt lgkmcnt(0)')
        lines = []
        for k in range(8):
            lines.append(f'buffer_store_dwordx4 {vr(B + 4 * k, 4)}, v2, {WSR}, s{S_T0} offen {{M}}')
            lines.append(f's_add_u32 s{S_T0}, s{S_T0}, {8 * 4096}')
        self.store_mode(lines)

    def finish(self):
        a = self.a
        a.label('L_finish')
        if self.prof:
            a('s_waitcnt vmcnt(0)')
            self.stamp('end')
            a('s_waitcnt lgkmcnt(0)')
            a(f's_lshl_b32 s{S_T0}, s{S_WV}, 5')
            a(f's_lshl_b32 s{S_T1}, s2, 9')
            a(f's_add_u32 s{S_T0}, s{S_T0}, s{S_T1}')
            a(f's_add_u32 s{S_T0}, s{S_T0}, {WS_PROF}')
            for i in range(7):
                a(f'v_mov_b32 v{2 + i}, s{S_PROF + 2 * i}')
            a(f'v_mov_b32 v9, s{S_XCC}')
            a('v_mov_b32 v10, 0')
            a('s_mov_b64 exec, 1')
            a(f'buffer_store_dwordx4 v[2:5], v10, {WSR}, s{S_T0} offen')
            a(f'buffer_store_dwordx4 v[6:9], v10, {WSR}, s{S_T0} offen offset:16')
            a('s_mov_b64 exec, -1')
        a('s_cmp_lg_u32 s2, 0')
        a('s_cbranch_scc1 L_exit')
        a(f's_cmp_lg_u32 s{S_WV}, 0')
        a('s_cbranch_scc1 L_exit')
        a(f'v_mov_b32 v2, s{S_TOK}')
        a(f'v_mov_b32 v3, {WS_G}')
        a('s_mov_b64 exec, 1')
        a(f'buffer_store_dword v2, v3, {WSR}, 0 offen sc1')
        a.label('L_exit')
        a('s_endpgm')

    def build(self):
        import phases3
        a = self.a
        self.prologue()
        self.loader_waves()
        a.label('L_notloader')
        a('s_waitcnt lgkmcnt(0)')
        self.common_setup()
        a(f's_cmp_ge_u32 s{S_WV}, 14')
        a('s_cbranch_scc1 L_side')
        a(f's_cmp_ge_u32 s{S_WV}, 10')
        a('s_cbranch_scc1 L_kgen')
        self.gemm_waves()
        self.kgen_waves()
        self.side_waves()
        a.label('L_gap1_join')
        a('s_setprio 0')
        a('s_waitcnt lgkmcnt(0)')
        a('s_barrier')
        phases3.rest(self)
        self.finish()
        a.label('L_code_end')
        a('s_endpgm')
        return self.wrap()

    def wrap(self):
        head = open(os.path.join(os.path.dirname(os.path.abspath(__file__)), 'header.txt')).read()
        body = self.a.text()
        txt = head + f'; @launch grid=(256,1,1) block=(1024,1,1) lds={LDS_BYTES}\n'
        txt += f'.amdgcn_target "amdgcn-amd-amdhsa--gfx950"\n.text\n.globl {KERNEL}\n.p2align 8\n.type {KERNEL},@function\n{KERNEL}:\n'
        txt += body
        txt += f'''.section .rodata,"a"
.p2align 6
.amdhsa_kernel {KERNEL}
  .amdhsa_next_free_vgpr 128
  .amdhsa_next_free_sgpr 102
  .amdhsa_accum_offset 128
  .amdhsa_group_segment_fixed_size 0
  .amdhsa_kernarg_size 104
  .amdhsa_user_sgpr_count 2
  .amdhsa_user_sgpr_kernarg_segment_ptr 1
  .amdhsa_system_sgpr_workgroup_id_x 1
  .amdhsa_float_denorm_mode_32 3
.end_amdhsa_kernel
'''
        return txt, body


def main():
    import argparse
    ap = argparse.ArgumentParser()
    ap.add_argument('-o', default=f'cdna_kernels/{NAME}.s')
    ap.add_argument('--stop', default=None)
    ap.add_argument('--exp', default='')
    ap.add_argument('--prof', default='')
    ap.add_argument('--points', default='entry,gemm,attn0,attn1,conv,end')
    args = ap.parse_args()
    g = Gen(stop=args.stop, prof=args.prof, points=args.points, exp=args.exp)
    txt, body = g.build()
    probs = check_hazards(body)
    for p in probs:
        print('HAZARD', p)
    open(args.o, 'w').write(txt)
    n = sum(1 for l in body.split('\n') if l.startswith('  ') and not l.strip().startswith(';'))
    print(f'wrote {args.o}: {n} instructions, {len(probs)} hazard findings')
    return 1 if probs else 0


if __name__ == '__main__':
    sys.exit(main())
```

```python
from asmlib import vr
from gen2 import *

S_DSKV = 7


def toff(u):
    return (u >> 1) * 4096 + (u & 1) * 1024


def attn_setup(g):
    a = g.a
    g.stamp('attn0')
    a(f'v_lshlrev_b32 v{A_L16}, 4, v{V_LANE}')
    a(f'v_lshlrev_b32 v{A_PA}, 2, v{V_LANE}')
    a(f's_add_u32 s{S_T0}, s{S_INB}, {IB_KV}')
    a(f'v_add_u32 v{A_PA}, s{S_T0}, v{A_PA}')
    a(f's_and_b32 s{S_T0}, s{S_WV}, 7')
    a(f's_lshl_b32 s{S_T0}, s{S_T0}, 10')
    a(f's_add_u32 s{S_T0}, s{S_T0}, {L_QS}')
    a(f'v_add_u32 v2, s{S_T0}, v{A_L16}')
    a(f's_lshr_b32 s{S_T1}, s{S_WV}, 3')
    a(f's_lshl_b32 s{S_T1}, s{S_T1}, 11')
    a(f'v_add_u32 v{A_KA}, s{S_T1}, v{A_L16}')
    a(f'ds_read_b128 {vr(A_Q, 4)}, v2')
    a(f'ds_read_b128 {vr(A_K[0], 4)}, v{A_KA}')
    a(f'v_mov_b32 v7, {M_MODE}')
    a('ds_read_b32 v7, v7')
    a(f's_lshl_b32 s{S_T0}, s{S_XC}, 3')
    a(f's_lshl_b64 s[{S_IGN}:{S_IGN + 1}], 0xff, s{S_T0}')
    a(f'v_lshrrev_b32 v2, 5, v{V_LANE}')
    a('v_lshlrev_b32 v2, 8, v2')
    a(f'v_and_b32 v3, 15, v{V_LANE}')
    a('v_lshl_add_u32 v2, v3, 4, v2')
    a(f's_add_u32 s{S_T1}, s{S_T1}, {L_V}')
    a(f'v_add_u32 v{A_VA}, s{S_T1}, v2')
    a(f'v_and_b32 v2, 27, v{V_LANE}')
    a('v_cmp_eq_u32 vcc, 16, v2')
    a('v_mov_b32 v3, 0x3f803f80')
    a('s_nop 0')
    a('v_cndmask_b32 v2, 0, v3, vcc')
    for i in range(16):
        a(f'v_mov_b32 v{A_V[0] + i}, v2')
    a(f's_mov_b64 exec, s[{S_MASK}:{S_MASK + 1}]')
    a(f'ds_read_b128 {vr(A_V[0], 4)}, v{A_VA}')
    a(f'ds_read_b128 {vr(A_V[0] + 4, 4)}, v{A_VA} offset:512')
    a('s_mov_b64 exec, -1')
    for i in range(16):
        a(f'v_mov_b32 v{A_O + i}, 0')
    for i in range(8):
        a(f'v_mov_b32 v{A_P + i}, 0')
    a('s_waitcnt lgkmcnt(2)')
    a(f'v_readfirstlane_b32 s{S_MODE}, v7')
    a(f'v_mfma_f32_32x32x16_bf16 {vr(A_S[0], 16)}, {vr(A_K[0], 4)}, {vr(A_Q, 4)}, 0')
    a('s_nop 7')
    a('s_nop 3')


def attn_tile(g, u, top=None, mid=None):
    a = g.a
    cur = u & 1
    nxt = cur ^ 1
    S, P = A_S[cur], A_P

    def ex(i):
        a(f'v_exp_f32 v{S + i}, v{S + i}')

    def cv(k):
        a(f'v_cvt_pk_bf16_f32 v{P + k}, v{S + 2 * k}, v{S + 2 * k + 1}')

    if top:
        top()
    a(f'ds_read_b128 {vr(A_K[nxt], 4)}, v{A_KA} offset:{toff(u + 1)}')
    ex(0); ex(1); ex(2); cv(0); ex(3)
    a(f'v_mfma_f32_32x32x16_bf16 {vr(A_O, 16)}, {vr(A_V[nxt] + 4, 4)}, {vr(P + 4, 4)}, {vr(A_O, 16)}')
    a(f's_mov_b64 exec, s[{S_MASK}:{S_MASK + 1}]')
    a(f'ds_read_b128 {vr(A_V[nxt], 4)}, v{A_VA} offset:{toff(u + 1)}')
    a(f'ds_read_b128 {vr(A_V[nxt] + 4, 4)}, v{A_VA} offset:{toff(u + 1) + 512}')
    a('s_mov_b64 exec, -1')
    ex(4); cv(1); ex(5); ex(6); cv(2)
    a('s_waitcnt lgkmcnt(2)')
    a(f'v_mfma_f32_32x32x16_bf16 {vr(A_S[nxt], 16)}, {vr(A_K[nxt], 4)}, {vr(A_Q, 4)}, 0')
    ex(7); ex(8); cv(3); ex(9); ex(10)
    a(f'v_mfma_f32_32x32x16_bf16 {vr(A_O, 16)}, {vr(A_V[cur], 4)}, {vr(P, 4)}, {vr(A_O, 16)}')
    if mid:
        mid()
    cv(4); ex(11); ex(12); cv(5); ex(13); ex(14); ex(15); cv(6); cv(7)


def dma_waves_only(g, body, name):
    a = g.a
    a(f's_and_b32 s{S_T0}, s{S_WV}, 12')
    a(f's_cmp_eq_u32 s{S_T0}, 4')
    a(f's_cbranch_scc0 {name}')
    body()
    a.label(name)


def attn_first_trip(g):
    a = g.a

    def blocks(*js):
        def f():
            for j in js:
                g.kv_dma(j, WS_KR, WS_VR)
        return f

    def first():
        g.ws_spin(A_PA, A_PV, 64, 'rem', preissued=True, ignore=S_IGN)
        g.stamp('rem_ok')
        blocks(2, 3)()

    def remflags():
        a(f's_cmp_lt_u32 s{S_WV}, 4')
        a('s_cbranch_scc0 L_at_norf')
        a(f'v_and_b32 v2, 1, v{V_LANE}')
        a('v_lshlrev_b32 v2, 3, v2')
        a(f'v_lshrrev_b32 v3, 1, v{V_LANE}')
        a('v_add_u32 v2, v2, v3')
        a('v_lshlrev_b32 v2, 11, v2')
        a(f'v_mov_b32 v3, s{S_TOK}')
        a('s_waitcnt vmcnt(0)')
        g.stamp('st_rem')
        a('s_mov_b64 exec, 0xffff')
        a(f'buffer_store_dword v3, v2, {WSR}, s{S_A} offen sc1')
        a('s_mov_b64 exec, -1')
        a.label('L_at_norf')

    def uload():
        a(f's_cmp_eq_u32 s{S_WV}, 14')
        a('s_cbranch_scc0 L_at_noul')
        g.u_load()
        a.label('L_at_noul')

    def barrier(n, name):
        def f():
            g.stamp(name + 'a')
            a(f's_waitcnt vmcnt({n})')
            a('s_barrier')
            g.stamp(name + 'b')
        return f

    mids = {0: lambda: (remflags(), dma_waves_only(g, first, 'L_at_d0')),
            1: lambda: dma_waves_only(g, blocks(4, 5), 'L_at_d1'),
            2: lambda: dma_waves_only(g, blocks(6, 7), 'L_at_d2'),
            3: lambda: dma_waves_only(g, blocks(8, 9), 'L_at_d3'),
            4: lambda: (dma_waves_only(g, blocks(10, 11), 'L_at_d4'), uload()),
            5: lambda: dma_waves_only(g, blocks(12, 13), 'L_at_d5'),
            6: lambda: dma_waves_only(g, blocks(14, 15), 'L_at_d6')}
    tops = {3: barrier(8, 'r1'), 7: barrier(12, 'r2')}
    for u in range(8):
        attn_tile(g, u, tops.get(u), mids.get(u))
    a(f'v_add_u32 v{A_KA}, 16384, v{A_KA}')
    a(f'v_add_u32 v{A_VA}, 16384, v{A_VA}')


def attn_loop(g):
    a = g.a
    a(f's_mov_b32 s{S_J}, 1')
    a('.p2align 6')
    a.label('L_at_loop')
    a('s_branch L_at_hook')
    a.label('L_at_back')

    def mid():
        a(f's_cmp_eq_u32 s{S_J}, 3')
        a('s_cbranch_scc1 L_at_mid')
        a.label('L_at_midback')
    for u in range(8):
        attn_tile(g, u, mid if u == 4 else None)
    a(f'v_add_u32 v{A_KA}, 16384, v{A_KA}')
    a(f'v_add_u32 v{A_VA}, 16384, v{A_VA}')
    a(f's_add_u32 s{S_J}, s{S_J}, 1')
    a(f's_cmp_lt_u32 s{S_J}, 4')
    a('s_cbranch_scc1 L_at_loop')
    a(f'v_mfma_f32_32x32x16_bf16 {vr(A_O, 16)}, {vr(A_V[1] + 4, 4)}, {vr(A_P + 4, 4)}, {vr(A_O, 16)}')
    a('s_waitcnt lgkmcnt(0)')


def attn_hooks(g):
    a = g.a
    a.label('L_at_hook')
    a(f's_cmp_eq_u32 s{S_J}, 1')
    a('s_cbranch_scc0 L_at_hook2')
    if 'wb1' in g.exp:
        a(f's_cmp_eq_u32 s{S_WV}, 15')
        a('s_cbranch_scc0 L_at_nowb1')
        a(f's_cmp_eq_u32 s{S_IDX}, 0')
        a('s_cbranch_scc0 L_at_nowb1')
        a('buffer_wbl2 sc1')
        a.label('L_at_nowb1')
    a(f's_cmp_eq_u32 s{S_WV}, 14')
    a('s_cbranch_scc0 L_at_back')
    g.u_transpose()
    a('s_branch L_at_back')
    a.label('L_at_hook2')
    a(f's_cmp_eq_u32 s{S_J}, 2')
    a('s_cbranch_scc0 L_at_hook3')
    a('s_waitcnt vmcnt(0)')
    a('s_barrier')
    a(f's_cmp_eq_u32 s{S_WV}, 14')
    a('s_cbranch_scc0 L_at_back')
    a(f's_lshl_b32 s{S_T0}, s{S_XC}, 11')
    a(f's_lshl_b32 s{S_T1}, s{S_IDX}, 2')
    a(f's_add_u32 s{S_T0}, s{S_T0}, s{S_T1}')
    a(f's_add_u32 s{S_T0}, s{S_T0}, {WS_INBOX + IB_U}')
    a(f'v_lshlrev_b32 v2, 14, v{V_LANE}')
    a(f'v_mov_b32 v3, s{S_TOK}')
    g.lanes(32)
    g.store_mode([f'buffer_store_dword v3, v2, {WSR}, s{S_T0} offen {{M}}'])
    g.lanes(64)
    a('s_branch L_at_back')
    a.label('L_at_hook3')
    a('s_barrier')
    a(f'v_lshrrev_b32 v2, 2, v{V_LANE}')
    a('v_and_b32 v2, 7, v2')
    a('v_lshlrev_b32 v2, 10, v2')
    a(f'v_lshrrev_b32 v3, 5, v{V_LANE}')
    a('v_lshl_add_u32 v2, v3, 6, v2')
    a(f'v_and_b32 v3, 3, v{V_LANE}')
    a('v_lshl_add_u32 v2, v3, 4, v2')
    a(f's_lshl_b32 s{S_T0}, s{S_WV}, 15')
    a(f's_lshr_b32 s{S_T1}, s{S_IDX}, 2')
    a(f's_lshl_b32 s{S_T1}, s{S_T1}, 7')
    a(f's_add_u32 s{S_T0}, s{S_T0}, s{S_T1}')
    a(f's_lshl_b32 s{S_T2}, s{S_WV}, 12')
    a(f's_cmp_ge_u32 s{S_WV}, 8')
    a(f's_cselect_b32 s{S_T3}, 32768, 0')
    a(f's_add_u32 s{S_T2}, s{S_T2}, s{S_T3}')
    for i in range(4):
        a(f's_add_u32 m0, s{S_T2}, {1024 * i}')
        a(f's_add_u32 s{S_T1}, s{S_T0}, {8192 * i}')
        a(f'buffer_load_dwordx4 v2, s[{R_WO}:{R_WO + 3}], s{S_T1} offen lds')
    a(f's_cmp_lt_u32 s{S_WV}, 8')
    a('s_cbranch_scc1 L_at_back')
    a(f'v_lshlrev_b32 v{A_PA}, 2, v{V_LANE}')
    a(f's_add_u32 s{S_T0}, s{S_INB}, {IB_U}')
    a(f'v_add_u32 v{A_PA}, s{S_T0}, v{A_PA}')
    g.lanes(32)
    a(f'buffer_load_dword v{A_PV}, v{A_PA}, {WSR}, 0 offen sc1')
    g.lanes(64)
    a('s_branch L_at_back')
    a.label('L_at_mid')
    a(f's_cmp_lt_u32 s{S_WV}, 8')
    a('s_cbranch_scc1 L_at_midback')
    g.ws_spin(A_PA, A_PV, 32, 'uf', preissued=True)
    a(f's_lshl_b32 s{S_T0}, s{S_XC}, 18')
    a(f's_lshl_b32 s{S_T1}, s{S_IDX}, 13')
    a(f's_add_u32 s{S_T0}, s{S_T0}, s{S_T1}')
    a(f's_and_b32 s{S_T2}, s{S_WV}, 7')
    a(f's_lshl_b32 s{S_T1}, s{S_T2}, 10')
    a(f's_add_u32 s{S_T0}, s{S_T0}, s{S_T1}')
    a(f's_add_u32 s{S_T0}, s{S_T0}, {WS_UT}')
    a(f's_lshr_b32 s{S_T1}, s{S_T2}, 2')
    a(f's_mul_i32 s{S_T1}, s{S_T1}, {UL_SZ}')
    a(f's_and_b32 s{S_T2}, s{S_WV}, 3')
    a(f's_lshl_b32 s{S_T3}, s{S_T2}, 10')
    a(f's_add_u32 s{S_T3}, s{S_T3}, s{S_T1}')
    a(f's_add_u32 m0, s{S_T3}, {L_UL + 512}')
    a('s_nop 0')
    a(f'buffer_load_dwordx4 v{A_L16}, {WSR}, s{S_T0} offen sc1 lds')
    a(f's_cmp_eq_u32 s{S_T2}, 0')
    a('s_cbranch_scc0 L_at_midback')
    a(f's_add_u32 s{S_T1}, s{S_T1}, {L_UL}')
    a(f'v_lshlrev_b32 v2, 3, v{V_LANE}')
    a(f'v_add_u32 v2, s{S_T1}, v2')
    a('v_mov_b32 v98, 0')
    a('v_mov_b32 v99, 0')
    a('ds_write_b64 v2, v[98:99]')
    a('s_waitcnt lgkmcnt(0)')
    a('s_branch L_at_midback')


def attn_finish(g):
    a = g.a
    a(f's_and_b32 s{S_T0}, s{S_WV}, 3')
    a(f's_mul_i32 s{S_T0}, s{S_T0}, {PART_SZ}')
    a(f's_bfe_u32 s{S_T1}, s{S_WV}, 0x10002')
    a(f's_lshl_b32 s{S_T1}, s{S_T1}, 16')
    a(f's_add_u32 s{S_T0}, s{S_T0}, s{S_T1}')
    a(f's_add_u32 s{S_T0}, s{S_T0}, {L_HALF[0]}')
    a(f'v_add_u32 v2, s{S_T0}, v{A_L16}')
    a(f'v_lshlrev_b32 v3, 2, v{V_LANE}')
    a(f'v_add_u32 v3, s{S_T0}, v3')
    a(f's_cmp_lt_u32 s{S_WV}, 8')
    a('s_cbranch_scc1 L_at_recv')
    a('s_nop 1')
    a(f'ds_write_b128 v2, {vr(A_O, 4)}')
    a(f'ds_write_b128 v2, {vr(A_O + 4, 4)} offset:1024')
    a(f'ds_write_b32 v3, v{A_O + 8} offset:2048')
    a('s_waitcnt vmcnt(0) lgkmcnt(0)')
    a('s_barrier')
    g.stamp('attn1')
    a('s_branch L_conv')
    a.label('L_at_recv')
    a('s_waitcnt vmcnt(0)')
    a('s_barrier')
    g.stamp('attn1')
    a(f'ds_read_b128 {vr(A_S[0], 4)}, v2')
    a(f'ds_read_b128 {vr(A_S[0] + 4, 4)}, v2 offset:1024')
    a(f'ds_read_b32 v{A_S[0] + 8}, v3 offset:2048')
    a('s_waitcnt lgkmcnt(0)')
    for i in range(9):
        a(f'v_add_f32 v{A_O + i}, v{A_O + i}, v{A_S[0] + i}')
    a(f's_mov_b32 s{S_J}, 0')
    a.label('L_at_norm')
    a(f'v_rcp_f32 v2, v{A_O + 8}')
    a(f's_mov_b32 s{S_T6}, {fbits(2.0 ** -40)}')
    a(f's_mov_b32 s{S_T7}, {fbits(2.0 ** 100)}')
    for i in range(8):
        a(f'v_mul_f32 v{A_P + i}, v{A_O + i}, v2')
    a(f'v_add_f32 v3, |v{A_P}|, |v{A_P + 1}|')
    for i in range(2, 8):
        a(f'v_add_f32 v3, v3, |v{A_P + i}|')
    a(f'v_cmp_nle_f32 vcc, s{S_T6}, v{A_O + 8}')
    a(f'v_cmp_nge_f32 s[{S_T0}:{S_T0 + 1}], s{S_T7}, v{A_O + 8}')
    a(f'v_cmp_nge_f32 s[{S_T2}:{S_T2 + 1}], s{S_T7}, v3')
    a('s_nop 1')
    a(f's_or_b64 vcc, vcc, s[{S_T0}:{S_T0 + 1}]')
    a(f's_or_b64 vcc, vcc, s[{S_T2}:{S_T2 + 1}]')
    a(f's_cmp_eq_u32 s{S_J}, 1')
    a('s_cbranch_scc1 L_at_normok')
    a('s_cbranch_vccnz L_at_fallback')
    a.label('L_at_normok')
    for k in range(4):
        a(f'v_cvt_pk_bf16_f32 v{A_P + k}, v{A_P + 2 * k}, v{A_P + 2 * k + 1}')
    a(f's_lshl_b32 s{S_T0}, s{S_XC}, 3')
    a(f's_add_u32 s{S_T0}, s{S_T0}, s{S_WV}')
    a(f's_lshl_b32 s{S_T0}, s{S_T0}, 5')
    a(f's_add_u32 s{S_T0}, s{S_T0}, s{S_H}')
    a(f's_lshl_b32 s{S_T0}, s{S_T0}, 10')
    a(f's_add_u32 s{S_T0}, s{S_T0}, {WS_OF}')
    g.store_mode([f'buffer_store_dwordx4 {vr(A_P, 4)}, v{A_L16}, {WSR}, s{S_T0} offen {{M}}'])
    a('s_barrier')
    a(f's_lshr_b32 s{S_T0}, s{S_WV}, 1')
    a(f's_lshl_b32 s{S_T0}, s{S_T0}, 14')
    a(f's_lshl_b32 s{S_T1}, s{S_XC}, 11')
    a(f's_add_u32 s{S_T0}, s{S_T0}, s{S_T1}')
    a(f's_lshl_b32 s{S_T1}, s{S_H}, 3')
    a(f's_add_u32 s{S_T0}, s{S_T0}, s{S_T1}')
    a(f's_and_b32 s{S_T1}, s{S_WV}, 1')
    a(f's_lshl_b32 s{S_T1}, s{S_T1}, 2')
    a(f's_add_u32 s{S_T0}, s{S_T0}, s{S_T1}')
    a(f's_add_u32 s{S_T0}, s{S_T0}, {WS_INBOX + IB_O}')
    a(f'v_lshlrev_b32 v6, 16, v{V_LANE}')
    a(f'v_mov_b32 v7, s{S_TOK}')
    a('s_waitcnt vmcnt(0)')
    g.lanes(8)
    g.store_mode([f'buffer_store_dword v7, v6, {WSR}, s{S_T0} offen {{M}}'])
    g.lanes(64)
    g.stamp('oflag')
    a('s_barrier')
    a(f's_cmp_eq_u32 s{S_WV}, 0')
    a('s_cbranch_scc0 L_e3')
    a(f'v_lshlrev_b32 v2, 2, v{V_LANE}')
    a(f's_add_u32 s{S_T0}, s{S_INB}, {IB_O}')
    a(f'v_add_u32 v2, s{S_T0}, v2')
    g.ws_spin(2, 3, 64, 'of')
    g.stamp('of_ok')
    a('s_branch L_e3')


def attn_fallback(g):
    a = g.a
    S, C = A_S[0], A_S[1]

    def src():
        a(f's_lshr_b32 s{S_T0}, s{S_K}, 2')
        a(f's_lshl_b32 s{S_T1}, s{S_XC}, 1')
        a(f's_add_u32 s{S_T1}, s{S_T1}, s{S_T0}')
        a(f's_and_b32 s{S_T1}, s{S_T1}, 15')
        a(f's_lshl_b32 s{S_T1}, s{S_T1}, 12')
        a(f's_and_b32 s{S_T2}, s{S_K}, 3')
        a(f's_lshl_b32 s{S_T2}, s{S_T2}, 10')
        a(f's_add_u32 s{S_T1}, s{S_T1}, s{S_T2}')
        a(f's_lshl_b32 s{S_T2}, s{S_H}, 16')
        a(f's_add_u32 s{S_T1}, s{S_T1}, s{S_T2}')
        a(f's_cmp_lt_u32 s{S_T0}, 2')
        a(f's_cselect_b32 s{S_T2}, {WS_KL - WS_KR}, 0')
        a(f's_add_u32 s{S_T1}, s{S_T1}, s{S_T2}')
        a(f's_add_u32 s{S_T3}, s{S_T1}, {WS_VR}')
        a(f's_add_u32 s{S_T1}, s{S_T1}, {WS_KR}')

    assert WS_KL - WS_KR == WS_VL - WS_VR
    a.label('L_at_fallback')
    a(f'v_mov_b32 v2, {fbits(-3.0e38)}')
    a(f's_mov_b32 s{S_K}, 0')
    a.label('L_fb_max')
    src()
    a(f'buffer_load_dwordx4 {vr(A_K[0], 4)}, v{A_L16}, {WSR}, s{S_T1} offen sc1')
    a('s_waitcnt vmcnt(0)')
    a(f'v_mfma_f32_32x32x16_bf16 {vr(S, 16)}, {vr(A_K[0], 4)}, {vr(A_Q, 4)}, 0')
    a('s_nop 7')
    a('s_nop 3')
    for i in range(0, 16, 2):
        a(f'v_max3_f32 v2, v2, v{S + i}, v{S + i + 1}')
    a(f's_add_u32 s{S_K}, s{S_K}, 1')
    a(f's_cmp_lt_u32 s{S_K}, 64')
    a('s_cbranch_scc1 L_fb_max')
    a('v_mov_b32 v3, v2')
    a('s_nop 1')
    a('v_permlane32_swap_b32 v2, v3')
    a('s_nop 1')
    a('v_max_f32 v2, v2, v3')
    for i in range(16):
        a(f'v_sub_f32 v{C + i}, 0, v2')
    for i in range(16):
        a(f'v_mov_b32 v{A_O + i}, 0')
    a(f'v_lshrrev_b32 v2, 5, v{V_LANE}')
    a('v_lshlrev_b32 v2, 8, v2')
    a(f'v_and_b32 v3, 15, v{V_LANE}')
    a(f'v_lshl_add_u32 v{A_VA}, v3, 4, v2')
    a(f's_mov_b32 s{S_K}, 0')
    a.label('L_fb_sum')
    src()
    a(f'buffer_load_dwordx4 {vr(A_K[0], 4)}, v{A_L16}, {WSR}, s{S_T1} offen sc1')
    a(f's_mov_b64 exec, s[{S_MASK}:{S_MASK + 1}]')
    a(f'buffer_load_dwordx4 {vr(A_V[0], 4)}, v{A_VA}, {WSR}, s{S_T3} offen sc1')
    a(f'buffer_load_dwordx4 {vr(A_V[0] + 4, 4)}, v{A_VA}, {WSR}, s{S_T3} offen offset:512 sc1')
    a('s_mov_b64 exec, -1')
    a('s_waitcnt vmcnt(0)')
    a(f'v_mfma_f32_32x32x16_bf16 {vr(S, 16)}, {vr(A_K[0], 4)}, {vr(A_Q, 4)}, {vr(C, 16)}')
    a('s_nop 7')
    a('s_nop 3')
    for i in range(16):
        a(f'v_exp_f32 v{S + i}, v{S + i}')
    a('s_nop 0')
    for k in range(8):
        a(f'v_cvt_pk_bf16_f32 v{A_P + k}, v{S + 2 * k}, v{S + 2 * k + 1}')
    a('s_nop 1')
    a(f'v_mfma_f32_32x32x16_bf16 {vr(A_O, 16)}, {vr(A_V[0], 4)}, {vr(A_P, 4)}, {vr(A_O, 16)}')
    a(f'v_mfma_f32_32x32x16_bf16 {vr(A_O, 16)}, {vr(A_V[0] + 4, 4)}, {vr(A_P + 4, 4)}, {vr(A_O, 16)}')
    a(f's_add_u32 s{S_K}, s{S_K}, 1')
    a(f's_cmp_lt_u32 s{S_K}, 64')
    a('s_cbranch_scc1 L_fb_sum')
    a(f's_mov_b32 s{S_J}, 1')
    a('s_nop 7')
    a('s_nop 3')
    a('s_branch L_at_norm')


def conv(g):
    a = g.a
    a.label('L_conv')
    vA, vB, vT = 2, 3, 4
    ACC, AF, BF = 8, 40, 72
    a(f's_lshl_b32 s{S_T0}, s{S_XC}, 6')
    a(f's_lshl_b32 s{S_T1}, s{S_IDX}, 1')
    a(f's_add_u32 s{S_T0}, s{S_T0}, s{S_T1}')
    a(f's_lshl_b32 s{S_T0}, s{S_T0}, 1')
    a(f's_load_dword s{S_DSKV}, s[{S_DSK}:{S_DSK + 1}], s{S_T0}')
    a(f's_bfe_u32 s{S_A}, s{S_WV}, 0x10002')
    a(f's_and_b32 s{S_B}, s{S_WV}, 3')
    a(f's_mul_i32 s{S_T0}, s{S_A}, {UL_SZ}')
    a(f's_lshl_b32 s{S_T1}, s{S_B}, 7')
    a(f's_sub_u32 s{S_T0}, s{S_T0}, s{S_T1}')
    a(f's_add_u32 s{S_T0}, s{S_T0}, {L_UL + 480}')
    a(f'v_and_b32 v5, 15, v{V_LANE}')
    a(f'v_lshrrev_b32 v6, 4, v{V_LANE}')
    a('v_lshlrev_b32 v7, 5, v5')
    a('v_lshl_add_u32 v7, v6, 4, v7')
    a(f'v_add_u32 v{vB}, s{S_T0}, v7')
    a(f's_mul_i32 s{S_T0}, s{S_A}, {R_SZ}')
    a(f's_sub_u32 s{S_T0}, s{S_T0}, s{S_T1}')
    a(f's_add_u32 s{S_T0}, s{S_T0}, {L_R + 4 * 1015}')
    a('v_lshrrev_b32 v7, 1, v5')
    a('v_lshlrev_b32 v7, 2, v7')
    a('v_lshlrev_b32 v6, 4, v6')
    a('v_sub_u32 v6, v6, v7')
    a('v_and_b32 v5, 1, v5')
    a('v_cmp_eq_u32 vcc, 0, v5')
    a(f'v_mov_b32 v7, {R_O}')
    a('s_nop 0')
    a('v_cndmask_b32 v5, 0, v7, vcc')
    a('v_add_u32 v6, v6, v5')
    a(f'v_add_u32 v{vA}, s{S_T0}, v6')

    def one_class(first):
        q = LdsQueue()

        def rd_b(i):
            a(f'ds_read_b128 {vr(BF + 4 * i, 4)}, v{vB} offset:{512 * i}')
            q.push(f'b{i}')

        def rd_a(j):
            if j % 2 == 0:
                a(f'v_subrev_u32 v{vT + (j // 2) % 2}, {512 * (j + 1)}, v{vA}')
            base = vT + (j // 2) % 2
            o = 128 if j % 2 == 0 else 0
            a(f'ds_read2_b32 {vr(AF + 4 * j, 2)}, v{base} offset0:{o} offset1:{o + 1}')
            a(f'ds_read2_b32 {vr(AF + 4 * j + 2, 2)}, v{base} offset0:{o + 2} offset1:{o + 3}')
            q.push(f'a{j}')
            q.push(f'a{j}')

        rd_a(0)
        for i in range(8):
            rd_b(i)
        rd_a(1)
        for j in range(8):
            for i in range(8 - j):
                if j == 0:
                    q.wait(a, f'b{i}')
                elif i == 0:
                    q.wait(a, f'a{j}')
                t = i + j
                c = '0' if (first and j == 0) else vr(ACC + 4 * t, 4)
                a(f'v_mfma_f32_16x16x32_bf16 {vr(ACC + 4 * t, 4)}, {vr(AF + 4 * j, 4)}, {vr(BF + 4 * i, 4)}, {c}')
                if j == 0 and i in (1, 3, 5):
                    rd_a(2 + (i - 1) // 2)
                if j == 1 and i in (0, 2, 4):
                    rd_a(5 + i // 2)

    one_class(True)
    a(f'v_subrev_u32 v{vA}, 64, v{vA}')
    a(f'v_subrev_u32 v{vB}, 64, v{vB}')
    a('s_barrier')
    one_class(False)
    g.stamp('cv_mf')
    a(f'v_lshlrev_b32 v5, 4, v{V_LANE}')
    a(f's_lshl_b32 s{S_T2}, s{S_A}, 16')
    a(f's_add_u32 s{S_T2}, s{S_T2}, {L_HALF[0]}')
    a(f's_lshl_b32 s{S_T0}, s{S_B}, 13')
    a(f's_add_u32 s{S_T0}, s{S_T0}, s{S_T2}')
    a(f'v_add_u32 v6, s{S_T0}, v5')
    a('s_waitcnt lgkmcnt(0)')
    for t in range(8):
        a(f'ds_write_b128 v6, {vr(ACC + 4 * t, 4)} offset:{1024 * t}')
    a('s_waitcnt lgkmcnt(0)')
    a('s_barrier')
    a(f's_lshl_b32 s{S_T1}, s{S_B}, 11')
    a(f's_add_u32 s{S_T0}, s{S_T2}, s{S_T1}')
    a(f'v_add_u32 v6, s{S_T0}, v5')
    for s in range(4):
        for tt in range(2):
            a(f'ds_read_b128 {vr(40 + 16 * tt + 4 * s, 4)}, v6 offset:{8192 * s + 1024 * tt}')
    a(f's_mul_i32 s{S_T0}, s{S_A}, {UL_SZ}')
    a(f's_lshl_b32 s{S_T1}, s{S_B}, 10')
    a(f's_add_u32 s{S_T0}, s{S_T0}, s{S_T1}')
    a(f's_add_u32 s{S_T0}, s{S_T0}, {L_UL + 512}')
    a(f'v_and_b32 v7, 15, v{V_LANE}')
    a('v_lshlrev_b32 v7, 5, v7')
    a(f'v_lshrrev_b32 v8, 4, v{V_LANE}')
    a('v_lshl_add_u32 v7, v8, 3, v7')
    a(f'v_add_u32 v7, s{S_T0}, v7')
    a('ds_read_b64 v[72:73], v7')
    a('ds_read_b64 v[74:75], v7 offset:512')
    a('s_waitcnt lgkmcnt(0)')
    a(f's_lshl_b32 s{S_T1}, s{S_A}, 4')
    a(f's_lshr_b32 s{S_DSKV}, s{S_DSKV}, s{S_T1}')
    a(f's_lshl_b32 s{S_DSKV}, s{S_DSKV}, 16')
    for tt in range(2):
        b = 40 + 16 * tt
        for r in range(4):
            a(f'v_add_f32 v{b + r}, v{b + r}, v{b + 4 + r}')
            a(f'v_add_f32 v{b + 8 + r}, v{b + 8 + r}, v{b + 12 + r}')
        for r in range(4):
            a(f'v_add_f32 v{b + r}, v{b + r}, v{b + 8 + r}')
        a(f'v_cvt_pk_bf16_f32 v{b + 4}, v{b}, v{b + 1}')
        a(f'v_cvt_pk_bf16_f32 v{b + 5}, v{b + 2}, v{b + 3}')
        u = 72 + 2 * tt
        a(f'v_lshlrev_b32 v{b + 8}, 16, v{u}')
        a(f'v_and_b32 v{b + 9}, 0xffff0000, v{u}')
        a(f'v_lshlrev_b32 v{b + 10}, 16, v{u + 1}')
        a(f'v_and_b32 v{b + 11}, 0xffff0000, v{u + 1}')
        for r in range(4):
            a(f'v_mul_f32 v{b + 8 + r}, s{S_DSKV}, v{b + 8 + r}')
        a(f'v_cvt_pk_bf16_f32 v{b + 6}, v{b + 8}, v{b + 9}')
        a(f'v_cvt_pk_bf16_f32 v{b + 7}, v{b + 10}, v{b + 11}')
        for k in range(2):
            a(f'v_lshlrev_b32 v{b + 8}, 16, v{b + 4 + k}')
            a(f'v_and_b32 v{b + 9}, 0xffff0000, v{b + 4 + k}')
            a(f'v_lshlrev_b32 v{b + 10}, 16, v{b + 6 + k}')
            a(f'v_and_b32 v{b + 11}, 0xffff0000, v{b + 6 + k}')
            a(f'v_add_f32 v{b + 8}, v{b + 8}, v{b + 10}')
            a(f'v_add_f32 v{b + 9}, v{b + 9}, v{b + 11}')
            a(f'v_cvt_pk_bf16_f32 v{76 + 2 * tt + k}, v{b + 8}, v{b + 9}')
    a(f's_lshl_b32 s{S_T0}, s{S_XC}, 6')
    a(f's_lshl_b32 s{S_T1}, s{S_IDX}, 1')
    a(f's_add_u32 s{S_T0}, s{S_T0}, s{S_T1}')
    a(f's_add_u32 s{S_T0}, s{S_T0}, s{S_A}')
    a(f's_lshl_b32 s{S_T0}, s{S_T0}, 2')
    a(f's_add_u32 s{S_T0}, s{S_T0}, s{S_B}')
    a(f's_lshl_b32 s{S_T0}, s{S_T0}, 10')
    a(f's_add_u32 s{S_T0}, s{S_T0}, {WS_YT}')
    g.store_mode([f'buffer_store_dwordx4 v[76:79], v5, {WSR}, s{S_T0} offen {{M}}'])
    a(f's_lshl_b32 s{S_T0}, s{S_B}, 17')
    a(f's_lshl_b32 s{S_T1}, s{S_XC}, 11')
    a(f's_add_u32 s{S_T0}, s{S_T0}, s{S_T1}')
    a(f's_lshl_b32 s{S_T1}, s{S_IDX}, 3')
    a(f's_add_u32 s{S_T0}, s{S_T0}, s{S_T1}')
    a(f's_lshl_b32 s{S_T1}, s{S_A}, 2')
    a(f's_add_u32 s{S_T0}, s{S_T0}, s{S_T1}')
    a(f's_add_u32 s{S_T0}, s{S_T0}, {WS_INBOX + IB_Y}')
    a(f'v_lshlrev_b32 v6, 14, v{V_LANE}')
    a(f'v_mov_b32 v7, s{S_TOK}')
    a('s_waitcnt vmcnt(0)')
    g.lanes(8)
    g.store_mode([f'buffer_store_dword v7, v6, {WSR}, s{S_T0} offen {{M}}'])
    g.lanes(64)
    g.stamp('conv')


def outproj(g):
    a = g.a
    a.label('L_e3')
    a('s_barrier')
    a(f's_and_b32 s{S_T0}, s{S_IDX}, 3')
    a(f's_lshl_b32 s{S_T0}, s{S_T0}, 1')
    a(f's_lshl_b32 s{S_T1}, s{S_XC}, 3')
    a(f's_add_u32 s{S_T0}, s{S_T0}, s{S_T1}')
    a(f's_lshl_b32 s{S_T0}, s{S_T0}, 15')
    a(f's_lshl_b32 s{S_T2}, s{S_WV}, 12')
    a(f's_add_u32 s{S_T0}, s{S_T0}, s{S_T2}')
    a(f's_add_u32 s{S_T0}, s{S_T0}, {WS_OF}')
    a(f's_cmp_ge_u32 s{S_WV}, 8')
    a(f's_cselect_b32 s{S_T3}, 32768, 0')
    a(f's_add_u32 s{S_T2}, s{S_T2}, s{S_T3}')
    a(f'v_lshlrev_b32 v5, 4, v{V_LANE}')
    for i in range(4):
        a(f's_add_u32 m0, s{S_T2}, {L_HALF[0] + i * 1024}')
        a(f's_add_u32 s{S_T1}, s{S_T0}, {i * 1024}')
        a(f'buffer_load_dwordx4 v5, {WSR}, s{S_T1} offen sc1 lds')
    a(f's_cmp_ge_u32 s{S_WV}, 4')
    a('s_cbranch_scc1 L_ys')
    vW, vW2, vO, ACC, WF, OF = 6, 8, 7, 16, 32, 64
    a(f'v_lshrrev_b32 v2, 5, v{V_LANE}')
    a(f'v_bfe_u32 v3, v{V_LANE}, 2, 2')
    a('v_lshl_add_u32 v2, v2, 2, v3')
    a('v_lshlrev_b32 v2, 6, v2')
    a(f'v_bfe_u32 v3, v{V_LANE}, 4, 1')
    a('v_lshl_add_u32 v2, v3, 5, v2')
    a(f'v_and_b32 v3, 3, v{V_LANE}')
    a('v_lshl_add_u32 v2, v3, 3, v2')
    a(f's_lshr_b32 s{S_T0}, s{S_WV}, 1')
    a(f's_lshl_b32 s{S_T0}, s{S_T0}, 9')
    a(f'v_add_u32 v{vW}, s{S_T0}, v2')
    a(f'v_add_u32 v{vW2}, {L_V}, v{vW}')
    a(f's_and_b32 s{S_T0}, s{S_WV}, 1')
    a(f's_lshl_b32 s{S_T0}, s{S_T0}, 16')
    a(f's_add_u32 s{S_T0}, s{S_T0}, {L_HALF[0]}')
    a(f'v_add_u32 v{vO}, s{S_T0}, v5')
    a('s_waitcnt vmcnt(0)')
    a('s_barrier')
    g.stamp('e4')
    q = LdsQueue()
    DEPTH = 4

    def rd(h):
        b = h % (DEPTH + 1)
        w = vW if h < 16 else vW2
        a(f'ds_read_b64_tr_b16 {vr(WF + 4 * b, 2)}, v{w} offset:{2048 * (h & 15)}')
        a(f'ds_read_b64_tr_b16 {vr(WF + 4 * b + 2, 2)}, v{w} offset:{2048 * (h & 15) + 1024}')
        a(f'ds_read_b128 {vr(OF + 4 * b, 4)}, v{vO} offset:{1024 * h}')
        for _ in range(3):
            q.push(h)
    for h in range(DEPTH):
        rd(h)
    for h in range(32):
        if h + DEPTH < 32:
            rd(h + DEPTH)
        q.wait(a, h)
        b = h % (DEPTH + 1)
        c = '0' if h == 0 else vr(ACC, 16)
        a(f'v_mfma_f32_32x32x16_bf16 {vr(ACC, 16)}, {vr(WF + 4 * b, 4)}, {vr(OF + 4 * b, 4)}, {c}')
    a(f'v_and_b32 v2, 31, v{V_LANE}')
    a(f's_and_b32 s{S_T0}, s{S_WV}, 1')
    a(f's_lshl_b32 s{S_T0}, s{S_T0}, 5')
    a(f'v_add_u32 v2, s{S_T0}, v2')
    a(f'v_mul_u32_u24 v2, {OUT_P}, v2')
    a(f'v_lshrrev_b32 v3, 5, v{V_LANE}')
    a('v_lshl_add_u32 v2, v3, 3, v2')
    a(f's_lshr_b32 s{S_T0}, s{S_WV}, 1')
    a(f's_lshl_b32 s{S_T0}, s{S_T0}, 6')
    a(f's_add_u32 s{S_T0}, s{S_T0}, {L_OUT}')
    a(f'v_add_u32 v2, s{S_T0}, v2')
    a('s_nop 3')
    for gq in range(4):
        a(f'v_cvt_pk_bf16_f32 v{32 + 2 * gq}, v{ACC + 4 * gq}, v{ACC + 4 * gq + 1}')
        a(f'v_cvt_pk_bf16_f32 v{33 + 2 * gq}, v{ACC + 4 * gq + 2}, v{ACC + 4 * gq + 3}')
        a(f'ds_write_b64 v2, {vr(32 + 2 * gq, 2)} offset:{16 * gq}')
    a('s_waitcnt lgkmcnt(0)')
    g.stamp('op_mf')
    a('s_barrier')
    a.label('L_outstore')
    a(f'v_lshrrev_b32 v2, 3, v{V_LANE}')
    a(f's_lshl_b32 s{S_T0}, s{S_WV}, 3')
    a(f'v_add_u32 v2, s{S_T0}, v2')
    a(f'v_mul_u32_u24 v3, {OUT_P}, v2')
    a(f'v_and_b32 v4, 7, v{V_LANE}')
    a('v_lshl_add_u32 v3, v4, 4, v3')
    a(f'v_add_u32 v3, {L_OUT}, v3')
    a('ds_read_b128 v[8:11], v3')
    a('v_lshlrev_b32 v2, 11, v2')
    a('v_lshl_add_u32 v2, v4, 4, v2')
    a(f's_lshl_b32 s{S_T0}, s{S_XC}, 19')
    a(f's_and_b32 s{S_T2}, s{S_IDX}, 3')
    a(f's_lshl_b32 s{S_T2}, s{S_T2}, 17')
    a(f's_add_u32 s{S_T0}, s{S_T0}, s{S_T2}')
    a(f's_lshr_b32 s{S_T2}, s{S_IDX}, 2')
    a(f's_lshl_b32 s{S_T2}, s{S_T2}, 7')
    a(f's_add_u32 s{S_T0}, s{S_T0}, s{S_T2}')
    a('s_waitcnt lgkmcnt(0)')
    a(f'buffer_store_dwordx4 v[8:11], v2, s[{R_OUT}:{R_OUT + 3}], s{S_T0} offen {g.outmod}')
    a('s_branch L_finish')


def ystage(g):
    a = g.a
    a.label('L_ys')
    a('s_waitcnt vmcnt(0)')
    a('s_barrier')
    if 'wb2' in g.exp:
        a(f's_cmp_eq_u32 s{S_WV}, 7')
        a('s_cbranch_scc0 L_ys_nowb')
        a(f's_cmp_eq_u32 s{S_IDX}, 0')
        a('s_cbranch_scc0 L_ys_nowb')
        a('buffer_wbl2 sc1')
        a.label('L_ys_nowb')
    a(f's_cmp_lt_u32 s{S_WV}, 8')
    a('s_cbranch_scc1 L_ys_idle')
    a(f'v_lshlrev_b32 v2, 2, v{V_LANE}')
    a(f's_add_u32 s{S_T0}, s{S_INB}, {IB_Y}')
    a(f'v_add_u32 v2, s{S_T0}, v2')
    g.ws_spin(2, 3, 64, 'yf')
    a(f'v_lshrrev_b32 v2, 4, v{V_LANE}')
    a('v_lshlrev_b32 v2, 12, v2')
    a(f'v_bfe_u32 v3, v{V_LANE}, 2, 2')
    a('v_lshl_add_u32 v2, v3, 8, v2')
    a(f'v_and_b32 v3, 3, v{V_LANE}')
    a('v_lshl_add_u32 v2, v3, 4, v2')
    a(f's_lshl_b32 s{S_T0}, s{S_XC}, 18')
    a(f's_lshr_b32 s{S_T1}, s{S_IDX}, 3')
    a(f's_lshl_b32 s{S_T1}, s{S_T1}, 10')
    a(f's_add_u32 s{S_T0}, s{S_T0}, s{S_T1}')
    a(f's_and_b32 s{S_T1}, s{S_IDX}, 3')
    a(f's_lshl_b32 s{S_T1}, s{S_T1}, 6')
    a(f's_add_u32 s{S_T0}, s{S_T0}, s{S_T1}')
    a(f's_and_b32 s{S_T2}, s{S_WV}, 7')
    a(f's_lshl_b32 s{S_T1}, s{S_T2}, 15')
    a(f's_add_u32 s{S_T0}, s{S_T0}, s{S_T1}')
    a(f's_add_u32 s{S_T0}, s{S_T0}, {WS_YT}')
    a(f's_mul_i32 s{S_T3}, s{S_T2}, {2 * 1040}')
    for i in range(2):
        a(f's_add_u32 m0, s{S_T3}, {L_YS + i * 1040}')
        a(f's_add_u32 s{S_T1}, s{S_T0}, {i * 16384}')
        a(f'buffer_load_dwordx4 v2, {WSR}, s{S_T1} offen sc1 lds')
    a('s_waitcnt vmcnt(0)')
    a('s_barrier')
    a(f'v_and_b32 v3, 7, v{V_LANE}')
    a('v_mul_u32_u24 v4, 2080, v3')
    a(f'v_bfe_u32 v5, v{V_LANE}, 5, 1')
    a('v_lshl_add_u32 v4, v5, 6, v4')
    a(f'v_bfe_u32 v5, v{V_LANE}, 3, 2')
    a('v_lshl_add_u32 v4, v5, 1, v4')
    a(f's_bfe_u32 s{S_T0}, s{S_IDX}, 0x10002')
    a(f's_lshl_b32 s{S_T0}, s{S_T0}, 3')
    a(f's_lshr_b32 s{S_T1}, s{S_T2}, 1')
    a(f's_lshl_b32 s{S_T1}, s{S_T1}, 4')
    a(f's_add_u32 s{S_T0}, s{S_T0}, s{S_T1}')
    a(f's_and_b32 s{S_T1}, s{S_T2}, 1')
    a(f's_lshl_b32 s{S_T1}, s{S_T1}, 7')
    a(f's_add_u32 s{S_T0}, s{S_T0}, s{S_T1}')
    a(f's_add_u32 s{S_T0}, s{S_T0}, {L_YS}')
    a(f'v_add_u32 v4, s{S_T0}, v4')
    for e in range(8):
        op = 'ds_read_u16' if e % 2 == 0 else 'ds_read_u16_d16_hi'
        a(f'{op} v{16 + e}, v4 offset:{(e >> 2) * 1040 + (e & 3) * 256}')
    a(f'v_lshrrev_b32 v2, 3, v{V_LANE}')
    a(f's_lshl_b32 s{S_T1}, s{S_T2}, 3')
    a(f'v_add_u32 v2, s{S_T1}, v2')
    a('v_lshlrev_b32 v2, 11, v2')
    a('v_lshl_add_u32 v2, v3, 4, v2')
    a(f's_lshl_b32 s{S_T0}, s{S_IDX}, 17')
    a(f's_lshl_b32 s{S_T1}, s{S_XC}, 7')
    a(f's_add_u32 s{S_T0}, s{S_T0}, s{S_T1}')
    a(f's_add_u32 s{S_T0}, s{S_T0}, 1024')
    a('s_waitcnt lgkmcnt(0)')
    for i in range(4):
        a(f'v_or_b32 v{8 + i}, v{16 + 2 * i}, v{17 + 2 * i}')
    a(f'buffer_store_dwordx4 v[8:11], v2, s[{R_OUT}:{R_OUT + 3}], s{S_T0} offen {g.outmod}')
    a('s_branch L_finish')
    a.label('L_ys_idle')
    a('s_barrier')
    a('s_branch L_outstore')


def rest(g):
    a = g.a
    if g.stop == 'p1':
        a('s_branch L_finish')
        return
    attn_setup(g)
    attn_first_trip(g)
    attn_loop(g)
    attn_finish(g)
    conv(g)
    outproj(g)
    ystage(g)
    attn_hooks(g)
    attn_fallback(g)
```

```python
import os
import struct
import sys

sys.path.insert(0, os.path.dirname(os.path.abspath(__file__)))
from asmlib import Asm, VmQueue, check_hazards, vr

NAME = 'concat_heads__softmax_full_mha__ssm_conv_s4d__prompt'
KERNEL = NAME + '_kernel'

WS_G = 0x0
WS_INBOX = 0x100000
IB_KV, IB_U, IB_X, IB_L, IB_O, IB_Y = 0, 256, 512, 768, 1024, 1280
WS_UT = 0x200000
WS_KR = 0x400000
WS_VR = 0x600000
WS_QL = 0x800000
WS_KL = 0xA00000
WS_VL = 0xC00000
WS_OF = 0xE00000
WS_YT = 0x1000000
WS_PROF = 0x1400000
WS_SIZE = 0x1800000

LDS_BYTES = 163840
SLOT, NSLOT = 32768, 3
L_USTAGE = 148096
L_KG = 98304
ROWP = 272
KG_Y = 25 * ROWP
KG_SZ = KG_Y + 32 * ROWP
L_KPART = 98304
L_KSP = 114688
KSP_SZ = 4608
L_K, L_V = 0, 65536
L_R = 131072
R_O, R_SZ = 4160, 8320
L_UL = L_R + 2 * R_SZ
UL_SZ = 4608
L_QS = 148096
L_MISC = 163520
M_MODE = L_MISC
M_F = L_MISC + 16
M_I = L_MISC + 96
M_C = L_MISC + 144
M_KT = L_MISC - 32
M_SL = L_MISC - 48
L_HALF = (32768, 98304)
L_OUT = L_R
OUT_P = 144
L_YS = L_R + 64 * OUT_P
PART_SZ = 2304

S_X, S_WQKV, S_WO, S_U, S_LOGA, S_AIM, S_CRE, S_CIM, S_LOGDT, S_DSK, S_OUT, S_DBG, S_WS = range(8, 34, 2)
R_X, R_W, R_WS, R_U, R_WO, R_OUT = 36, 40, 44, 48, 52, 56
S_XC, S_IDX, S_CG, S_RB, S_S0, S_WV, S_TOK, S_MODE, S_H, S_XCC = range(60, 70)
S_T0, S_T1, S_T2, S_T3, S_T4, S_T5, S_T6, S_T7 = range(70, 78)
S_MASK = 78
S_RET = 80
S_K, S_SLOT, S_CNT, S_DT, S_INB = 82, 83, 84, 85, 86
S_A, S_B, S_C = 3, 4, 5
S_IGN = 6
S_J, S_SRC = 34, 35
S_PROF = 88

V_LANE = 1
LOG2E = 1.4426950408889634
INV2PI = 0.15915494309189535
QSCALE = 0.25 * LOG2E
SPIN_MAX = 400000
HI0 = [0, 256, 512, 768, 1024, 1280, 1536, 1792, 1, 2, 3, 258, 2048]
WSR = f's[{R_WS}:{R_WS + 3}]'

A_L16, A_PA, A_PV, A_KA, A_VA, A_Q, A_O = 4, 5, 6, 8, 9, 12, 16
A_S, A_P, A_K, A_V = (32, 48), 64, (72, 76), (80, 88)


def fbits(x):
    return '0x%08x' % struct.unpack('<I', struct.pack('<f', x))[0]


class LdsQueue:
    def __init__(self):
        self.q = []

    def push(self, tag):
        self.q.append(tag)

    def wait(self, a, tag):
        idx = max(i for i, t in enumerate(self.q) if t == tag)
        n = len(self.q) - 1 - idx
        assert n <= 15
        a(f's_waitcnt lgkmcnt({n})')


class Gen:
    def __init__(self, stop=None, prof='', points='', exp=''):
        self.a = Asm()
        self.stop = stop
        self.prof = prof
        self.points = points.split(',') if points else []
        self.exp = set(exp.split(',')) if exp else set()
        assert len(self.points) <= 7
        self.outmod = 'sc1' if 'outwt' in self.exp else ('nt' if 'outnt' in self.exp else '')

    def srd(self, r, base, size):
        a = self.a
        a(f's_mov_b32 s{r}, s{base}')
        a(f's_mov_b32 s{r + 1}, s{base + 1}')
        a(f's_mov_b32 s{r + 2}, {size}')
        a(f's_mov_b32 s{r + 3}, 0x20000')

    def lanes(self, n):
        if n == 64:
            self.a('s_mov_b64 exec, -1')
        elif n >= 32:
            self.a(f's_mov_b32 exec_hi, {hex((1 << (n - 32)) - 1)}')
        else:
            self.a(f's_mov_b64 exec, {hex((1 << n) - 1)}')

    def stamp(self, name):
        if self.prof and name in self.points:
            i = self.points.index(name)
            op = 's_memtime' if self.prof == 'cyc' else 's_memrealtime'
            self.a(f'{op} s[{S_PROF + 2 * i}:{S_PROF + 2 * i + 1}]')

    def stamp_k(self, prefix):
        for k in range(8):
            if self.prof and f'{prefix}{k}' in self.points:
                lb = self.a.uid('nost')
                self.a(f's_cmp_eq_u32 s{S_K}, {k}')
                self.a(f's_cbranch_scc0 {lb}')
                self.stamp(f'{prefix}{k}')
                self.a.label(lb)

    def lds_check(self, vtmp, n):
        a = self.a
        a(f'v_cmp_ne_u32 vcc, s{S_TOK}, v{vtmp}')
        for i in range(1, n):
            a(f'v_cmp_ne_u32 s[{S_IGN}:{S_IGN + 1}], s{S_TOK}, v{vtmp + i}')
            a('s_nop 0')
            a(f's_or_b64 vcc, vcc, s[{S_IGN}:{S_IGN + 1}]')

    def lds_spin(self, vaddr, vtmp, n, off=0, sleep=0):
        a = self.a
        lp = a.uid('lspin')
        rd = {1: 'ds_read_b32', 2: 'ds_read_b64', 4: 'ds_read_b128'}[n]
        a(f's_mov_b32 s{S_CNT}, 0')
        a.label(lp)
        a(f'{rd} {vr(vtmp, n)}, v{vaddr} offset:{off}')
        a(f's_add_u32 s{S_CNT}, s{S_CNT}, 1')
        a('s_waitcnt lgkmcnt(0)')
        self.lds_check(vtmp, n)
        a(f's_cbranch_vccz {lp}_x')
        if sleep:
            a(f's_sleep {sleep}')
        a(f's_cmp_gt_u32 s{S_CNT}, {SPIN_MAX}')
        a(f's_cbranch_scc0 {lp}')
        a.label(lp + '_x')

    def ws_spin(self, voff, vtmp, nlanes, name, preissued=False, ignore=None):
        a = self.a
        lp, done = a.uid(name), a.uid(name + '_ok')
        a(f's_mov_b32 s{S_CNT}, 0')
        if nlanes < 64:
            self.lanes(nlanes)
        if not preissued:
            a(f'buffer_load_dword v{vtmp}, v{voff}, {WSR}, 0 offen sc1')
        a.label(lp)
        a('s_waitcnt vmcnt(0)')
        a(f'v_cmp_ne_u32 vcc, s{S_TOK}, v{vtmp}')
        a(f's_add_u32 s{S_CNT}, s{S_CNT}, 1')
        a('s_nop 0')
        if ignore is not None:
            a(f's_andn2_b64 vcc, vcc, s[{ignore}:{ignore + 1}]')
        else:
            a('s_and_b64 vcc, vcc, exec')
        a(f's_cbranch_scc0 {done}')
        a(f's_cmp_gt_u32 s{S_CNT}, {SPIN_MAX}')
        a(f's_cbranch_scc1 {done}')
        a(f'buffer_load_dword v{vtmp}, v{voff}, {WSR}, 0 offen sc1')
        a(f's_branch {lp}')
        a.label(done)
        if nlanes < 64:
            self.lanes(64)

    def store_mode(self, lines):
        a = self.a
        wt, done = a.uid('wt'), a.uid('std')
        a(f's_cmp_eq_u32 s{S_MODE}, 0')
        a(f's_cbranch_scc1 {wt}')
        for ln in lines:
            a(ln.replace('{M}', ''))
        a(f's_branch {done}')
        a.label(wt)
        for ln in lines:
            a(ln.replace('{M}', 'sc1'))
        a.label(done)

    def token(self):
        a = self.a
        a('s_waitcnt lgkmcnt(0)')
        a(f's_mul_i32 s{S_TOK}, s{S_TOK}, 0x9e3779b1')
        a(f's_add_u32 s{S_TOK}, s{S_TOK}, 0x7f4a7c15')

    def common_setup(self):
        a = self.a
        if 'wstop' in self.exp:
            a(f's_mov_b32 s{S_T7}, {(256 << 20) - WS_SIZE}')
            a(f's_load_dword s{S_TOK}, s[{S_WS}:{S_WS + 1}], s{S_T7}')
        else:
            a(f's_load_dword s{S_TOK}, s[{S_WS}:{S_WS + 1}], {WS_G}')
        a(f's_getreg_b32 s{S_XCC}, hwreg(HW_REG_XCC_ID)')
        self.srd(R_WS, S_WS, WS_SIZE)
        if 'wstop' in self.exp:
            a(f's_add_u32 s{R_WS}, s{R_WS}, {(256 << 20) - WS_SIZE}')
            a(f's_addc_u32 s{R_WS + 1}, s{R_WS + 1}, 0')
        self.srd(R_U, S_U, 2048 * 1024)
        self.srd(R_WO, S_WO, 512 * 1024)
        self.srd(R_OUT, S_OUT, 2048 * 2048)
        a(f's_mov_b32 s{S_H}, s{S_IDX}')
        a(f's_and_b32 s{S_XCC}, s{S_XCC}, 15')
        a(f's_lshl_b32 s{S_INB}, s2, 11')
        a(f's_add_u32 s{S_INB}, s{S_INB}, {WS_INBOX}')
        a(f's_mov_b32 s{S_MASK}, 0x0000ffff')
        a(f's_mov_b32 s{S_MASK + 1}, 0x0000ffff')

    def prologue(self):
        a = self.a
        a('s_cmp_ge_u32 s2, 256')
        a('s_cbranch_scc1 L_exit')
        a('s_load_dwordx16 s[8:23], s[0:1], 0')
        a('s_load_dwordx8 s[24:31], s[0:1], 64')
        a('s_load_dwordx2 s[32:33], s[0:1], 96')
        if self.prof:
            for i in range(14):
                a(f's_mov_b32 s{S_PROF + i}, 0')
        self.stamp('entry')
        a('s_getpc_b64 s[70:71]')
        a.label('L_pc')
        a('v_lshrrev_b32 v2, 6, v0')
        a(f'v_and_b32 v{V_LANE}, 63, v0')
        a(f's_lshr_b32 s{S_IDX}, s2, 3')
        a(f's_lshl_b32 s{S_T2}, s{S_IDX}, 10')
        a(f'v_lshl_add_u32 v3, v0, 7, s{S_T2}')
        a('v_min_u32 v3, L_code_end-L_pc-4, v3')
        a('v_cmp_gt_u32 vcc, 8, v0')
        a(f's_and_saveexec_b64 s[{S_T4}:{S_T4 + 1}], vcc')
        a('s_cbranch_execz L_nocodepf')
        a('global_load_dword v9, v3, s[70:71]')
        a.label('L_nocodepf')
        a('s_mov_b64 exec, -1')
        a(f's_and_b32 s{S_XC}, s2, 7')
        a(f'v_readfirstlane_b32 s{S_WV}, v2')
        a(f's_lshr_b32 s{S_CG}, s{S_IDX}, 2')
        a(f's_and_b32 s{S_RB}, s{S_IDX}, 3')
        a(f's_lshl_b32 s{S_S0}, s{S_RB}, 1')
        a(f's_add_u32 s{S_S0}, s{S_S0}, s{S_CG}')
        a(f's_sub_u32 s{S_T0}, s{S_WV}, 4')
        a(f's_cmp_lt_u32 s{S_T0}, 6')
        a('s_cbranch_scc0 L_notloader')

    def issue_chunk(self):
        a = self.a
        if 'nodma' in self.exp:
            return
        a(f's_add_u32 s{S_T2}, s{S_S0}, s{S_K}')
        a(f's_and_b32 s{S_T2}, s{S_T2}, 7')
        a(f's_lshl_b32 s{S_T0}, s{S_T2}, 7')
        a(f's_add_u32 s{S_T0}, s{S_T0}, s{S_A}')
        a(f's_mul_i32 s{S_T4}, s{S_T2}, {64 * 3072}')
        a(f's_add_u32 s{S_T4}, s{S_T4}, s{S_B}')
        for j in range(4):
            a(f's_add_u32 m0, s{S_C}, {j * 1024}')
            a(f's_add_u32 s{S_T1}, s{S_T0}, {j * 8192}')
            a(f'buffer_load_dwordx4 v{10 + (j & 1)}, s[{R_X}:{R_X + 3}], s{S_T1} offen lds')
            for c in range(3):
                a(f's_add_u32 m0, s{S_C}, {8192 + c * 8192 + j * 1024}')
                a(f's_add_u32 s{S_T1}, s{S_T4}, {j * 8 * 3072 + c * 1024}')
                a(f'buffer_load_dwordx4 v12, s[{R_W}:{R_W + 3}], s{S_T1} offen lds')

    def loader_waves(self):
        a = self.a
        a('s_setprio 2')
        a(f'v_lshrrev_b32 v4, 3, v{V_LANE}')
        a(f'v_and_b32 v5, 7, v{V_LANE}')
        a('v_lshrrev_b32 v6, 1, v4')
        a('v_xor_b32 v7, v5, v6')
        a('v_lshlrev_b32 v7, 4, v7')
        a('v_lshl_add_u32 v10, v4, 10, v7')
        a('v_xor_b32 v11, 64, v10')
        a(f'v_bfe_u32 v4, v{V_LANE}, 2, 3')
        a('v_mul_u32_u24 v4, 3072, v4')
        a(f'v_lshrrev_b32 v5, 5, v{V_LANE}')
        a('v_lshl_add_u32 v4, v5, 6, v4')
        a(f'v_and_b32 v5, 3, v{V_LANE}')
        a('v_lshl_add_u32 v12, v5, 4, v4')
        a(f's_and_b32 s{S_T1}, s{S_T0}, 1')
        a(f's_lshr_b32 s{S_K}, s{S_T0}, 1')
        a(f's_lshl_b32 s{S_C}, s{S_K}, 15')
        a(f's_lshl_b32 s{S_T2}, s{S_T1}, 12')
        a(f's_add_u32 s{S_C}, s{S_C}, s{S_T2}')
        a(f's_lshl_b32 s{S_A}, s{S_XC}, 18')
        a(f's_lshl_b32 s{S_T2}, s{S_RB}, 16')
        a(f's_add_u32 s{S_A}, s{S_A}, s{S_T2}')
        a(f's_lshl_b32 s{S_T2}, s{S_T1}, 15')
        a(f's_add_u32 s{S_A}, s{S_A}, s{S_T2}')
        a(f's_mul_i32 s{S_B}, s{S_T1}, {32 * 3072}')
        a(f's_lshl_b32 s{S_T2}, s{S_CG}, 7')
        a(f's_add_u32 s{S_B}, s{S_B}, s{S_T2}')
        vF, vC, vT = 13, 14, 20
        a(f's_lshl_b32 s{S_T1}, s{S_T1}, 2')
        a(f's_add_u32 s{S_T2}, s{S_T1}, {M_F}')
        a(f'v_mov_b32 v{vF}, s{S_T2}')
        a(f's_lshl_b32 s{S_T2}, s{S_K}, 3')
        a(f's_add_u32 s{S_T2}, s{S_T2}, s{S_T1}')
        a(f's_add_u32 s{S_T2}, s{S_T2}, {M_I}')
        a(f'v_mov_b32 v17, s{S_T2}')
        a('s_waitcnt lgkmcnt(0)')
        self.srd(R_X, S_X, 2048 * 1024)
        self.srd(R_W, S_WQKV, 512 * 3072)
        a(f's_cmp_eq_u32 s{S_K}, 0')
        a('s_cbranch_scc1 L_ld_first')
        self.common_setup()
        self.token()
        a(f's_lshl_b32 s{S_T2}, s{S_K}, 3')
        a(f's_add_u32 s{S_T2}, s{S_T2}, {M_I - 8}')
        a(f'v_mov_b32 v{vC}, s{S_T2}')
        self.lds_spin(vC, vT, 2)
        self.issue_chunk()
        a('s_branch L_ld_issued')
        a.label('L_ld_first')
        self.stamp('iss0')
        self.issue_chunk()
        self.common_setup()
        self.token()
        a.label('L_ld_issued')
        self.stamp('iss1')
        a(f'v_mov_b32 v15, s{S_TOK}')
        a('ds_write_b32 v17, v15')
        a(f'v_mov_b32 v{vC}, {M_C}')
        a.label('L_ld_loop')
        a(f's_lshl_b32 s{S_T0}, s{S_K}, 3')
        a(f'v_add_u32 v18, s{S_T0}, v{vF}')
        a('s_waitcnt vmcnt(0)')
        a('ds_write_b32 v18, v15')
        self.stamp_k('lF')
        a(f's_add_u32 s{S_K}, s{S_K}, 3')
        a(f's_cmp_ge_u32 s{S_K}, 8')
        a('s_cbranch_scc1 L_ld_done')
        a(f's_lshl_b32 s{S_T0}, s{S_K}, 4')
        a(f's_add_u32 s{S_T0}, s{S_T0}, {M_C - 48}')
        a(f'v_mov_b32 v{vC}, s{S_T0}')
        self.lds_spin(vC, vT, 4, sleep=1)
        self.stamp_k('lC')
        self.issue_chunk()
        self.stamp_k('lI')
        a('s_branch L_ld_loop')
        a.label('L_ld_done')
        self.stamp('lb7')
        a(f's_cmp_ge_u32 s{S_WV}, 8')
        a('s_cbranch_scc1 L_gap1_join')
        self.stage_local()
        a('s_branch L_gap1_join')

    def kv_src(self):
        a = self.a
        a(f's_lshl_b32 s{S_C}, s{S_XC}, 1')
        a(f's_lshl_b32 s{S_T0}, s{S_H}, 16')
        a(f's_and_b32 s{S_B}, s{S_WV}, 3')
        a(f's_lshl_b32 s{S_B}, s{S_B}, 10')
        a(f's_add_u32 s{S_SRC}, s{S_T0}, s{S_B}')
        a(f'v_lshlrev_b32 v{A_L16}, 4, v{V_LANE}')

    def kv_dma(self, j, kbase, vbase):
        a = self.a
        a(f's_add_u32 s{S_T0}, s{S_C}, {j}')
        a(f's_and_b32 s{S_T0}, s{S_T0}, 15')
        a(f's_lshl_b32 s{S_T0}, s{S_T0}, 12')
        a(f's_add_u32 s{S_T0}, s{S_T0}, s{S_SRC}')
        a(f's_add_u32 m0, s{S_B}, {L_K + 4096 * j}')
        a(f's_add_u32 s{S_T4}, s{S_T0}, {kbase}')
        a(f'buffer_load_dwordx4 v{A_L16}, {WSR}, s{S_T4} offen sc1 lds')
        a(f's_add_u32 m0, s{S_B}, {L_V + 4096 * j}')
        a(f's_add_u32 s{S_T4}, s{S_T0}, {vbase}')
        a(f'buffer_load_dwordx4 v{A_L16}, {WSR}, s{S_T4} offen sc1 lds')

    def stage_local(self):
        a = self.a
        self.kv_src()
        a(f'v_lshlrev_b32 v2, 2, v{V_LANE}')
        a(f's_add_u32 s{S_T0}, s{S_INB}, {IB_L}')
        a('v_add_u32 v2, s70, v2')
        self.ws_spin(2, 3, 8, 'loc')
        self.stamp('loc_ok')
        for j in range(2):
            self.kv_dma(j, WS_KL, WS_VL)
        a(f's_lshl_b32 s{S_T0}, s{S_H}, 16')
        a(f's_lshl_b32 s{S_T1}, s{S_XC}, 13')
        a(f's_add_u32 s{S_T0}, s{S_T0}, s{S_T1}')
        a(f's_lshl_b32 s{S_T1}, s{S_B}, 1')
        a(f's_add_u32 s{S_T0}, s{S_T0}, s{S_T1}')
        a(f's_add_u32 s{S_T0}, s{S_T0}, {WS_QL}')
        for i in range(2):
            a(f's_add_u32 m0, s{S_T1}, {L_QS + 1024 * i}')
            a(f's_add_u32 s{S_T4}, s{S_T0}, {1024 * i}')
            a(f'buffer_load_dwordx4 v{A_L16}, {WSR}, s{S_T4} offen sc1 lds')
        a(f's_and_b32 s{S_T0}, s{S_WV}, 3')
        a(f's_lshl_b32 s{S_T0}, s{S_T0}, 2')
        a(f's_add_u32 s{S_T0}, s{S_T0}, {M_SL}')
        a(f'v_mov_b32 v2, s{S_T0}')
        a(f'v_mov_b32 v3, s{S_TOK}')
        a('ds_write_b32 v2, v3')
        a(f'v_lshlrev_b32 v{A_PA}, 2, v{V_LANE}')
        a(f's_add_u32 s{S_T0}, s{S_INB}, {IB_KV}')
        a(f'v_add_u32 v{A_PA}, s{S_T0}, v{A_PA}')
        a(f'buffer_load_dword v{A_PV}, v{A_PA}, {WSR}, 0 offen sc1')
        a('s_waitcnt vmcnt(1)')

    def gemm_waves(self):
        a = self.a
        vXa, vWa, vF, vC, vT = 10, 14, 15, 6, 2
        ACCQ, ACCK, ACCV = 16, 32, 48
        XF, WF = 64, 80
        a.label('L_gemm')
        if 'noprio' not in self.exp:
            a('s_setprio 3')
        a(f'v_and_b32 v2, 31, v{V_LANE}')
        a(f'v_lshrrev_b32 v3, 5, v{V_LANE}')
        a('v_bfe_u32 v4, v2, 1, 3')
        a('v_xor_b32 v4, v4, v3')
        a('v_lshlrev_b32 v4, 4, v4')
        a(f's_and_b32 s{S_T0}, s{S_WV}, 1')
        a(f's_lshl_b32 s{S_T0}, s{S_T0}, 12')
        a('v_lshl_add_u32 v4, v2, 7, v4')
        a(f'v_add_u32 v{vXa}, s{S_T0}, v4')
        for ks in range(1, 4):
            a(f'v_xor_b32 v{vXa + ks}, {32 * ks}, v{vXa}')
        a(f'v_bfe_u32 v4, v{V_LANE}, 2, 2')
        a('v_lshlrev_b32 v4, 6, v4')
        a('v_lshl_add_u32 v4, v3, 10, v4')
        a(f'v_bfe_u32 v5, v{V_LANE}, 4, 1')
        a('v_lshl_add_u32 v4, v5, 5, v4')
        a(f'v_and_b32 v5, 3, v{V_LANE}')
        a('v_lshl_add_u32 v4, v5, 3, v4')
        a(f's_lshr_b32 s{S_T0}, s{S_WV}, 1')
        a(f's_lshl_b32 s{S_T0}, s{S_T0}, 9')
        a(f's_add_u32 s{S_T0}, s{S_T0}, 8192')
        a(f'v_add_u32 v{vWa}, s{S_T0}, v4')
        for i in range(48):
            a(f'v_mov_b32 v{ACCQ + i}, 0')
        a(f's_mov_b32 s{S_K}, 0')
        a(f's_mov_b32 s{S_SLOT}, 0')
        a(f'v_mov_b32 v{vF}, {M_F}')
        a(f's_lshl_b32 s{S_T0}, s{S_WV}, 2')
        a(f's_add_u32 s{S_T0}, s{S_T0}, {M_C}')
        a(f'v_mov_b32 v{vC}, s{S_T0}')
        self.token()
        a(f'v_mov_b32 v7, s{S_TOK}')

        def loads(ks):
            a(f'ds_read_b128 {vr(XF + 4 * ks, 4)}, v{vXa + ks}')
            for c in range(3):
                base = WF + 12 * ks + 4 * c
                a(f'ds_read_b64_tr_b16 {vr(base, 2)}, v{vWa} offset:{c * 8192 + ks * 2048}')
                a(f'ds_read_b64_tr_b16 {vr(base + 2, 2)}, v{vWa} offset:{c * 8192 + ks * 2048 + 256}')

        def mfmas(ks):
            xf = vr(XF + 4 * ks, 4)
            w = [vr(WF + 12 * ks + 4 * c, 4) for c in range(3)]
            a(f'v_mfma_f32_32x32x16_bf16 {vr(ACCQ, 16)}, {w[0]}, {xf}, {vr(ACCQ, 16)}')
            a(f'v_mfma_f32_32x32x16_bf16 {vr(ACCK, 16)}, {w[1]}, {xf}, {vr(ACCK, 16)}')
            a(f'v_mfma_f32_32x32x16_bf16 {vr(ACCV, 16)}, {xf}, {w[2]}, {vr(ACCV, 16)}')

        self.lds_spin(vF, vT, 2)
        self.stamp('b0')
        loads(0)
        loads(1)
        a(f'ds_read_b32 v8, v{vF}')
        a.label('L_g_chunk')
        a('s_waitcnt lgkmcnt(8)')
        loads(2)
        mfmas(0)
        a('s_waitcnt lgkmcnt(7)')
        a(f'ds_read_b64 v[2:3], v{vF} offset:8')
        loads(3)
        mfmas(1)
        a('s_waitcnt lgkmcnt(7)')
        a(f's_add_u32 s{S_K}, s{S_K}, 1')
        a(f's_cmp_eq_u32 s{S_K}, 8')
        a('s_cbranch_scc1 L_g_go')
        self.lds_check(2, 2)
        a('s_cbranch_vccnz L_g_wait')
        a.label('L_g_go')
        a(f's_add_u32 s{S_SLOT}, s{S_SLOT}, 1')
        a(f's_mov_b32 s{S_T0}, {SLOT}')
        a(f's_cmp_eq_u32 s{S_SLOT}, {NSLOT}')
        a(f's_cselect_b32 s{S_T0}, {(-(NSLOT - 1) * SLOT) & 0xffffffff}, s{S_T0}')
        a(f's_cselect_b32 s{S_SLOT}, 0, s{S_SLOT}')
        for i in range(5):
            a(f'v_add_u32 v{vXa + i}, s{S_T0}, v{vXa + i}')
        a(f'v_add_u32 v{vF}, 8, v{vF}')
        loads(0)
        mfmas(2)
        a('s_waitcnt lgkmcnt(7)')
        loads(1)
        a(f'ds_write_b32 v{vC}, v7')
        a(f'v_add_u32 v{vC}, 16, v{vC}')
        mfmas(3)
        a(f's_cmp_lt_u32 s{S_K}, 8')
        a('s_cbranch_scc1 L_g_chunk')
        self.stamp('gemm')
        a('s_waitcnt lgkmcnt(0)')
        a(f'v_mov_b32 v6, {M_MODE}')
        self.lds_spin(6, 2, 1, off=4)
        a('ds_read_b32 v2, v6')

        PQ, PK, PV = 64, 72, 80
        for i in range(8):
            a(f'v_cvt_pk_bf16_f32 v{PK + i}, v{ACCK + 2 * i}, v{ACCK + 2 * i + 1}')
        for i in range(8):
            a(f'v_cvt_pk_bf16_f32 v{PV + i}, v{ACCV + 2 * i}, v{ACCV + 2 * i + 1}')
        a(f's_mov_b32 s{S_T7}, {fbits(QSCALE)}')
        a('s_waitcnt lgkmcnt(0)')
        a(f'v_readfirstlane_b32 s{S_MODE}, v2')
        vL, vV = 2, 3
        a(f'v_lshlrev_b32 v{vL}, 4, v{V_LANE}')
        a(f'v_bfe_u32 v4, v{V_LANE}, 4, 1')
        a('v_lshlrev_b32 v4, 16, v4')
        a(f'v_lshrrev_b32 v5, 5, v{V_LANE}')
        a('v_lshlrev_b32 v5, 8, v5')
        a(f'v_and_b32 v6, 15, v{V_LANE}')
        a('v_lshl_add_u32 v5, v6, 4, v5')
        a(f'v_add_u32 v{vV}, v4, v5')
        a(f's_and_b32 s{S_T6}, s{S_WV}, 2')
        a(f's_lshl_b32 s{S_T1}, s{S_CG}, 2')
        a(f's_add_u32 s{S_T6}, s{S_T6}, s{S_T1}')
        a(f's_lshl_b32 s{S_T5}, s{S_XC}, 3')
        a(f's_lshl_b32 s{S_T1}, s{S_RB}, 1')
        a(f's_add_u32 s{S_T5}, s{S_T5}, s{S_T1}')
        a(f's_and_b32 s{S_T1}, s{S_WV}, 1')
        a(f's_add_u32 s{S_T5}, s{S_T5}, s{S_T1}')
        a(f's_lshl_b32 s{S_T0}, s{S_T6}, 6')
        a(f's_add_u32 s{S_T0}, s{S_T0}, s{S_T5}')
        a(f's_lshl_b32 s{S_T0}, s{S_T0}, 10')
        a(f's_add_u32 s{S_T1}, s{S_T0}, {WS_KL}')
        a(f's_add_u32 s{S_T2}, s{S_T1}, 65536')
        a(f's_add_u32 s{S_T3}, s{S_T0}, {WS_VL}')
        self.store_mode([
            f'buffer_store_dwordx4 {vr(PK, 4)}, v{vL}, {WSR}, s{S_T1} offen {{M}}',
            f'buffer_store_dwordx4 {vr(PK + 4, 4)}, v{vL}, {WSR}, s{S_T2} offen {{M}}',
            f'buffer_store_dwordx4 {vr(PV, 4)}, v{vV}, {WSR}, s{S_T3} offen {{M}}',
            f'buffer_store_dwordx4 {vr(PV + 4, 4)}, v{vV}, {WSR}, s{S_T3} offen offset:512 {{M}}',
        ])
        for i in range(16):
            a(f'v_mul_f32 v{ACCQ + i}, s{S_T7}, v{ACCQ + i}')
        for i in range(8):
            a(f'v_cvt_pk_bf16_f32 v{PQ + i}, v{ACCQ + 2 * i}, v{ACCQ + 2 * i + 1}')
        a(f's_add_u32 s{S_T4}, s{S_T0}, {WS_QL}')
        a(f's_add_u32 s{S_T7}, s{S_T4}, 65536')
        self.store_mode([
            f'buffer_store_dwordx4 {vr(PQ, 4)}, v{vL}, {WSR}, s{S_T4} offen {{M}}',
            f'buffer_store_dwordx4 {vr(PQ + 4, 4)}, v{vL}, {WSR}, s{S_T7} offen {{M}}',
        ])
        a(f's_lshl_b32 s{S_T1}, s{S_T6}, 14')
        a(f's_lshl_b32 s{S_T2}, s{S_XC}, 11')
        a(f's_add_u32 s{S_T1}, s{S_T1}, s{S_T2}')
        a(f's_and_b32 s{S_T2}, s{S_T5}, 7')
        a(f's_lshl_b32 s{S_T2}, s{S_T2}, 2')
        a(f's_add_u32 s{S_T1}, s{S_T1}, s{S_T2}')
        a(f's_add_u32 s{S_T1}, s{S_T1}, {WS_INBOX + IB_L}')
        a(f'v_lshlrev_b32 v4, 14, v{V_LANE}')
        a(f'v_mov_b32 v5, s{S_TOK}')
        self.stamp('st_iss')
        a('s_waitcnt vmcnt(0)')
        self.stamp('st_loc')
        a('s_mov_b64 exec, 3')
        self.store_mode([f'buffer_store_dword v5, v4, {WSR}, s{S_T1} offen {{M}}'])
        a('s_mov_b64 exec, -1')
        if 'early_rem' not in self.exp:
            a(f'v_mov_b32 v6, {M_SL}')
            self.lds_spin(6, 8, 4, sleep=1)
        a(f's_add_u32 s{S_T1}, s{S_T0}, {WS_KR}')
        a(f's_add_u32 s{S_T2}, s{S_T1}, 65536')
        a(f's_add_u32 s{S_T3}, s{S_T0}, {WS_VR}')
        a(f'buffer_store_dwordx4 {vr(PK, 4)}, v{vL}, {WSR}, s{S_T1} offen sc1')
        a(f'buffer_store_dwordx4 {vr(PK + 4, 4)}, v{vL}, {WSR}, s{S_T2} offen sc1')
        a(f'buffer_store_dwordx4 {vr(PV, 4)}, v{vV}, {WSR}, s{S_T3} offen sc1')
        a(f'buffer_store_dwordx4 {vr(PV + 4, 4)}, v{vV}, {WSR}, s{S_T3} offen offset:512 sc1')
        a(f's_lshl_b32 s{S_A}, s{S_T6}, 14')
        a(f's_lshl_b32 s{S_T2}, s{S_T5}, 2')
        a(f's_add_u32 s{S_A}, s{S_A}, s{S_T2}')
        a(f's_add_u32 s{S_A}, s{S_A}, {WS_INBOX + IB_KV}')
        a('s_branch L_gap1_join')
        a.label('L_g_wait')
        self.lds_spin(vF, 2, 2, off=8)
        a('s_branch L_g_go')

    def cexp(self, dst, ar, ai, e, t):
        a = self.a
        a(f'v_mul_f32 v{t}, {fbits(float(e))}, v{ar}')
        a(f'v_mul_f32 v{t + 1}, {fbits(float(e))}, v{ai}')
        a(f'v_exp_f32 v{t}, v{t}')
        a(f'v_fract_f32 v{t + 1}, v{t + 1}')
        a(f'v_cos_f32 v{dst}, v{t + 1}')
        a(f'v_sin_f32 v{dst + 1}, v{t + 1}')
        a('s_nop 0')
        a(f'v_mul_f32 v{dst}, v{t}, v{dst}')
        a(f'v_mul_f32 v{dst + 1}, v{t}, v{dst + 1}')

    def cmul(self, d, x, y):
        a = self.a
        a(f'v_mul_f32 v{d}, v{x}, v{y}')
        a(f'v_mul_f32 v{d + 1}, v{x}, v{y + 1}')
        a(f'v_fma_f32 v{d}, -v{x + 1}, v{y + 1}, v{d}')
        a(f'v_fma_f32 v{d + 1}, v{x + 1}, v{y}, v{d + 1}')

    def kgen_waves(self):
        a = self.a
        S_CH, S_KGB, S_HF = S_A, S_B, S_C
        a.label('L_kgen')
        if 'nokg' in self.exp:
            a('s_branch L_gap1_join')
        a(f's_sub_u32 s{S_J}, s{S_WV}, 10')
        a(f's_lshr_b32 s{S_CH}, s{S_J}, 1')
        a(f's_and_b32 s{S_HF}, s{S_J}, 1')
        a(f's_lshl_b32 s{S_T0}, s{S_XC}, 6')
        a(f's_lshl_b32 s{S_T1}, s{S_IDX}, 1')
        a(f's_add_u32 s{S_T0}, s{S_T0}, s{S_T1}')
        a(f's_lshl_b32 s{S_T3}, s{S_T0}, 1')
        a(f's_load_dword s{S_DT}, s[{S_LOGDT}:{S_LOGDT + 1}], s{S_T3}')
        a(f's_add_u32 s{S_T0}, s{S_T0}, s{S_CH}')
        a(f's_lshl_b32 s{S_T0}, s{S_T0}, 8')
        a(f's_lshl_b32 s{S_T1}, s{S_HF}, 7')
        a(f's_add_u32 s{S_T0}, s{S_T0}, s{S_T1}')
        a(f'v_lshlrev_b32 v2, 1, v{V_LANE}')
        a(f'v_add_u32 v2, s{S_T0}, v2')
        for i, ptr in enumerate((S_LOGA, S_AIM, S_CRE, S_CIM)):
            a(f'global_load_ushort v{20 + i}, v2, s[{ptr}:{ptr + 1}]')
        self.token()
        a(f's_lshl_b32 s{S_T2}, s{S_CH}, 4')
        a(f's_lshr_b32 s{S_T1}, s{S_DT}, s{S_T2}')
        a(f's_lshl_b32 s{S_T1}, s{S_T1}, 16')
        L2E = fbits(LOG2E)
        a(f'v_mov_b32 v4, s{S_T1}')
        a(f'v_mul_f32 v4, {L2E}, v4')
        a('v_exp_f32 v4, v4')
        vA, vR = 8, 9
        a(f's_mul_i32 s{S_KGB}, s{S_J}, {KG_SZ}')
        a(f's_add_u32 s{S_KGB}, s{S_KGB}, {L_KG}')
        a(f'v_lshlrev_b32 v{vA}, 2, v{V_LANE}')
        a(f'v_add_u32 v{vA}, s{S_KGB}, v{vA}')
        a('s_waitcnt vmcnt(0)')
        for i in range(4):
            a(f'v_lshlrev_b32 v{20 + i}, 16, v{20 + i}')
        a(f'v_mul_f32 v20, {L2E}, v20')
        a('v_exp_f32 v20, v20')
        a('s_nop 0')
        a('v_cvt_pk_bf16_f32 v5, v4, v20')
        a('v_and_b32 v20, 0xffff0000, v5')
        a('v_lshlrev_b32 v5, 16, v5')
        for i in range(4):
            a(f'v_mul_f32 v{20 + i}, v{20 + i}, v5')
        a(f'v_mul_f32 v20, {fbits(-LOG2E)}, v20')
        a(f'v_mul_f32 v21, {fbits(INV2PI)}, v21')
        a('v_add_f32 v34, v22, v22')
        a('v_add_f32 v35, v23, v23')
        self.cexp(24, 20, 21, 1, 6)
        self.cexp(30, 20, 21, 4, 6)
        self.cexp(32, 20, 21, 128, 6)
        self.cmul(26, 24, 24)
        self.cmul(28, 26, 24)
        self.stamp('kb0')

        def row(r):
            return ((r & 3) + 8 * (r >> 2)) * ROWP

        G, Y, E = [36, 38], [42, 44], 40

        def put(z, reg, base, off, negim):
            a(f'v_cvt_pk_bf16_f32 v{reg}, v{z}, {"-" if negim else ""}v{z + 1}')
            return f'ds_write_b32 v{base}, v{reg} offset:{off}'

        def two_chains(n, xoffs, yoffs):
            for i in range(n):
                x0, x1 = G[i & 1], G[(i + 1) & 1]
                w = [put(x0, 46, vA, xoffs[i], False)]
                self.cmul(x1, x0, 32)
                for k in range(2):
                    y0, y1 = Y[k], Y[k ^ 1]
                    w.append(put(y0, 47 + k, vR, yoffs[2 * i + k], True))
                    self.cmul(y1, y0, 30)
                for ln in w:
                    a(ln)

        a('v_mov_b32 v36, v34')
        a('v_mov_b32 v37, v35')
        a('v_mov_b32 v42, 1.0')
        a('v_mov_b32 v43, 0')
        a(f'v_add_u32 v{vR}, {KG_Y}, v{vA}')
        a(f'v_mov_b32 v10, v{vA}')
        a(f's_mov_b32 s{S_K}, 0')
        a.label('L_kg_chain')
        vA = 10
        two_chains(8, [(r + 4 * hh) * ROWP for r in range(4) for hh in range(2)], [j * ROWP for j in range(16)])
        vA = 8
        a(f'v_add_u32 v10, {8 * ROWP}, v10')
        a(f'v_add_u32 v{vR}, {16 * ROWP}, v{vR}')
        a(f's_add_u32 s{S_K}, s{S_K}, 1')
        a(f's_cmp_lt_u32 s{S_K}, 2')
        a('s_cbranch_scc1 L_kg_chain')
        a(put(G[0], 46, vA, row(12), False))
        for k, wk in enumerate((24, 26, 28)):
            self.cmul(G[0], 34, wk)
            self.cmul(G[1], G[0], 32)
            w = [put(G[0], 46, vA, row(8 + k), False), put(G[1], 47, vA, row(8 + k) + 4 * ROWP, False)]
            if k == 1:
                self.cmul(E, G[1], 32)
            for ln in w:
                a(ln)
        self.cmul(G[1], E, 32)
        w = [put(E, 46, vA, row(11), False), put(G[1], 47, vA, row(11) + 4 * ROWP, False)]
        for ln in w:
            a(ln)
        self.stamp('kg_ch')
        XA, YA, D, FR = 2, 3, 48, 64
        a(f'v_and_b32 v4, 31, v{V_LANE}')
        a(f'v_mul_u32_u24 v4, {ROWP}, v4')
        a(f'v_lshrrev_b32 v5, 5, v{V_LANE}')
        a('v_lshl_add_u32 v4, v5, 4, v4')
        a(f'v_add_u32 v{XA}, s{S_KGB}, v4')
        a(f'v_add_u32 v{YA}, {KG_Y}, v{XA}')
        a('s_waitcnt lgkmcnt(0)')

        def rd(s):
            a(f'ds_read_b128 {vr(FR + 8 * s, 4)}, v{XA} offset:{32 * s}')
            a(f'ds_read_b128 {vr(FR + 8 * s + 4, 4)}, v{YA} offset:{32 * s}')
        for s in range(6):
            rd(s)
        for s in range(8):
            a(f's_waitcnt lgkmcnt({10 if s < 3 else 2 * (7 - s)})')
            c = '0' if s == 0 else vr(D, 16)
            a(f'v_mfma_f32_32x32x16_bf16 {vr(D, 16)}, {vr(FR + 8 * s, 4)}, {vr(FR + 8 * s + 4, 4)}, {c}')
            if s + 6 < 8:
                rd(s + 6)
        a(f's_mov_b32 s{S_T0}, s{S_J}')
        a(f's_lshl_b32 s{S_T1}, s{S_T0}, 2')
        a(f's_add_u32 s{S_T1}, s{S_T1}, {M_KT}')
        a(f'v_mov_b32 v6, s{S_T1}')
        a(f'v_mov_b32 v7, s{S_TOK}')
        a('ds_write_b32 v6, v7')
        a(f'v_mov_b32 v10, {M_KT}')
        self.lds_spin(10, 12, 4, sleep=2)
        a(f's_lshl_b32 s{S_T1}, s{S_T0}, 12')
        a(f's_add_u32 s{S_T1}, s{S_T1}, {L_KPART}')
        a(f'v_lshlrev_b32 v11, 4, v{V_LANE}')
        a(f'v_add_u32 v12, s{S_T1}, v11')
        for i in range(4):
            a(f'ds_write_b128 v12, {vr(D + 4 * i, 4)} offset:{1024 * i}')
        a('s_waitcnt lgkmcnt(0)')
        a('ds_write_b32 v6, v7 offset:16')
        a('v_xor_b32 v6, 4, v6')
        a('v_xor_b32 v12, 4096, v12')
        self.lds_spin(6, 14, 1, off=16, sleep=1)
        for i in range(4):
            a(f'ds_read_b128 {vr(FR + 4 * i, 4)}, v12 offset:{1024 * i}')
        a(f's_mul_i32 s{S_KGB}, s{S_CH}, {KSP_SZ}')
        a(f's_add_u32 s{S_KGB}, s{S_KGB}, {L_KSP}')
        a(f'v_and_b32 v4, 31, v{V_LANE}')
        a('v_lshlrev_b32 v4, 3, v4')
        a('v_lshl_add_u32 v4, v5, 8, v4')
        a(f'v_add_u32 v4, s{S_KGB}, v4')
        a('s_waitcnt lgkmcnt(0)')
        for i in range(14):
            a(f'v_add_f32 v{D + i}, v{D + i}, v{FR + i}')
        for i in range(0, 14, 2):
            a(f'v_cvt_pk_bf16_f32 v{FR + 16 + i // 2}, v{D + i}, v{D + i + 1}')
        for r in range(13):
            op = 'ds_write_b16' if r % 2 == 0 else 'ds_write_b16_d16_hi'
            a(f'{op} v4, v{FR + 16 + r // 2} offset:{2 * HI0[r]}')
        self.stamp('kg_mf')
        a(f's_mul_i32 s{S_T3}, s{S_CH}, {R_SZ}')
        a(f's_lshl_b32 s{S_T1}, s{S_HF}, 11')
        a(f's_add_u32 s{S_T3}, s{S_T3}, s{S_T1}')
        a(f's_add_u32 s{S_T3}, s{S_T3}, {L_R}')
        a(f'v_lshlrev_b32 v8, 2, v{V_LANE}')
        a(f'v_add_u32 v8, s{S_T3}, v8')
        a(f's_lshl_b32 s{S_T1}, s{S_HF}, 10')
        a(f's_sub_u32 s{S_T1}, 2047, s{S_T1}')
        a(f'v_lshlrev_b32 v9, 1, v{V_LANE}')
        a(f'v_sub_u32 v9, s{S_T1}, v9')
        a('v_cvt_f32_i32 v9, v9')
        a('s_waitcnt lgkmcnt(0)')
        EB = 20

        def gather(k, qq):
            t = EB + 4 * k
            a(f'v_add_f32 v{t}, {fbits(-128.0 * qq)}, v9')
            a(f'v_add_f32 v{t + 1}, -1.0, v{t}')
            a(f'v_cvt_pk_bf16_f32 v{t}, v{t}, v{t + 1}')
            a(f'v_and_b32 v{t + 1}, 0xffff0000, v{t}')
            a(f'v_lshlrev_b32 v{t}, 16, v{t}')
            a(f'v_cvt_u32_f32 v{t}, v{t}')
            a(f'v_cvt_u32_f32 v{t + 1}, v{t + 1}')
            a(f'v_lshl_add_u32 v{t}, v{t}, 1, s{S_KGB}')
            a(f'v_lshl_add_u32 v{t + 1}, v{t + 1}, 1, s{S_KGB}')
            a(f'ds_read_u16 v{t + 2}, v{t}')
            a(f'ds_read_u16_d16_hi v{t + 3}, v{t + 1}')

        for batch in (range(0, 5), range(5, 9)):
            for k, qq in enumerate(batch):
                gather(k, qq)
            a('s_waitcnt lgkmcnt(0)')
            for k, qq in enumerate(batch):
                t = EB + 4 * k
                a(f'v_or_b32 v{t + 2}, v{t + 2}, v{t + 3}')
                if qq < 8:
                    a(f'ds_write_b32 v8, v{t + 2} offset:{256 * qq}')
                else:
                    a(f's_cmp_eq_u32 s{S_HF}, 0')
                    a(f's_cselect_b32 s{S_T1}, -1, 0')
                    a(f'v_and_b32 v{t + 2}, s{S_T1}, v{t + 2}')
                    a(f's_cselect_b32 s{S_T4}, 1, 0xff')
                    a(f's_mov_b32 s{S_T5}, 0')
                    a(f's_mov_b64 exec, s[{S_T4}:{S_T4 + 1}]')
                    a(f'ds_write_b32 v8, v{t + 2} offset:{256 * qq}')
                    a('s_mov_b64 exec, -1')
        a('s_waitcnt lgkmcnt(0)')
        for k in range(8):
            if k % 4 == 0:
                a(f'v_add_u32 v10, {256 * k}, v8')
            a(f'ds_read2_b32 {vr(EB + 2 * k, 2)}, v10 offset0:{64 * (k % 4)} offset1:{64 * (k % 4) + 1}')
        a('s_waitcnt lgkmcnt(0)')
        for k in range(8):
            a(f'v_alignbit_b32 v{EB + 2 * k}, v{EB + 2 * k + 1}, v{EB + 2 * k}, 16')
            a(f'ds_write_b32 v8, v{EB + 2 * k} offset:{R_O + 256 * k}')
        a(f's_cmp_eq_u32 s{S_HF}, 0')
        a('s_cbranch_scc1 L_gap1_join')
        a('v_mov_b32 v4, 0')
        a('s_mov_b64 exec, 0x7f')
        a(f'ds_write_b32 v8, v4 offset:{R_O + 2048}')
        a('s_mov_b64 exec, -1')
        self.stamp('kg_fin')
        a('s_branch L_gap1_join')

    def side_waves(self):
        a = self.a
        a.label('L_side')
        self.token()
        a(f's_cmp_eq_u32 s{S_WV}, 14')
        a('s_cbranch_scc1 L_gap1_join')
        a(f's_add_u32 s{S_T0}, s{S_INB}, {IB_L}')
        a(f'v_lshlrev_b32 v2, 4, v{V_LANE}')
        self.lanes(48)
        a(f'buffer_load_dwordx4 v[12:15], v2, {WSR}, s{S_T0} offen sc1')
        self.lanes(64)
        a(f'v_lshlrev_b32 v2, 14, v{V_LANE}')
        a(f's_lshl_b32 s{S_T0}, s{S_XC}, 11')
        a(f's_lshl_b32 s{S_T1}, s{S_IDX}, 2')
        a(f's_add_u32 s{S_T0}, s{S_T0}, s{S_T1}')
        a(f's_add_u32 s{S_T0}, s{S_T0}, {WS_INBOX + IB_X}')
        a(f's_xor_b32 s{S_T1}, s{S_TOK}, s{S_XCC}')
        a(f's_xor_b32 s{S_T1}, s{S_T1}, 0x80')
        a(f'v_mov_b32 v3, s{S_T1}')
        a(f'v_lshlrev_b32 v9, 2, v{V_LANE}')
        a(f's_add_u32 s{S_T2}, s{S_INB}, {IB_X}')
        a(f'v_add_u32 v9, s{S_T2}, v9')
        self.lanes(32)
        a(f'buffer_store_dword v3, v2, {WSR}, s{S_T0} offen sc1')
        self.lanes(64)
        a(f'v_mov_b32 v17, {M_F}')
        self.lds_spin(17, 12, 2, sleep=4)
        self.lanes(32)
        a(f's_mov_b32 s{S_CNT}, 0')
        a.label('L_x_poll')
        a(f'buffer_load_dword v8, v9, {WSR}, 0 offen sc1')
        a(f's_add_u32 s{S_CNT}, s{S_CNT}, 1')
        a('s_waitcnt vmcnt(0)')
        a(f'v_xor_b32 v7, s{S_TOK}, v8')
        a('v_and_b32 v7, -16, v7')
        a('v_cmp_ne_u32 vcc, 0x80, v7')
        a(f's_cmp_gt_u32 s{S_CNT}, {SPIN_MAX}')
        a('s_cbranch_scc1 L_x_ok')
        a('s_cbranch_vccnz L_x_poll')
        a.label('L_x_ok')
        a(f'v_cmp_ne_u32 vcc, s{S_T1}, v8')
        a('s_nop 1')
        a('s_cmp_eq_u64 vcc, 0')
        a(f's_cselect_b32 s{S_MODE}, 1, 0')
        self.lanes(64)
        a(f'v_mov_b32 v6, {M_MODE}')
        a(f'v_mov_b32 v10, s{S_MODE}')
        a(f'v_mov_b32 v11, s{S_TOK}')
        a('ds_write_b64 v6, v[10:11]')
        a('s_branch L_gap1_join')


    def u_load(self):
        a = self.a
        a(f'v_lshrrev_b32 v3, 3, v{V_LANE}')
        a('v_lshlrev_b32 v3, 10, v3')
        a(f'v_and_b32 v2, 7, v{V_LANE}')
        a('v_lshl_add_u32 v3, v2, 4, v3')
        a(f's_lshl_b32 s{S_T0}, s{S_IDX}, 16')
        a(f's_lshl_b32 s{S_T1}, s{S_XC}, 7')
        a(f's_add_u32 s{S_T2}, s{S_T0}, s{S_T1}')
        for i in range(8):
            a(f's_mov_b32 m0, {L_USTAGE + 1024 * i}')
            a(f's_add_u32 s{S_T1}, s{S_T2}, {8192 * i}')
            a(f'buffer_load_dwordx4 v3, s[{R_U}:{R_U + 3}], s{S_T1} offen lds')

    def u_transpose(self):
        a = self.a
        B = 96
        a(f'v_lshrrev_b32 v2, 4, v{V_LANE}')
        a('v_lshlrev_b32 v2, 10, v2')
        a(f'v_bfe_u32 v3, v{V_LANE}, 2, 2')
        a('v_lshl_add_u32 v2, v3, 7, v2')
        a(f'v_and_b32 v3, 3, v{V_LANE}')
        a('v_lshl_add_u32 v2, v3, 3, v2')
        a(f'v_add_u32 v2, {L_USTAGE}, v2')
        a('s_waitcnt vmcnt(0)')
        for cgp in range(4):
            for oq in range(2):
                r = B + 8 * cgp + 4 * oq
                a(f'ds_read_b64_tr_b16 {vr(r, 2)}, v2 offset:{oq * 4096 + cgp * 32}')
                a(f'ds_read_b64_tr_b16 {vr(r + 2, 2)}, v2 offset:{oq * 4096 + cgp * 32 + 512}')
            if cgp == 2:
                a('s_waitcnt lgkmcnt(4)')
        a(f'v_and_b32 v3, 15, v{V_LANE}')
        a(f'v_lshrrev_b32 v10, 4, v{V_LANE}')
        a('v_and_b32 v11, 7, v3')
        a('v_xor_b32 v10, v10, v11')
        a('v_lshlrev_b32 v10, 4, v10')
        a('v_lshl_add_u32 v3, v3, 7, v10')
        a(f'v_add_u32 v3, {L_USTAGE}, v3')
        a('v_xor_b32 v10, 64, v3')
        a('s_waitcnt lgkmcnt(0)')
        for cgp in range(4):
            a(f'ds_write_b128 v3, {vr(B + 8 * cgp, 4)} offset:{cgp * 2048}')
            a(f'ds_write_b128 v10, {vr(B + 8 * cgp + 4, 4)} offset:{cgp * 2048}')
        a(f'v_lshlrev_b32 v10, 4, v{V_LANE}')
        a(f'v_add_u32 v10, {L_USTAGE}, v10')
        a('s_waitcnt lgkmcnt(0)')
        for k in range(8):
            a(f'ds_read_b128 {vr(B + 4 * k, 4)}, v10 offset:{1024 * k}')
        a(f'v_lshrrev_b32 v2, 3, v{V_LANE}')
        a(f'v_and_b32 v3, 7, v{V_LANE}')
        a('v_xor_b32 v3, v3, v2')
        a('v_lshlrev_b32 v2, 12, v2')
        a('v_lshl_add_u32 v2, v3, 4, v2')
        a(f's_lshl_b32 s{S_T0}, s{S_XC}, 18')
        a(f's_lshl_b32 s{S_T1}, s{S_IDX}, 7')
        a(f's_add_u32 s{S_T0}, s{S_T0}, s{S_T1}')
        a(f's_add_u32 s{S_T0}, s{S_T0}, {WS_UT}')
        a('s_waitcnt lgkmcnt(0)')
        lines = []
        for k in range(8):
            lines.append(f'buffer_store_dwordx4 {vr(B + 4 * k, 4)}, v2, {WSR}, s{S_T0} offen {{M}}')
            lines.append(f's_add_u32 s{S_T0}, s{S_T0}, {8 * 4096}')
        self.store_mode(lines)

    def finish(self):
        a = self.a
        a.label('L_finish')
        if self.prof:
            a('s_waitcnt vmcnt(0)')
            self.stamp('end')
            a('s_waitcnt lgkmcnt(0)')
            a(f's_lshl_b32 s{S_T0}, s{S_WV}, 5')
            a(f's_lshl_b32 s{S_T1}, s2, 9')
            a(f's_add_u32 s{S_T0}, s{S_T0}, s{S_T1}')
            a(f's_add_u32 s{S_T0}, s{S_T0}, {WS_PROF}')
            for i in range(7):
                a(f'v_mov_b32 v{2 + i}, s{S_PROF + 2 * i}')
            a(f'v_mov_b32 v9, s{S_XCC}')
            a('v_mov_b32 v10, 0')
            a('s_mov_b64 exec, 1')
            a(f'buffer_store_dwordx4 v[2:5], v10, {WSR}, s{S_T0} offen')
            a(f'buffer_store_dwordx4 v[6:9], v10, {WSR}, s{S_T0} offen offset:16')
            a('s_mov_b64 exec, -1')
        a('s_cmp_lg_u32 s2, 0')
        a('s_cbranch_scc1 L_exit')
        a(f's_cmp_lg_u32 s{S_WV}, 0')
        a('s_cbranch_scc1 L_exit')
        a(f'v_mov_b32 v2, s{S_TOK}')
        a(f'v_mov_b32 v3, {WS_G}')
        a('s_mov_b64 exec, 1')
        a(f'buffer_store_dword v2, v3, {WSR}, 0 offen sc1')
        a.label('L_exit')
        a('s_endpgm')

    def build(self):
        import phases3
        a = self.a
        self.prologue()
        self.loader_waves()
        a.label('L_notloader')
        a('s_waitcnt lgkmcnt(0)')
        self.common_setup()
        a(f's_cmp_ge_u32 s{S_WV}, 14')
        a('s_cbranch_scc1 L_side')
        a(f's_cmp_ge_u32 s{S_WV}, 10')
        a('s_cbranch_scc1 L_kgen')
        self.gemm_waves()
        self.kgen_waves()
        self.side_waves()
        a.label('L_gap1_join')
        a('s_setprio 0')
        a('s_waitcnt lgkmcnt(0)')
        a('s_barrier')
        phases3.rest(self)
        self.finish()
        a.label('L_code_end')
        a('s_endpgm')
        return self.wrap()

    def wrap(self):
        head = open(os.path.join(os.path.dirname(os.path.abspath(__file__)), 'header.txt')).read()
        body = self.a.text()
        txt = head + f'; @launch grid=(256,1,1) block=(1024,1,1) lds={LDS_BYTES}\n'
        txt += f'.amdgcn_target "amdgcn-amd-amdhsa--gfx950"\n.text\n.globl {KERNEL}\n.p2align 8\n.type {KERNEL},@function\n{KERNEL}:\n'
        txt += body
        txt += f'''.section .rodata,"a"
.p2align 6
.amdhsa_kernel {KERNEL}
  .amdhsa_next_free_vgpr 128
  .amdhsa_next_free_sgpr 102
  .amdhsa_accum_offset 128
  .amdhsa_group_segment_fixed_size 0
  .amdhsa_kernarg_size 104
  .amdhsa_user_sgpr_count 2
  .amdhsa_user_sgpr_kernarg_segment_ptr 1
  .amdhsa_system_sgpr_workgroup_id_x 1
  .amdhsa_float_denorm_mode_32 3
.end_amdhsa_kernel
'''
        return txt, body


def main():
    import argparse
    ap = argparse.ArgumentParser()
    ap.add_argument('-o', default=f'cdna_kernels/{NAME}.s')
    ap.add_argument('--stop', default=None)
    ap.add_argument('--exp', default='')
    ap.add_argument('--prof', default='')
    ap.add_argument('--points', default='entry,gemm,attn0,attn1,conv,end')
    args = ap.parse_args()
    g = Gen(stop=args.stop, prof=args.prof, points=args.points, exp=args.exp)
    txt, body = g.build()
    probs = check_hazards(body)
    for p in probs:
        print('HAZARD', p)
    open(args.o, 'w').write(txt)
    n = sum(1 for l in body.split('\n') if l.startswith('  ') and not l.strip().startswith(';'))
    print(f'wrote {args.o}: {n} instructions, {len(probs)} hazard findings')
    return 1 if probs else 0


if __name__ == '__main__':
    sys.exit(main())
```

```python
from asmlib import vr
from gen2 import *

S_DSKV = 85


def toff(v):
    return (v >> 1) * 4096 + (v & 1) * 1024


def attn_join(g):
    a = g.a
    a(f'v_lshlrev_b32 v{A_L16}, 4, v{V_LANE}')
    a(f's_and_b32 s{S_T0}, s{S_WV}, 7')
    a(f's_lshl_b32 s{S_T0}, s{S_T0}, 10')
    a(f's_add_u32 s{S_T0}, s{S_T0}, {L_QS}')
    a(f'v_add_u32 v2, s{S_T0}, v{A_L16}')
    a(f'ds_read_b128 {vr(A_Q, 4)}, v2')
    a(f'v_mov_b32 v7, {M_MODE}')
    a('ds_read_b32 v7, v7')
    a('s_waitcnt lgkmcnt(0)')
    a(f'v_readfirstlane_b32 s{S_MODE}, v7')
    a('s_barrier')
    g.stamp('attn0')
    a(f's_cmp_ge_u32 s{S_WV}, 8')
    a('s_cbranch_scc1 L_conv')


def attn_setup(g, start):
    a = g.a
    a(f'v_lshlrev_b32 v{A_L16}, 4, v{V_LANE}')
    a(f'v_lshlrev_b32 v{A_PA}, 2, v{V_LANE}')
    a(f's_add_u32 s{S_T0}, s{S_INB}, {IB_KV}')
    a(f'v_add_u32 v{A_PA}, s{S_T0}, v{A_PA}')
    a(f'v_add_u32 v{A_KA}, {start}, v{A_L16}')
    a(f'ds_read_b128 {vr(A_K[0], 4)}, v{A_KA}')
    a(f's_lshl_b32 s{S_T0}, s{S_XC}, 3')
    a(f's_lshl_b64 s[{S_IGN}:{S_IGN + 1}], 0xff, s{S_T0}')
    a(f'v_lshrrev_b32 v2, 5, v{V_LANE}')
    a('v_lshlrev_b32 v2, 8, v2')
    a(f'v_and_b32 v3, 15, v{V_LANE}')
    a('v_lshl_add_u32 v2, v3, 4, v2')
    a(f'v_add_u32 v{A_VA}, {L_V + start}, v2')
    a(f'v_and_b32 v2, 27, v{V_LANE}')
    a('v_cmp_eq_u32 vcc, 16, v2')
    a('v_mov_b32 v3, 0x3f803f80')
    a('s_nop 0')
    a('v_cndmask_b32 v2, 0, v3, vcc')
    for i in range(16):
        a(f'v_mov_b32 v{A_V[0] + i}, v2')
    a(f's_mov_b64 exec, s[{S_MASK}:{S_MASK + 1}]')
    a(f'ds_read_b128 {vr(A_V[0], 4)}, v{A_VA}')
    a(f'ds_read_b128 {vr(A_V[0] + 4, 4)}, v{A_VA} offset:512')
    a('s_mov_b64 exec, -1')
    for i in range(16):
        a(f'v_mov_b32 v{A_O + i}, 0')
    for i in range(8):
        a(f'v_mov_b32 v{A_P + i}, 0')
    a('s_waitcnt lgkmcnt(2)')
    a(f'v_mfma_f32_32x32x16_bf16 {vr(A_S[0], 16)}, {vr(A_K[0], 4)}, {vr(A_Q, 4)}, 0')
    a('s_nop 7')
    a('s_nop 3')


def attn_tile(g, u, top=None, mid=None, nxt_off=None):
    a = g.a
    if nxt_off is None:
        nxt_off = toff(u + 1)
    cur = u & 1
    nxt = cur ^ 1
    S, P = A_S[cur], A_P

    def ex(i):
        a(f'v_exp_f32 v{S + i}, v{S + i}')

    def cv(k):
        a(f'v_cvt_pk_bf16_f32 v{P + k}, v{S + 2 * k}, v{S + 2 * k + 1}')

    if top:
        top()
    a(f'ds_read_b128 {vr(A_K[nxt], 4)}, v{A_KA} offset:{nxt_off}')
    ex(0); ex(1); ex(2); cv(0); ex(3)
    a(f'v_mfma_f32_32x32x16_bf16 {vr(A_O, 16)}, {vr(A_V[nxt] + 4, 4)}, {vr(P + 4, 4)}, {vr(A_O, 16)}')
    a(f's_mov_b64 exec, s[{S_MASK}:{S_MASK + 1}]')
    a(f'ds_read_b128 {vr(A_V[nxt], 4)}, v{A_VA} offset:{nxt_off}')
    a(f'ds_read_b128 {vr(A_V[nxt] + 4, 4)}, v{A_VA} offset:{nxt_off + 512}')
    a('s_mov_b64 exec, -1')
    ex(4); cv(1); ex(5); ex(6); cv(2)
    a('s_waitcnt lgkmcnt(2)')
    a(f'v_mfma_f32_32x32x16_bf16 {vr(A_S[nxt], 16)}, {vr(A_K[nxt], 4)}, {vr(A_Q, 4)}, 0')
    ex(7); ex(8); cv(3); ex(9); ex(10)
    a(f'v_mfma_f32_32x32x16_bf16 {vr(A_O, 16)}, {vr(A_V[cur], 4)}, {vr(P, 4)}, {vr(A_O, 16)}')
    if mid:
        mid()
    cv(4); ex(11); ex(12); cv(5); ex(13); ex(14); ex(15); cv(6); cv(7)


def dma_waves_only(g, body, name):
    a = g.a
    a(f's_and_b32 s{S_T0}, s{S_WV}, 12')
    a(f's_cmp_eq_u32 s{S_T0}, 4')
    a(f's_cbranch_scc0 {name}')
    body()
    a.label(name)


def attn_local(g):
    a = g.a
    a(f's_cmp_lt_u32 s{S_WV}, 4')
    a('s_cbranch_scc0 L_at_norf')
    a(f'v_and_b32 v2, 1, v{V_LANE}')
    a('v_lshlrev_b32 v2, 3, v2')
    a(f'v_lshrrev_b32 v3, 1, v{V_LANE}')
    a('v_add_u32 v2, v2, v3')
    a('v_lshlrev_b32 v2, 11, v2')
    a(f'v_mov_b32 v3, s{S_TOK}')
    a('s_setprio 3')
    a('s_waitcnt vmcnt(0)')
    g.stamp('st_rem')
    a('s_mov_b64 exec, 0xffff')
    a(f'buffer_store_dword v3, v2, {WSR}, s{S_A} offen sc1')
    a('s_mov_b64 exec, -1')
    a('s_setprio 0')
    a.label('L_at_norf')
    attn_setup(g, 0)

    def blocks(*js):
        def f():
            for j in js:
                g.kv_dma(j, WS_KR, WS_VR)
        return f

    def first():
        g.ws_spin(A_PA, A_PV, 64, 'rem', preissued=True, ignore=S_IGN)
        g.stamp('rem_ok')
        blocks(2, 3)()

    def r1():
        g.stamp('r1a')
        a('s_waitcnt vmcnt(0)')
        a('s_barrier')
        g.stamp('r1b')

    mids = {1: lambda: dma_waves_only(g, first, 'L_at_d0'),
            2: lambda: dma_waves_only(g, blocks(4, 5), 'L_at_d1'),
            3: lambda: dma_waves_only(g, blocks(6, 7), 'L_at_d2')}
    for u in range(8):
        attn_tile(g, u, r1 if u == 7 else None, mids.get(u), nxt_off=(u + 1) * 1024)
    a(f'v_add_u32 v{A_KA}, 8192, v{A_KA}')
    a(f'v_add_u32 v{A_VA}, 8192, v{A_VA}')


def attn_shared(g):
    a = g.a
    a.label('L_at_shared')

    def blocks(*js):
        def f():
            for j in js:
                g.kv_dma(j, WS_KR, WS_VR)
        return f

    def yflags():
        a(f's_cmp_ge_u32 s{S_WV}, 8')
        a('s_cbranch_scc0 L_at_noyf')
        a(f'v_lshlrev_b32 v2, 14, v{V_LANE}')
        a(f'v_mov_b32 v3, s{S_TOK}')
        a('s_waitcnt vmcnt(0)')
        g.lanes(8)
        g.store_mode([f'buffer_store_dword v3, v2, {WSR}, s{S_A} offen {{M}}'])
        g.lanes(64)
        a.label('L_at_noyf')

    mids = {0: lambda: (dma_waves_only(g, blocks(8, 9), 'L_at_d3'), yflags()),
            1: lambda: dma_waves_only(g, blocks(10, 11), 'L_at_d4'),
            2: lambda: dma_waves_only(g, blocks(12, 13), 'L_at_d5'),
            3: lambda: dma_waves_only(g, blocks(14, 15), 'L_at_d6')}
    for v in range(4):
        attn_tile(g, v, None, mids[v])
    a(f'v_add_u32 v{A_KA}, 8192, v{A_KA}')
    a(f'v_add_u32 v{A_VA}, 8192, v{A_VA}')
    a(f's_mov_b32 s{S_J}, 1')
    a('.p2align 6')
    a.label('L_at_loop')
    a(f's_cmp_ge_u32 s{S_J}, 2')
    a('s_cbranch_scc1 L_at_hook')
    a.label('L_at_back')

    def r2():
        a(f's_cmp_eq_u32 s{S_J}, 1')
        a('s_cbranch_scc1 L_at_r2')
        a.label('L_at_r2back')
    for u in range(8):
        attn_tile(g, u, r2 if u == 7 else None)
    a(f'v_add_u32 v{A_KA}, 16384, v{A_KA}')
    a(f'v_add_u32 v{A_VA}, 16384, v{A_VA}')
    a(f's_add_u32 s{S_J}, s{S_J}, 1')
    a(f's_cmp_lt_u32 s{S_J}, 4')
    a('s_cbranch_scc1 L_at_loop')
    a(f'v_mfma_f32_32x32x16_bf16 {vr(A_O, 16)}, {vr(A_V[1] + 4, 4)}, {vr(A_P + 4, 4)}, {vr(A_O, 16)}')
    a('s_waitcnt lgkmcnt(0)')


def attn_hooks(g):
    a = g.a
    a.label('L_at_r2')
    g.stamp('r2a')
    a('s_waitcnt vmcnt(0)')
    a('s_barrier')
    g.stamp('r2b')
    a('s_branch L_at_r2back')
    a.label('L_at_hook')
    a(f's_cmp_eq_u32 s{S_J}, 2')
    a('s_cbranch_scc0 L_at_hook3')
    if 'notouch' not in g.exp:
        a(f's_cmp_eq_u32 s{S_WV}, 0')
        a('s_cbranch_scc0 L_at_noot')
        a(f's_cmp_eq_u32 s{S_MODE}, 1')
        a('s_cbranch_scc0 L_at_back')
        a(f'v_lshrrev_b32 v2, 3, v{V_LANE}')
        a('v_lshlrev_b32 v2, 15, v2')
        a(f'v_and_b32 v3, 7, v{V_LANE}')
        a('v_lshl_add_u32 v2, v3, 7, v2')
        a(f's_lshl_b32 s{S_T0}, s{S_XC}, 18')
        a(f's_lshl_b32 s{S_T1}, s{S_H}, 10')
        a(f's_add_u32 s{S_T0}, s{S_T0}, s{S_T1}')
        a(f's_add_u32 s{S_T0}, s{S_T0}, {WS_OF}')
        a(f'buffer_load_dword v10, v2, {WSR}, s{S_T0} offen')
        a('s_branch L_at_back')
        a.label('L_at_noot')
    a(f's_cmp_lt_u32 s{S_WV}, 8')
    a('s_cbranch_scc1 L_at_back')
    a(f'v_lshlrev_b32 v2, 2, v{V_LANE}')
    a(f's_add_u32 s{S_T0}, s{S_INB}, {IB_Y}')
    a(f'v_add_u32 v2, s{S_T0}, v2')
    g.ws_spin(2, 3, 64, 'yf')
    a(f'v_lshrrev_b32 v2, 4, v{V_LANE}')
    a('v_lshlrev_b32 v2, 12, v2')
    a(f'v_bfe_u32 v3, v{V_LANE}, 2, 2')
    a('v_lshl_add_u32 v2, v3, 8, v2')
    a(f'v_and_b32 v3, 3, v{V_LANE}')
    a('v_lshl_add_u32 v2, v3, 4, v2')
    a(f's_lshl_b32 s{S_T0}, s{S_XC}, 18')
    a(f's_lshr_b32 s{S_T1}, s{S_IDX}, 3')
    a(f's_lshl_b32 s{S_T1}, s{S_T1}, 10')
    a(f's_add_u32 s{S_T0}, s{S_T0}, s{S_T1}')
    a(f's_and_b32 s{S_T1}, s{S_IDX}, 3')
    a(f's_lshl_b32 s{S_T1}, s{S_T1}, 6')
    a(f's_add_u32 s{S_T0}, s{S_T0}, s{S_T1}')
    a(f's_and_b32 s{S_T2}, s{S_WV}, 7')
    a(f's_lshl_b32 s{S_T1}, s{S_T2}, 15')
    a(f's_add_u32 s{S_T0}, s{S_T0}, s{S_T1}')
    a(f's_add_u32 s{S_T0}, s{S_T0}, {WS_YT}')
    a(f's_mul_i32 s{S_T3}, s{S_T2}, {2 * 1040}')
    for i in range(2):
        a(f's_add_u32 m0, s{S_T3}, {L_YS + i * 1040}')
        a(f's_add_u32 s{S_T1}, s{S_T0}, {i * 16384}')
        a(f'buffer_load_dwordx4 v2, {WSR}, s{S_T1} offen sc1 lds')
    a('s_branch L_at_back')

    a.label('L_at_hook3')
    a('s_waitcnt vmcnt(0)')
    a('s_barrier')
    a(f'v_lshrrev_b32 v2, 2, v{V_LANE}')
    a('v_and_b32 v2, 7, v2')
    a('v_lshlrev_b32 v2, 10, v2')
    a(f'v_lshrrev_b32 v3, 5, v{V_LANE}')
    a('v_lshl_add_u32 v2, v3, 6, v2')
    a(f'v_and_b32 v3, 3, v{V_LANE}')
    a('v_lshl_add_u32 v2, v3, 4, v2')
    a(f's_lshl_b32 s{S_T0}, s{S_WV}, 15')
    a(f's_lshr_b32 s{S_T1}, s{S_IDX}, 2')
    a(f's_lshl_b32 s{S_T1}, s{S_T1}, 7')
    a(f's_add_u32 s{S_T0}, s{S_T0}, s{S_T1}')
    a(f's_lshl_b32 s{S_T2}, s{S_WV}, 12')
    a(f's_cmp_ge_u32 s{S_WV}, 8')
    a(f's_cselect_b32 s{S_T3}, 32768, 0')
    a(f's_add_u32 s{S_T2}, s{S_T2}, s{S_T3}')
    for i in range(4):
        a(f's_add_u32 m0, s{S_T2}, {1024 * i}')
        a(f's_add_u32 s{S_T1}, s{S_T0}, {8192 * i}')
        a(f'buffer_load_dwordx4 v2, s[{R_WO}:{R_WO + 3}], s{S_T1} offen lds')
    a(f's_cmp_lt_u32 s{S_WV}, 8')
    a('s_cbranch_scc1 L_at_back')
    Y0 = 96
    a(f's_and_b32 s{S_T2}, s{S_WV}, 7')
    a(f'v_and_b32 v3, 7, v{V_LANE}')
    a('v_mul_u32_u24 v10, 2080, v3')
    a(f'v_bfe_u32 v11, v{V_LANE}, 5, 1')
    a('v_lshl_add_u32 v10, v11, 6, v10')
    a(f'v_bfe_u32 v11, v{V_LANE}, 3, 2')
    a('v_lshl_add_u32 v10, v11, 1, v10')
    a(f's_bfe_u32 s{S_T0}, s{S_IDX}, 0x10002')
    a(f's_lshl_b32 s{S_T0}, s{S_T0}, 3')
    a(f's_lshr_b32 s{S_T1}, s{S_T2}, 1')
    a(f's_lshl_b32 s{S_T1}, s{S_T1}, 4')
    a(f's_add_u32 s{S_T0}, s{S_T0}, s{S_T1}')
    a(f's_and_b32 s{S_T1}, s{S_T2}, 1')
    a(f's_lshl_b32 s{S_T1}, s{S_T1}, 7')
    a(f's_add_u32 s{S_T0}, s{S_T0}, s{S_T1}')
    a(f's_add_u32 s{S_T0}, s{S_T0}, {L_YS}')
    a(f'v_add_u32 v10, s{S_T0}, v10')
    for e in range(8):
        op = 'ds_read_u16' if e % 2 == 0 else 'ds_read_u16_d16_hi'
        a(f'{op} v{Y0 + 4 + e}, v10 offset:{(e >> 2) * 1040 + (e & 3) * 256}')
    a(f'v_lshrrev_b32 v2, 3, v{V_LANE}')
    a(f's_lshl_b32 s{S_T1}, s{S_T2}, 3')
    a(f'v_add_u32 v2, s{S_T1}, v2')
    a('v_lshlrev_b32 v2, 11, v2')
    a('v_lshl_add_u32 v2, v3, 4, v2')
    a(f's_lshl_b32 s{S_T0}, s{S_IDX}, 17')
    a(f's_lshl_b32 s{S_T1}, s{S_XC}, 7')
    a(f's_add_u32 s{S_T0}, s{S_T0}, s{S_T1}')
    a(f's_add_u32 s{S_T0}, s{S_T0}, 1024')
    a('s_waitcnt lgkmcnt(0)')
    for i in range(4):
        a(f'v_or_b32 v{Y0 + i}, v{Y0 + 4 + 2 * i}, v{Y0 + 5 + 2 * i}')
    a(f'buffer_store_dwordx4 {vr(Y0, 4)}, v2, s[{R_OUT}:{R_OUT + 3}], s{S_T0} offen {g.outmod}')
    a('s_branch L_at_back')


def attn_finish(g):
    a = g.a
    a(f's_and_b32 s{S_T0}, s{S_WV}, 3')
    a(f's_mul_i32 s{S_T0}, s{S_T0}, {PART_SZ}')
    a(f's_bfe_u32 s{S_T1}, s{S_WV}, 0x10002')
    a(f's_lshl_b32 s{S_T1}, s{S_T1}, 16')
    a(f's_add_u32 s{S_T0}, s{S_T0}, s{S_T1}')
    a(f's_add_u32 s{S_T0}, s{S_T0}, {L_HALF[0]}')
    a(f'v_add_u32 v2, s{S_T0}, v{A_L16}')
    a(f'v_lshlrev_b32 v3, 2, v{V_LANE}')
    a(f'v_add_u32 v3, s{S_T0}, v3')
    a(f's_cmp_lt_u32 s{S_WV}, 8')
    a('s_cbranch_scc1 L_at_recv')
    a('s_nop 1')
    a(f'ds_write_b128 v2, {vr(A_O, 4)}')
    a(f'ds_write_b128 v2, {vr(A_O + 4, 4)} offset:1024')
    a(f'ds_write_b32 v3, v{A_O + 8} offset:2048')
    a('s_waitcnt vmcnt(0) lgkmcnt(0)')
    a('s_barrier')
    g.stamp('attn1')
    a('s_branch L_e1')
    a.label('L_at_recv')
    a('s_waitcnt vmcnt(0)')
    a('s_barrier')
    g.stamp('attn1')
    a(f'ds_read_b128 {vr(A_S[0], 4)}, v2')
    a(f'ds_read_b128 {vr(A_S[0] + 4, 4)}, v2 offset:1024')
    a(f'ds_read_b32 v{A_S[0] + 8}, v3 offset:2048')
    a('s_waitcnt lgkmcnt(0)')
    for i in range(9):
        a(f'v_add_f32 v{A_O + i}, v{A_O + i}, v{A_S[0] + i}')
    a(f's_mov_b32 s{S_J}, 0')
    a.label('L_at_norm')
    a(f'v_rcp_f32 v2, v{A_O + 8}')
    a(f's_mov_b32 s{S_T6}, {fbits(2.0 ** -40)}')
    a(f's_mov_b32 s{S_T7}, {fbits(2.0 ** 100)}')
    for i in range(8):
        a(f'v_mul_f32 v{A_P + i}, v{A_O + i}, v2')
    a(f'v_add_f32 v3, |v{A_P}|, |v{A_P + 1}|')
    for i in range(2, 8):
        a(f'v_add_f32 v3, v3, |v{A_P + i}|')
    a(f'v_cmp_nle_f32 vcc, s{S_T6}, v{A_O + 8}')
    a(f'v_cmp_nge_f32 s[{S_T0}:{S_T0 + 1}], s{S_T7}, v{A_O + 8}')
    a(f'v_cmp_nge_f32 s[{S_T2}:{S_T2 + 1}], s{S_T7}, v3')
    a('s_nop 1')
    a(f's_or_b64 vcc, vcc, s[{S_T0}:{S_T0 + 1}]')
    a(f's_or_b64 vcc, vcc, s[{S_T2}:{S_T2 + 1}]')
    a(f's_cmp_eq_u32 s{S_J}, 1')
    a('s_cbranch_scc1 L_at_normok')
    a('s_cbranch_vccnz L_at_fallback')
    a.label('L_at_normok')
    for k in range(4):
        a(f'v_cvt_pk_bf16_f32 v{A_P + k}, v{A_P + 2 * k}, v{A_P + 2 * k + 1}')
    a(f's_lshl_b32 s{S_T0}, s{S_XC}, 3')
    a(f's_add_u32 s{S_T0}, s{S_T0}, s{S_WV}')
    a(f's_lshl_b32 s{S_T0}, s{S_T0}, 5')
    a(f's_add_u32 s{S_T0}, s{S_T0}, s{S_H}')
    a(f's_lshl_b32 s{S_T0}, s{S_T0}, 10')
    a(f's_add_u32 s{S_T0}, s{S_T0}, {WS_OF}')
    g.store_mode([f'buffer_store_dwordx4 {vr(A_P, 4)}, v{A_L16}, {WSR}, s{S_T0} offen {{M}}'])
    g.stamp('ost')
    a(f's_lshr_b32 s{S_T0}, s{S_WV}, 1')
    a(f's_lshl_b32 s{S_T0}, s{S_T0}, 14')
    a(f's_lshl_b32 s{S_T1}, s{S_XC}, 11')
    a(f's_add_u32 s{S_T0}, s{S_T0}, s{S_T1}')
    a(f's_lshl_b32 s{S_T1}, s{S_H}, 3')
    a(f's_add_u32 s{S_T0}, s{S_T0}, s{S_T1}')
    a(f's_and_b32 s{S_T1}, s{S_WV}, 1')
    a(f's_lshl_b32 s{S_T1}, s{S_T1}, 2')
    a(f's_add_u32 s{S_T0}, s{S_T0}, s{S_T1}')
    a(f's_add_u32 s{S_T0}, s{S_T0}, {WS_INBOX + IB_O}')
    a(f'v_lshlrev_b32 v6, 16, v{V_LANE}')
    a(f'v_mov_b32 v7, s{S_TOK}')
    a('s_waitcnt vmcnt(0)')
    g.lanes(8)
    g.store_mode([f'buffer_store_dword v7, v6, {WSR}, s{S_T0} offen {{M}}'])
    g.lanes(64)
    g.stamp('oflag')
    a(f's_cmp_eq_u32 s{S_WV}, 0')
    a('s_cbranch_scc0 L_e1')
    a(f'v_lshlrev_b32 v2, 2, v{V_LANE}')
    a(f's_add_u32 s{S_T0}, s{S_INB}, {IB_O}')
    a(f'v_add_u32 v2, s{S_T0}, v2')
    g.ws_spin(2, 3, 64, 'of')
    g.stamp('of_ok')
    a('s_branch L_e1')


def attn_fallback(g):
    a = g.a
    S, C = A_S[0], A_S[1]

    def src():
        a(f's_lshr_b32 s{S_T0}, s{S_K}, 2')
        a(f's_lshl_b32 s{S_T1}, s{S_XC}, 1')
        a(f's_add_u32 s{S_T1}, s{S_T1}, s{S_T0}')
        a(f's_and_b32 s{S_T1}, s{S_T1}, 15')
        a(f's_lshl_b32 s{S_T1}, s{S_T1}, 12')
        a(f's_and_b32 s{S_T2}, s{S_K}, 3')
        a(f's_lshl_b32 s{S_T2}, s{S_T2}, 10')
        a(f's_add_u32 s{S_T1}, s{S_T1}, s{S_T2}')
        a(f's_lshl_b32 s{S_T2}, s{S_H}, 16')
        a(f's_add_u32 s{S_T1}, s{S_T1}, s{S_T2}')
        a(f's_cmp_lt_u32 s{S_T0}, 2')
        a(f's_cselect_b32 s{S_T2}, {WS_KL - WS_KR}, 0')
        a(f's_add_u32 s{S_T1}, s{S_T1}, s{S_T2}')
        a(f's_add_u32 s{S_T3}, s{S_T1}, {WS_VR}')
        a(f's_add_u32 s{S_T1}, s{S_T1}, {WS_KR}')

    assert WS_KL - WS_KR == WS_VL - WS_VR
    a.label('L_at_fallback')
    a(f'v_mov_b32 v2, {fbits(-3.0e38)}')
    a(f's_mov_b32 s{S_K}, 0')
    a.label('L_fb_max')
    src()
    a(f'buffer_load_dwordx4 {vr(A_K[0], 4)}, v{A_L16}, {WSR}, s{S_T1} offen sc1')
    a('s_waitcnt vmcnt(0)')
    a(f'v_mfma_f32_32x32x16_bf16 {vr(S, 16)}, {vr(A_K[0], 4)}, {vr(A_Q, 4)}, 0')
    a('s_nop 7')
    a('s_nop 3')
    for i in range(0, 16, 2):
        a(f'v_max3_f32 v2, v2, v{S + i}, v{S + i + 1}')
    a(f's_add_u32 s{S_K}, s{S_K}, 1')
    a(f's_cmp_lt_u32 s{S_K}, 64')
    a('s_cbranch_scc1 L_fb_max')
    a('v_mov_b32 v3, v2')
    a('s_nop 1')
    a('v_permlane32_swap_b32 v2, v3')
    a('s_nop 1')
    a('v_max_f32 v2, v2, v3')
    for i in range(16):
        a(f'v_sub_f32 v{C + i}, 0, v2')
    for i in range(16):
        a(f'v_mov_b32 v{A_O + i}, 0')
    a(f'v_lshrrev_b32 v2, 5, v{V_LANE}')
    a('v_lshlrev_b32 v2, 8, v2')
    a(f'v_and_b32 v3, 15, v{V_LANE}')
    a(f'v_lshl_add_u32 v{A_VA}, v3, 4, v2')
    a(f's_mov_b32 s{S_K}, 0')
    a.label('L_fb_sum')
    src()
    a(f'buffer_load_dwordx4 {vr(A_K[0], 4)}, v{A_L16}, {WSR}, s{S_T1} offen sc1')
    a(f's_mov_b64 exec, s[{S_MASK}:{S_MASK + 1}]')
    a(f'buffer_load_dwordx4 {vr(A_V[0], 4)}, v{A_VA}, {WSR}, s{S_T3} offen sc1')
    a(f'buffer_load_dwordx4 {vr(A_V[0] + 4, 4)}, v{A_VA}, {WSR}, s{S_T3} offen offset:512 sc1')
    a('s_mov_b64 exec, -1')
    a('s_waitcnt vmcnt(0)')
    a(f'v_mfma_f32_32x32x16_bf16 {vr(S, 16)}, {vr(A_K[0], 4)}, {vr(A_Q, 4)}, {vr(C, 16)}')
    a('s_nop 7')
    a('s_nop 3')
    for i in range(16):
        a(f'v_exp_f32 v{S + i}, v{S + i}')
    a('s_nop 0')
    for k in range(8):
        a(f'v_cvt_pk_bf16_f32 v{A_P + k}, v{S + 2 * k}, v{S + 2 * k + 1}')
    a('s_nop 1')
    a(f'v_mfma_f32_32x32x16_bf16 {vr(A_O, 16)}, {vr(A_V[0], 4)}, {vr(A_P, 4)}, {vr(A_O, 16)}')
    a(f'v_mfma_f32_32x32x16_bf16 {vr(A_O, 16)}, {vr(A_V[0] + 4, 4)}, {vr(A_P + 4, 4)}, {vr(A_O, 16)}')
    a(f's_add_u32 s{S_K}, s{S_K}, 1')
    a(f's_cmp_lt_u32 s{S_K}, 64')
    a('s_cbranch_scc1 L_fb_sum')
    a(f's_mov_b32 s{S_J}, 1')
    a('s_nop 7')
    a('s_nop 3')
    a('s_branch L_at_norm')


def conv(g):
    a = g.a
    a.label('L_conv')
    vA, vB, vT = 2, 3, 4
    ACC, AF, BF = 8, 40, 72
    if 'cvprio0' not in g.exp:
        a('s_setprio 2')
    a(f's_lshl_b32 s{S_T0}, s{S_XC}, 6')
    a(f's_lshl_b32 s{S_T1}, s{S_IDX}, 1')
    a(f's_add_u32 s{S_T0}, s{S_T0}, s{S_T1}')
    a(f's_lshl_b32 s{S_T0}, s{S_T0}, 1')
    a(f's_load_dword s{S_DSKV}, s[{S_DSK}:{S_DSK + 1}], s{S_T0}')
    a(f's_bfe_u32 s{S_A}, s{S_WV}, 0x10002')
    a(f's_and_b32 s{S_B}, s{S_WV}, 3')
    a(f's_mul_i32 s{S_T0}, s{S_A}, {UL_SZ}')
    a(f's_lshl_b32 s{S_T1}, s{S_B}, 7')
    a(f's_sub_u32 s{S_T0}, s{S_T0}, s{S_T1}')
    a(f's_add_u32 s{S_T0}, s{S_T0}, {L_UL + 480}')
    a(f'v_and_b32 v5, 15, v{V_LANE}')
    a(f'v_lshrrev_b32 v6, 4, v{V_LANE}')
    a('v_lshlrev_b32 v7, 5, v5')
    a('v_lshl_add_u32 v7, v6, 4, v7')
    a(f'v_add_u32 v{vB}, s{S_T0}, v7')
    a(f's_mul_i32 s{S_T0}, s{S_A}, {R_SZ}')
    a(f's_sub_u32 s{S_T0}, s{S_T0}, s{S_T1}')
    a(f's_add_u32 s{S_T0}, s{S_T0}, {L_R + 4 * 1015}')
    a('v_lshrrev_b32 v7, 1, v5')
    a('v_lshlrev_b32 v7, 2, v7')
    a('v_lshlrev_b32 v6, 4, v6')
    a('v_sub_u32 v6, v6, v7')
    a('v_and_b32 v5, 1, v5')
    a('v_cmp_eq_u32 vcc, 0, v5')
    a(f'v_mov_b32 v7, {R_O}')
    a('s_nop 0')
    a('v_cndmask_b32 v5, 0, v7, vcc')
    a('v_add_u32 v6, v6, v5')
    a(f'v_add_u32 v{vA}, s{S_T0}, v6')

    def one_class(first):
        q = LdsQueue()

        def rd_b(i):
            a(f'ds_read_b128 {vr(BF + 4 * i, 4)}, v{vB} offset:{512 * i}')
            q.push(f'b{i}')

        def rd_a(j):
            if j % 2 == 0:
                a(f'v_subrev_u32 v{vT + (j // 2) % 2}, {512 * (j + 1)}, v{vA}')
            base = vT + (j // 2) % 2
            o = 128 if j % 2 == 0 else 0
            a(f'ds_read2_b32 {vr(AF + 4 * j, 2)}, v{base} offset0:{o} offset1:{o + 1}')
            a(f'ds_read2_b32 {vr(AF + 4 * j + 2, 2)}, v{base} offset0:{o + 2} offset1:{o + 3}')
            q.push(f'a{j}')
            q.push(f'a{j}')

        rd_a(0)
        for i in range(8):
            rd_b(i)
        rd_a(1)
        for j in range(8):
            for i in range(8 - j):
                if j == 0:
                    q.wait(a, f'b{i}')
                elif i == 0:
                    q.wait(a, f'a{j}')
                t = i + j
                c = '0' if (first and j == 0) else vr(ACC + 4 * t, 4)
                a(f'v_mfma_f32_16x16x32_bf16 {vr(ACC + 4 * t, 4)}, {vr(AF + 4 * j, 4)}, {vr(BF + 4 * i, 4)}, {c}')
                if j == 0 and i in (1, 3, 5):
                    rd_a(2 + (i - 1) // 2)
                if j == 1 and i in (0, 2, 4):
                    rd_a(5 + i // 2)

    g.stamp('cv0')
    one_class(True)
    g.stamp('cv1')
    a(f'v_subrev_u32 v{vA}, 64, v{vA}')
    a(f'v_subrev_u32 v{vB}, 64, v{vB}')
    one_class(False)
    g.stamp('cv_mf')
    a(f'v_lshlrev_b32 v5, 4, v{V_LANE}')
    a(f's_lshl_b32 s{S_T2}, s{S_A}, 16')
    a(f's_add_u32 s{S_T2}, s{S_T2}, {L_HALF[0]}')
    a(f's_lshl_b32 s{S_T0}, s{S_B}, 13')
    a(f's_add_u32 s{S_T0}, s{S_T0}, s{S_T2}')
    a(f'v_add_u32 v6, s{S_T0}, v5')
    a('s_waitcnt lgkmcnt(0)')
    for t in range(8):
        a(f'ds_write_b128 v6, {vr(ACC + 4 * t, 4)} offset:{1024 * t}')
    a(f's_and_b32 s{S_T0}, s{S_WV}, 7')
    a(f's_lshl_b32 s{S_T0}, s{S_T0}, 2')
    a(f's_add_u32 s{S_T0}, s{S_T0}, {M_RW}')
    a(f'v_mov_b32 v6, s{S_T0}')
    a(f'v_mov_b32 v7, s{S_TOK}')
    a('s_waitcnt lgkmcnt(0)')
    a('ds_write_b32 v6, v7')
    a(f's_lshl_b32 s{S_T0}, s{S_A}, 4')
    a(f's_add_u32 s{S_T0}, s{S_T0}, {M_RW}')
    a(f'v_mov_b32 v6, s{S_T0}')
    g.lds_spin(6, 8, 4)
    a(f's_lshl_b32 s{S_T1}, s{S_B}, 11')
    a(f's_add_u32 s{S_T0}, s{S_T2}, s{S_T1}')
    a(f'v_add_u32 v6, s{S_T0}, v5')
    for s in range(4):
        for tt in range(2):
            a(f'ds_read_b128 {vr(40 + 16 * tt + 4 * s, 4)}, v6 offset:{8192 * s + 1024 * tt}')
    a(f's_mul_i32 s{S_T0}, s{S_A}, {UL_SZ}')
    a(f's_lshl_b32 s{S_T1}, s{S_B}, 10')
    a(f's_add_u32 s{S_T0}, s{S_T0}, s{S_T1}')
    a(f's_add_u32 s{S_T0}, s{S_T0}, {L_UL + 512}')
    a(f'v_and_b32 v7, 15, v{V_LANE}')
    a('v_lshlrev_b32 v7, 5, v7')
    a(f'v_lshrrev_b32 v8, 4, v{V_LANE}')
    a('v_lshl_add_u32 v7, v8, 3, v7')
    a(f'v_add_u32 v7, s{S_T0}, v7')
    a('ds_read_b64 v[72:73], v7')
    a('ds_read_b64 v[74:75], v7 offset:512')
    a('s_waitcnt lgkmcnt(0)')
    a(f's_lshl_b32 s{S_T1}, s{S_A}, 4')
    a(f's_lshr_b32 s{S_DSKV}, s{S_DSKV}, s{S_T1}')
    a(f's_lshl_b32 s{S_DSKV}, s{S_DSKV}, 16')
    for tt in range(2):
        b = 40 + 16 * tt
        for r in range(4):
            a(f'v_add_f32 v{b + r}, v{b + r}, v{b + 4 + r}')
            a(f'v_add_f32 v{b + 8 + r}, v{b + 8 + r}, v{b + 12 + r}')
        for r in range(4):
            a(f'v_add_f32 v{b + r}, v{b + r}, v{b + 8 + r}')
        a(f'v_cvt_pk_bf16_f32 v{b + 4}, v{b}, v{b + 1}')
        a(f'v_cvt_pk_bf16_f32 v{b + 5}, v{b + 2}, v{b + 3}')
        u = 72 + 2 * tt
        a(f'v_lshlrev_b32 v{b + 8}, 16, v{u}')
        a(f'v_and_b32 v{b + 9}, 0xffff0000, v{u}')
        a(f'v_lshlrev_b32 v{b + 10}, 16, v{u + 1}')
        a(f'v_and_b32 v{b + 11}, 0xffff0000, v{u + 1}')
        for r in range(4):
            a(f'v_mul_f32 v{b + 8 + r}, s{S_DSKV}, v{b + 8 + r}')
        a(f'v_cvt_pk_bf16_f32 v{b + 6}, v{b + 8}, v{b + 9}')
        a(f'v_cvt_pk_bf16_f32 v{b + 7}, v{b + 10}, v{b + 11}')
        for k in range(2):
            a(f'v_lshlrev_b32 v{b + 8}, 16, v{b + 4 + k}')
            a(f'v_and_b32 v{b + 9}, 0xffff0000, v{b + 4 + k}')
            a(f'v_lshlrev_b32 v{b + 10}, 16, v{b + 6 + k}')
            a(f'v_and_b32 v{b + 11}, 0xffff0000, v{b + 6 + k}')
            a(f'v_add_f32 v{b + 8}, v{b + 8}, v{b + 10}')
            a(f'v_add_f32 v{b + 9}, v{b + 9}, v{b + 11}')
            a(f'v_cvt_pk_bf16_f32 v{76 + 2 * tt + k}, v{b + 8}, v{b + 9}')
    a(f's_lshl_b32 s{S_T0}, s{S_XC}, 6')
    a(f's_lshl_b32 s{S_T1}, s{S_IDX}, 1')
    a(f's_add_u32 s{S_T0}, s{S_T0}, s{S_T1}')
    a(f's_add_u32 s{S_T0}, s{S_T0}, s{S_A}')
    a(f's_lshl_b32 s{S_T0}, s{S_T0}, 2')
    a(f's_add_u32 s{S_T0}, s{S_T0}, s{S_B}')
    a(f's_lshl_b32 s{S_T0}, s{S_T0}, 10')
    a(f's_add_u32 s{S_T0}, s{S_T0}, {WS_YT}')
    g.store_mode([f'buffer_store_dwordx4 v[76:79], v5, {WSR}, s{S_T0} offen {{M}}'])
    a(f's_lshl_b32 s{S_T0}, s{S_B}, 17')
    a(f's_lshl_b32 s{S_T1}, s{S_XC}, 11')
    a(f's_add_u32 s{S_T0}, s{S_T0}, s{S_T1}')
    a(f's_lshl_b32 s{S_T1}, s{S_IDX}, 3')
    a(f's_add_u32 s{S_T0}, s{S_T0}, s{S_T1}')
    a(f's_lshl_b32 s{S_T1}, s{S_A}, 2')
    a(f's_add_u32 s{S_T0}, s{S_T0}, s{S_T1}')
    a(f's_add_u32 s{S_A}, s{S_T0}, {WS_INBOX + IB_Y}')
    a('s_setprio 0')
    g.stamp('conv')
    a('s_barrier')
    attn_setup(g, 8192 + 2048)
    a('s_branch L_at_shared')


def outproj(g):
    a = g.a
    a.label('L_e1')
    a('s_barrier')
    g.stamp('e3')
    a(f's_and_b32 s{S_T0}, s{S_IDX}, 3')
    a(f's_lshl_b32 s{S_T0}, s{S_T0}, 1')
    a(f's_lshl_b32 s{S_T1}, s{S_XC}, 3')
    a(f's_add_u32 s{S_T0}, s{S_T0}, s{S_T1}')
    a(f's_lshl_b32 s{S_T0}, s{S_T0}, 15')
    a(f's_lshl_b32 s{S_T2}, s{S_WV}, 12')
    a(f's_add_u32 s{S_T0}, s{S_T0}, s{S_T2}')
    a(f's_add_u32 s{S_T0}, s{S_T0}, {WS_OF}')
    a(f's_cmp_ge_u32 s{S_WV}, 8')
    a(f's_cselect_b32 s{S_T3}, 32768, 0')
    a(f's_add_u32 s{S_T2}, s{S_T2}, s{S_T3}')
    a(f'v_lshlrev_b32 v5, 4, v{V_LANE}')
    for i in range(4):
        a(f's_add_u32 m0, s{S_T2}, {L_HALF[0] + i * 1024}')
        a(f's_add_u32 s{S_T1}, s{S_T0}, {i * 1024}')
        a(f'buffer_load_dwordx4 v5, {WSR}, s{S_T1} offen sc1 lds')
    a(f's_cmp_ge_u32 s{S_WV}, 4')
    a('s_cbranch_scc1 L_ys')
    vW, vW2, vO, ACC, WF, OF = 6, 8, 7, 16, 32, 64
    a(f'v_lshrrev_b32 v2, 5, v{V_LANE}')
    a(f'v_bfe_u32 v3, v{V_LANE}, 2, 2')
    a('v_lshl_add_u32 v2, v2, 2, v3')
    a('v_lshlrev_b32 v2, 6, v2')
    a(f'v_bfe_u32 v3, v{V_LANE}, 4, 1')
    a('v_lshl_add_u32 v2, v3, 5, v2')
    a(f'v_and_b32 v3, 3, v{V_LANE}')
    a('v_lshl_add_u32 v2, v3, 3, v2')
    a(f's_lshr_b32 s{S_T0}, s{S_WV}, 1')
    a(f's_lshl_b32 s{S_T0}, s{S_T0}, 9')
    a(f'v_add_u32 v{vW}, s{S_T0}, v2')
    a(f'v_add_u32 v{vW2}, {L_V}, v{vW}')
    a(f's_and_b32 s{S_T0}, s{S_WV}, 1')
    a(f's_lshl_b32 s{S_T0}, s{S_T0}, 16')
    a(f's_add_u32 s{S_T0}, s{S_T0}, {L_HALF[0]}')
    a(f'v_add_u32 v{vO}, s{S_T0}, v5')
    a('s_waitcnt vmcnt(0)')
    a('s_barrier')
    g.stamp('e4')
    q = LdsQueue()
    DEPTH = 4

    def rd(h):
        b = h % (DEPTH + 1)
        w = vW if h < 16 else vW2
        a(f'ds_read_b64_tr_b16 {vr(WF + 4 * b, 2)}, v{w} offset:{2048 * (h & 15)}')
        a(f'ds_read_b64_tr_b16 {vr(WF + 4 * b + 2, 2)}, v{w} offset:{2048 * (h & 15) + 1024}')
        a(f'ds_read_b128 {vr(OF + 4 * b, 4)}, v{vO} offset:{1024 * h}')
        for _ in range(3):
            q.push(h)
    for h in range(DEPTH):
        rd(h)
    for h in range(32):
        if h + DEPTH < 32:
            rd(h + DEPTH)
        q.wait(a, h)
        b = h % (DEPTH + 1)
        c = '0' if h == 0 else vr(ACC, 16)
        a(f'v_mfma_f32_32x32x16_bf16 {vr(ACC, 16)}, {vr(WF + 4 * b, 4)}, {vr(OF + 4 * b, 4)}, {c}')
    a(f'v_and_b32 v2, 31, v{V_LANE}')
    a(f's_and_b32 s{S_T0}, s{S_WV}, 1')
    a(f's_lshl_b32 s{S_T0}, s{S_T0}, 5')
    a(f'v_add_u32 v2, s{S_T0}, v2')
    a(f'v_mul_u32_u24 v2, {OUT_P}, v2')
    a(f'v_lshrrev_b32 v3, 5, v{V_LANE}')
    a('v_lshl_add_u32 v2, v3, 3, v2')
    a(f's_lshr_b32 s{S_T0}, s{S_WV}, 1')
    a(f's_lshl_b32 s{S_T0}, s{S_T0}, 6')
    a(f's_add_u32 s{S_T0}, s{S_T0}, {L_OUT}')
    a(f'v_add_u32 v2, s{S_T0}, v2')
    a('s_nop 3')
    for gq in range(4):
        a(f'v_cvt_pk_bf16_f32 v{32 + 2 * gq}, v{ACC + 4 * gq}, v{ACC + 4 * gq + 1}')
        a(f'v_cvt_pk_bf16_f32 v{33 + 2 * gq}, v{ACC + 4 * gq + 2}, v{ACC + 4 * gq + 3}')
        a(f'ds_write_b64 v2, {vr(32 + 2 * gq, 2)} offset:{16 * gq}')
    a('s_waitcnt lgkmcnt(0)')
    g.stamp('op_mf')
    a('s_barrier')
    g.stamp('e5')
    a.label('L_outstore')
    a(f'v_lshrrev_b32 v2, 3, v{V_LANE}')
    a(f's_lshl_b32 s{S_T0}, s{S_WV}, 3')
    a(f'v_add_u32 v2, s{S_T0}, v2')
    a(f'v_mul_u32_u24 v3, {OUT_P}, v2')
    a(f'v_and_b32 v4, 7, v{V_LANE}')
    a('v_lshl_add_u32 v3, v4, 4, v3')
    a(f'v_add_u32 v3, {L_OUT}, v3')
    a('ds_read_b128 v[8:11], v3')
    a('v_lshlrev_b32 v2, 11, v2')
    a('v_lshl_add_u32 v2, v4, 4, v2')
    a(f's_lshl_b32 s{S_T0}, s{S_XC}, 19')
    a(f's_and_b32 s{S_T2}, s{S_IDX}, 3')
    a(f's_lshl_b32 s{S_T2}, s{S_T2}, 17')
    a(f's_add_u32 s{S_T0}, s{S_T0}, s{S_T2}')
    a(f's_lshr_b32 s{S_T2}, s{S_IDX}, 2')
    a(f's_lshl_b32 s{S_T2}, s{S_T2}, 7')
    a(f's_add_u32 s{S_T0}, s{S_T0}, s{S_T2}')
    a('s_waitcnt lgkmcnt(0)')
    a(f'buffer_store_dwordx4 v[8:11], v2, s[{R_OUT}:{R_OUT + 3}], s{S_T0} offen {g.outmod}')
    a('s_branch L_finish')


def tail_idle(g):
    a = g.a
    a.label('L_ys')
    a('s_waitcnt vmcnt(0)')
    a('s_barrier')
    a('s_barrier')
    a(f's_cmp_lt_u32 s{S_WV}, 8')
    a('s_cbranch_scc1 L_outstore')
    a('s_branch L_finish')


def rest(g):
    a = g.a
    if g.stop == 'p1':
        a('s_branch L_finish')
        return
    attn_join(g)
    attn_local(g)
    attn_shared(g)
    attn_finish(g)
    outproj(g)
    tail_idle(g)
    conv(g)
    attn_hooks(g)
    attn_fallback(g)
```

```python
import os
import struct
import sys

sys.path.insert(0, os.path.dirname(os.path.abspath(__file__)))
from asmlib import Asm, VmQueue, check_hazards, vr

NAME = 'concat_heads__softmax_full_mha__ssm_conv_s4d__prompt'
KERNEL = NAME + '_kernel'

WS_G = 0x0
WS_INBOX = 0x100000
IB_KV, IB_X, IB_U, IB_L, IB_O, IB_Y = 0, 512, 640, 768, 1024, 1280
WS_UT = 0x200000
WS_KR = 0x400000
WS_VR = 0x600000
WS_QL = 0x800000
WS_KL = 0xA00000
WS_VL = 0xC00000
WS_OF = 0xE00000
WS_YT = 0x1000000
WS_PROF = 0x1400000
WS_SIZE = 0x1800000

LDS_BYTES = 163840
SLOT, NSLOT = 32768, 3
L_USTAGE = 65536
L_KG = 98304
ROWP = 272
KG_Y = 25 * ROWP
KG_SZ = KG_Y + 32 * ROWP
L_KPART = 98304
L_KSP = 114688
KSP_SZ = 4608
L_K, L_V = 0, 65536
L_R = 131072
R_O, R_SZ = 4160, 8320
L_UL = L_R + 2 * R_SZ
UL_SZ = 4608
L_QS = 73728
L_MISC = 163520
M_MODE = L_MISC
M_F = L_MISC + 16
M_I = L_MISC + 96
M_C = L_MISC + 144
M_KT = L_MISC - 32
M_SL = L_MISC - 48
M_RW = L_MISC - 80
M_U = L_MISC - 96
L_HALF = (32768, 98304)
L_OUT = L_R
OUT_P = 144
L_YS = L_R + 64 * OUT_P
PART_SZ = 2304

S_X, S_WQKV, S_WO, S_U, S_LOGA, S_AIM, S_CRE, S_CIM, S_LOGDT, S_DSK, S_OUT, S_DBG, S_WS = range(8, 34, 2)
R_X, R_W, R_WS, R_U, R_WO, R_OUT = 36, 40, 44, 48, 52, 56
S_XC, S_IDX, S_CG, S_RB, S_S0, S_WV, S_TOK, S_MODE, S_H, S_XCC = range(60, 70)
S_T0, S_T1, S_T2, S_T3, S_T4, S_T5, S_T6, S_T7 = range(70, 78)
S_MASK = 78
S_RET = 80
S_K, S_SLOT, S_CNT, S_DT, S_INB = 82, 83, 84, 85, 86
S_A, S_B, S_C = 3, 4, 5
S_IGN = 6
S_J, S_SRC = 34, 35
S_PROF = 88

V_LANE = 1
LOG2E = 1.4426950408889634
INV2PI = 0.15915494309189535
QSCALE = 0.25 * LOG2E
SPIN_MAX = 400000
HI0 = [0, 256, 512, 768, 1024, 1280, 1536, 1792, 1, 2, 3, 258, 2048]
WSR = f's[{R_WS}:{R_WS + 3}]'

A_L16, A_PA, A_PV, A_KA, A_VA, A_Q, A_O = 4, 5, 6, 8, 9, 108, 16
A_S, A_P, A_K, A_V = (32, 48), 64, (72, 76), (80, 88)


def fbits(x):
    return '0x%08x' % struct.unpack('<I', struct.pack('<f', x))[0]


class LdsQueue:
    def __init__(self):
        self.q = []

    def push(self, tag):
        self.q.append(tag)

    def wait(self, a, tag):
        idx = max(i for i, t in enumerate(self.q) if t == tag)
        n = len(self.q) - 1 - idx
        assert n <= 15
        a(f's_waitcnt lgkmcnt({n})')


class Gen:
    def __init__(self, stop=None, prof='', points='', exp=''):
        self.a = Asm()
        self.stop = stop
        self.prof = prof
        self.points = points.split(',') if points else []
        self.exp = set(exp.split(',')) if exp else set()
        assert len(self.points) <= 7
        self.outmod = 'sc1' if 'outwt' in self.exp else ('nt' if 'outnt' in self.exp else '')

    def srd(self, r, base, size):
        a = self.a
        a(f's_mov_b32 s{r}, s{base}')
        a(f's_mov_b32 s{r + 1}, s{base + 1}')
        a(f's_mov_b32 s{r + 2}, {size}')
        a(f's_mov_b32 s{r + 3}, 0x20000')

    def lanes(self, n):
        if n == 64:
            self.a('s_mov_b64 exec, -1')
        elif n >= 32:
            self.a(f's_mov_b32 exec_hi, {hex((1 << (n - 32)) - 1)}')
        else:
            self.a(f's_mov_b64 exec, {hex((1 << n) - 1)}')

    def stamp(self, name):
        if self.prof and name in self.points:
            i = self.points.index(name)
            op = 's_memtime' if self.prof == 'cyc' else 's_memrealtime'
            self.a(f'{op} s[{S_PROF + 2 * i}:{S_PROF + 2 * i + 1}]')

    def stamp_k(self, prefix):
        for k in range(8):
            if self.prof and f'{prefix}{k}' in self.points:
                lb = self.a.uid('nost')
                self.a(f's_cmp_eq_u32 s{S_K}, {k}')
                self.a(f's_cbranch_scc0 {lb}')
                self.stamp(f'{prefix}{k}')
                self.a.label(lb)

    def lds_check(self, vtmp, n):
        a = self.a
        a(f'v_cmp_ne_u32 vcc, s{S_TOK}, v{vtmp}')
        for i in range(1, n):
            a(f'v_cmp_ne_u32 s[{S_IGN}:{S_IGN + 1}], s{S_TOK}, v{vtmp + i}')
            a('s_nop 0')
            a(f's_or_b64 vcc, vcc, s[{S_IGN}:{S_IGN + 1}]')

    def lds_spin(self, vaddr, vtmp, n, off=0, sleep=0):
        a = self.a
        lp = a.uid('lspin')
        rd = {1: 'ds_read_b32', 2: 'ds_read_b64', 4: 'ds_read_b128'}[n]
        a(f's_mov_b32 s{S_CNT}, 0')
        a.label(lp)
        a(f'{rd} {vr(vtmp, n)}, v{vaddr} offset:{off}')
        a(f's_add_u32 s{S_CNT}, s{S_CNT}, 1')
        a('s_waitcnt lgkmcnt(0)')
        self.lds_check(vtmp, n)
        a(f's_cbranch_vccz {lp}_x')
        if sleep:
            a(f's_sleep {sleep}')
        a(f's_cmp_gt_u32 s{S_CNT}, {SPIN_MAX}')
        a(f's_cbranch_scc0 {lp}')
        a.label(lp + '_x')

    def ws_spin(self, voff, vtmp, nlanes, name, preissued=False, ignore=None):
        a = self.a
        lp, done = a.uid(name), a.uid(name + '_ok')
        a(f's_mov_b32 s{S_CNT}, 0')
        if nlanes < 64:
            self.lanes(nlanes)
        if not preissued:
            a(f'buffer_load_dword v{vtmp}, v{voff}, {WSR}, 0 offen sc1')
        a.label(lp)
        a('s_waitcnt vmcnt(0)')
        a(f'v_cmp_ne_u32 vcc, s{S_TOK}, v{vtmp}')
        a(f's_add_u32 s{S_CNT}, s{S_CNT}, 1')
        a('s_nop 0')
        if ignore is not None:
            a(f's_andn2_b64 vcc, vcc, s[{ignore}:{ignore + 1}]')
        else:
            a('s_and_b64 vcc, vcc, exec')
        a(f's_cbranch_scc0 {done}')
        a(f's_cmp_gt_u32 s{S_CNT}, {SPIN_MAX}')
        a(f's_cbranch_scc1 {done}')
        a(f'buffer_load_dword v{vtmp}, v{voff}, {WSR}, 0 offen sc1')
        a(f's_branch {lp}')
        a.label(done)
        if nlanes < 64:
            self.lanes(64)

    def store_mode(self, lines):
        a = self.a
        wt, done = a.uid('wt'), a.uid('std')
        a(f's_cmp_eq_u32 s{S_MODE}, 0')
        a(f's_cbranch_scc1 {wt}')
        for ln in lines:
            a(ln.replace('{M}', ''))
        a(f's_branch {done}')
        a.label(wt)
        for ln in lines:
            a(ln.replace('{M}', 'sc1'))
        a.label(done)

    def token(self):
        a = self.a
        a('s_waitcnt lgkmcnt(0)')
        a(f's_mul_i32 s{S_TOK}, s{S_TOK}, 0x9e3779b1')
        a(f's_add_u32 s{S_TOK}, s{S_TOK}, 0x7f4a7c15')

    def common_setup(self):
        a = self.a
        if 'wstop' in self.exp:
            a(f's_mov_b32 s{S_T7}, {(256 << 20) - WS_SIZE}')
            a(f's_load_dword s{S_TOK}, s[{S_WS}:{S_WS + 1}], s{S_T7}')
        else:
            a(f's_load_dword s{S_TOK}, s[{S_WS}:{S_WS + 1}], {WS_G}')
        a(f's_getreg_b32 s{S_XCC}, hwreg(HW_REG_XCC_ID)')
        self.srd(R_WS, S_WS, WS_SIZE)
        if 'wstop' in self.exp:
            a(f's_add_u32 s{R_WS}, s{R_WS}, {(256 << 20) - WS_SIZE}')
            a(f's_addc_u32 s{R_WS + 1}, s{R_WS + 1}, 0')
        self.srd(R_U, S_U, 2048 * 1024)
        self.srd(R_WO, S_WO, 512 * 1024)
        self.srd(R_OUT, S_OUT, 2048 * 2048)
        a(f's_mov_b32 s{S_H}, s{S_IDX}')
        a(f's_and_b32 s{S_XCC}, s{S_XCC}, 15')
        a(f's_lshl_b32 s{S_INB}, s2, 11')
        a(f's_add_u32 s{S_INB}, s{S_INB}, {WS_INBOX}')
        a(f's_mov_b32 s{S_MASK}, 0x0000ffff')
        a(f's_mov_b32 s{S_MASK + 1}, 0x0000ffff')

    def prologue(self):
        a = self.a
        a('s_cmp_ge_u32 s2, 256')
        a('s_cbranch_scc1 L_exit')
        a('s_load_dwordx16 s[8:23], s[0:1], 0')
        a('s_load_dwordx8 s[24:31], s[0:1], 64')
        a('s_load_dwordx2 s[32:33], s[0:1], 96')
        if self.prof:
            for i in range(14):
                a(f's_mov_b32 s{S_PROF + i}, 0')
        self.stamp('entry')
        a('s_getpc_b64 s[70:71]')
        a.label('L_pc')
        a('v_lshrrev_b32 v2, 6, v0')
        a(f'v_and_b32 v{V_LANE}, 63, v0')
        a(f's_lshr_b32 s{S_IDX}, s2, 3')
        a(f's_lshl_b32 s{S_T2}, s{S_IDX}, 10')
        a(f'v_lshl_add_u32 v3, v0, 7, s{S_T2}')
        a('v_min_u32 v3, L_code_end-L_pc-4, v3')
        a('v_cmp_gt_u32 vcc, 8, v0')
        a(f's_and_saveexec_b64 s[{S_T4}:{S_T4 + 1}], vcc')
        a('s_cbranch_execz L_nocodepf')
        a('global_load_dword v9, v3, s[70:71]')
        a.label('L_nocodepf')
        a('s_mov_b64 exec, -1')
        a(f's_and_b32 s{S_XC}, s2, 7')
        a(f'v_readfirstlane_b32 s{S_WV}, v2')
        a(f's_lshr_b32 s{S_CG}, s{S_IDX}, 2')
        a(f's_and_b32 s{S_RB}, s{S_IDX}, 3')
        a(f's_lshl_b32 s{S_S0}, s{S_RB}, 1')
        a(f's_add_u32 s{S_S0}, s{S_S0}, s{S_CG}')
        a(f's_sub_u32 s{S_T0}, s{S_WV}, 4')
        a(f's_cmp_lt_u32 s{S_T0}, 6')
        a('s_cbranch_scc0 L_notloader')

    def issue_chunk(self):
        a = self.a
        if 'nodma' in self.exp:
            return
        a(f's_add_u32 s{S_T2}, s{S_S0}, s{S_K}')
        a(f's_and_b32 s{S_T2}, s{S_T2}, 7')
        a(f's_lshl_b32 s{S_T0}, s{S_T2}, 7')
        a(f's_add_u32 s{S_T0}, s{S_T0}, s{S_A}')
        a(f's_mul_i32 s{S_T4}, s{S_T2}, {64 * 3072}')
        a(f's_add_u32 s{S_T4}, s{S_T4}, s{S_B}')
        for j in range(4):
            a(f's_add_u32 m0, s{S_C}, {j * 1024}')
            a(f's_add_u32 s{S_T1}, s{S_T0}, {j * 8192}')
            a(f'buffer_load_dwordx4 v{10 + (j & 1)}, s[{R_X}:{R_X + 3}], s{S_T1} offen lds')
            for c in range(3):
                a(f's_add_u32 m0, s{S_C}, {8192 + c * 8192 + j * 1024}')
                a(f's_add_u32 s{S_T1}, s{S_T4}, {j * 8 * 3072 + c * 1024}')
                a(f'buffer_load_dwordx4 v12, s[{R_W}:{R_W + 3}], s{S_T1} offen lds')

    def loader_waves(self):
        a = self.a
        a('s_setprio 2')
        a(f'v_lshrrev_b32 v4, 3, v{V_LANE}')
        a(f'v_and_b32 v5, 7, v{V_LANE}')
        a('v_lshrrev_b32 v6, 1, v4')
        a('v_xor_b32 v7, v5, v6')
        a('v_lshlrev_b32 v7, 4, v7')
        a('v_lshl_add_u32 v10, v4, 10, v7')
        a('v_xor_b32 v11, 64, v10')
        a(f'v_bfe_u32 v4, v{V_LANE}, 2, 3')
        a('v_mul_u32_u24 v4, 3072, v4')
        a(f'v_lshrrev_b32 v5, 5, v{V_LANE}')
        a('v_lshl_add_u32 v4, v5, 6, v4')
        a(f'v_and_b32 v5, 3, v{V_LANE}')
        a('v_lshl_add_u32 v12, v5, 4, v4')
        a(f's_and_b32 s{S_T1}, s{S_T0}, 1')
        a(f's_lshr_b32 s{S_K}, s{S_T0}, 1')
        a(f's_lshl_b32 s{S_C}, s{S_K}, 15')
        a(f's_lshl_b32 s{S_T2}, s{S_T1}, 12')
        a(f's_add_u32 s{S_C}, s{S_C}, s{S_T2}')
        a(f's_lshl_b32 s{S_A}, s{S_XC}, 18')
        a(f's_lshl_b32 s{S_T2}, s{S_RB}, 16')
        a(f's_add_u32 s{S_A}, s{S_A}, s{S_T2}')
        a(f's_lshl_b32 s{S_T2}, s{S_T1}, 15')
        a(f's_add_u32 s{S_A}, s{S_A}, s{S_T2}')
        a(f's_mul_i32 s{S_B}, s{S_T1}, {32 * 3072}')
        a(f's_lshl_b32 s{S_T2}, s{S_CG}, 7')
        a(f's_add_u32 s{S_B}, s{S_B}, s{S_T2}')
        vF, vC, vT = 13, 14, 20
        a(f's_lshl_b32 s{S_T1}, s{S_T1}, 2')
        a(f's_add_u32 s{S_T2}, s{S_T1}, {M_F}')
        a(f'v_mov_b32 v{vF}, s{S_T2}')
        a(f's_lshl_b32 s{S_T2}, s{S_K}, 3')
        a(f's_add_u32 s{S_T2}, s{S_T2}, s{S_T1}')
        a(f's_add_u32 s{S_T2}, s{S_T2}, {M_I}')
        a(f'v_mov_b32 v17, s{S_T2}')
        a('s_waitcnt lgkmcnt(0)')
        self.srd(R_X, S_X, 2048 * 1024)
        self.srd(R_W, S_WQKV, 512 * 3072)
        a(f's_cmp_eq_u32 s{S_K}, 0')
        a('s_cbranch_scc1 L_ld_first')
        self.common_setup()
        self.token()
        a(f's_lshl_b32 s{S_T2}, s{S_K}, 3')
        a(f's_add_u32 s{S_T2}, s{S_T2}, {M_I - 8}')
        a(f'v_mov_b32 v{vC}, s{S_T2}')
        self.lds_spin(vC, vT, 2)
        a(f's_cmp_eq_u32 s{S_K}, 2')
        a('s_cbranch_scc0 L_ld_go')
        a(f'v_mov_b32 v{vC}, {M_U}')
        self.lds_spin(vC, vT, 1, sleep=1)
        a.label('L_ld_go')
        self.issue_chunk()
        a('s_branch L_ld_issued')
        a.label('L_ld_first')
        self.stamp('iss0')
        self.issue_chunk()
        self.common_setup()
        self.token()
        a.label('L_ld_issued')
        self.stamp('iss1')
        a(f'v_mov_b32 v15, s{S_TOK}')
        a('ds_write_b32 v17, v15')
        a(f'v_mov_b32 v{vC}, {M_C}')
        a.label('L_ld_loop')
        a(f's_lshl_b32 s{S_T0}, s{S_K}, 3')
        a(f'v_add_u32 v18, s{S_T0}, v{vF}')
        a('s_waitcnt vmcnt(0)')
        a('ds_write_b32 v18, v15')
        self.stamp_k('lF')
        a(f's_add_u32 s{S_K}, s{S_K}, 3')
        a(f's_cmp_ge_u32 s{S_K}, 8')
        a('s_cbranch_scc1 L_ld_done')
        a(f's_lshl_b32 s{S_T0}, s{S_K}, 4')
        a(f's_add_u32 s{S_T0}, s{S_T0}, {M_C - 48}')
        a(f'v_mov_b32 v{vC}, s{S_T0}')
        self.lds_spin(vC, vT, 4, sleep=1)
        self.stamp_k('lC')
        if 'dma3' not in self.exp:
            self.issue_chunk()
        self.stamp_k('lI')
        if 'notouch' not in self.exp:
            a(f's_cmp_eq_u32 s{S_K}, 7')
            a('s_cbranch_scc0 L_ld_loop')
            a(f'v_mov_b32 v{vC}, {M_MODE}')
            a(f'ds_read_b64 v[20:21], v{vC}')
            a(f'v_lshrrev_b32 v22, 4, v{V_LANE}')
            a('v_lshlrev_b32 v22, 16, v22')
            a(f'v_and_b32 v23, 15, v{V_LANE}')
            a('v_lshl_add_u32 v22, v23, 7, v22')
            a(f's_lshl_b32 s{S_T0}, s{S_CG}, 18')
            a(f's_lshl_b32 s{S_T1}, s{S_XC}, 13')
            a(f's_add_u32 s{S_T0}, s{S_T0}, s{S_T1}')
            a(f's_lshl_b32 s{S_T1}, s{S_RB}, 11')
            a(f's_add_u32 s{S_T0}, s{S_T0}, s{S_T1}')
            a('s_waitcnt lgkmcnt(0)')
            a(f'v_readfirstlane_b32 s{S_T1}, v20')
            a(f'v_readfirstlane_b32 s{S_T2}, v21')
            a(f's_cmp_eq_u32 s{S_T2}, s{S_TOK}')
            a('s_cbranch_scc0 L_ld_loop')
            a(f's_cmp_eq_u32 s{S_T1}, 1')
            a('s_cbranch_scc0 L_ld_loop')
            a(f's_lshl_b32 s{S_T2}, s{S_K}, 3')
            a(f'v_add_u32 v18, s{S_T2}, v{vF}')
            a(f's_cmp_eq_u32 s{S_WV}, 6')
            a('s_cbranch_scc0 L_ld_touchv')
            a(f's_add_u32 s{S_T1}, s{S_T0}, {WS_KL}')
            a(f'buffer_load_dword v24, v22, {WSR}, s{S_T1} offen')
            a(f's_add_u32 s{S_T1}, s{S_T0}, {WS_QL}')
            a(f'buffer_load_dword v25, v22, {WSR}, s{S_T1} offen')
            a('s_waitcnt vmcnt(2)')
            a('s_branch L_ld_touched')
            a.label('L_ld_touchv')
            a(f's_add_u32 s{S_T1}, s{S_T0}, {WS_VL}')
            a(f'buffer_load_dword v24, v22, {WSR}, s{S_T1} offen')
            a('s_waitcnt vmcnt(1)')
            a.label('L_ld_touched')
            a('ds_write_b32 v18, v15')
            a('s_branch L_ld_done')
        a('s_branch L_ld_loop')
        a.label('L_ld_done')
        self.stamp('lb7')
        a(f's_cmp_ge_u32 s{S_WV}, 8')
        a('s_cbranch_scc1 L_gap1_join')
        self.stage_local()
        a('s_branch L_gap1_join')

    def kv_src(self):
        a = self.a
        a(f's_lshl_b32 s{S_C}, s{S_XC}, 1')
        a(f's_lshl_b32 s{S_T0}, s{S_H}, 16')
        a(f's_and_b32 s{S_B}, s{S_WV}, 3')
        a(f's_lshl_b32 s{S_B}, s{S_B}, 10')
        a(f's_add_u32 s{S_SRC}, s{S_T0}, s{S_B}')
        a(f'v_lshlrev_b32 v{A_L16}, 4, v{V_LANE}')

    def kv_dma(self, j, kbase, vbase):
        a = self.a
        a(f's_add_u32 s{S_T0}, s{S_C}, {j}')
        a(f's_and_b32 s{S_T0}, s{S_T0}, 15')
        a(f's_lshl_b32 s{S_T0}, s{S_T0}, 12')
        a(f's_add_u32 s{S_T0}, s{S_T0}, s{S_SRC}')
        a(f's_add_u32 m0, s{S_B}, {L_K + 4096 * j}')
        a(f's_add_u32 s{S_T4}, s{S_T0}, {kbase}')
        a(f'buffer_load_dwordx4 v{A_L16}, {WSR}, s{S_T4} offen sc1 lds')
        a(f's_add_u32 m0, s{S_B}, {L_V + 4096 * j}')
        a(f's_add_u32 s{S_T4}, s{S_T0}, {vbase}')
        a(f'buffer_load_dwordx4 v{A_L16}, {WSR}, s{S_T4} offen sc1 lds')

    def stage_local(self):
        a = self.a
        self.kv_src()
        a(f'v_lshlrev_b32 v2, 2, v{V_LANE}')
        a(f's_add_u32 s{S_T0}, s{S_INB}, {IB_L}')
        a('v_add_u32 v2, s70, v2')
        self.ws_spin(2, 3, 8, 'loc')
        self.stamp('loc_ok')
        for j in range(2):
            self.kv_dma(j, WS_KL, WS_VL)
        a(f's_lshl_b32 s{S_T0}, s{S_H}, 16')
        a(f's_lshl_b32 s{S_T1}, s{S_XC}, 13')
        a(f's_add_u32 s{S_T0}, s{S_T0}, s{S_T1}')
        a(f's_lshl_b32 s{S_T1}, s{S_B}, 1')
        a(f's_add_u32 s{S_T0}, s{S_T0}, s{S_T1}')
        a(f's_add_u32 s{S_T0}, s{S_T0}, {WS_QL}')
        for i in range(2):
            a(f's_add_u32 m0, s{S_T1}, {L_QS + 1024 * i}')
            a(f's_add_u32 s{S_T4}, s{S_T0}, {1024 * i}')
            a(f'buffer_load_dwordx4 v{A_L16}, {WSR}, s{S_T4} offen sc1 lds')
        a(f's_and_b32 s{S_T0}, s{S_WV}, 3')
        a(f's_lshl_b32 s{S_T0}, s{S_T0}, 2')
        a(f's_add_u32 s{S_T0}, s{S_T0}, {M_SL}')
        a(f'v_mov_b32 v2, s{S_T0}')
        a(f'v_mov_b32 v3, s{S_TOK}')
        a('ds_write_b32 v2, v3')
        a(f'v_lshlrev_b32 v{A_PA}, 2, v{V_LANE}')
        a(f's_add_u32 s{S_T0}, s{S_INB}, {IB_KV}')
        a(f'v_add_u32 v{A_PA}, s{S_T0}, v{A_PA}')
        a(f'buffer_load_dword v{A_PV}, v{A_PA}, {WSR}, 0 offen sc1')
        a('s_waitcnt vmcnt(1)')

    def gemm_waves(self):
        a = self.a
        vXa, vWa, vF, vC, vT = 10, 14, 15, 6, 2
        ACCQ, ACCK, ACCV = 16, 32, 48
        XF, WF = 64, 80
        a.label('L_gemm')
        if 'noprio' not in self.exp:
            a('s_setprio 3')
        a(f'v_and_b32 v2, 31, v{V_LANE}')
        a(f'v_lshrrev_b32 v3, 5, v{V_LANE}')
        a('v_bfe_u32 v4, v2, 1, 3')
        a('v_xor_b32 v4, v4, v3')
        a('v_lshlrev_b32 v4, 4, v4')
        a(f's_and_b32 s{S_T0}, s{S_WV}, 1')
        a(f's_lshl_b32 s{S_T0}, s{S_T0}, 12')
        a('v_lshl_add_u32 v4, v2, 7, v4')
        a(f'v_add_u32 v{vXa}, s{S_T0}, v4')
        for ks in range(1, 4):
            a(f'v_xor_b32 v{vXa + ks}, {32 * ks}, v{vXa}')
        a(f'v_bfe_u32 v4, v{V_LANE}, 2, 2')
        a('v_lshlrev_b32 v4, 6, v4')
        a('v_lshl_add_u32 v4, v3, 10, v4')
        a(f'v_bfe_u32 v5, v{V_LANE}, 4, 1')
        a('v_lshl_add_u32 v4, v5, 5, v4')
        a(f'v_and_b32 v5, 3, v{V_LANE}')
        a('v_lshl_add_u32 v4, v5, 3, v4')
        a(f's_lshr_b32 s{S_T0}, s{S_WV}, 1')
        a(f's_lshl_b32 s{S_T0}, s{S_T0}, 9')
        a(f's_add_u32 s{S_T0}, s{S_T0}, 8192')
        a(f'v_add_u32 v{vWa}, s{S_T0}, v4')
        for i in range(48):
            a(f'v_mov_b32 v{ACCQ + i}, 0')
        a(f's_mov_b32 s{S_K}, 0')
        a(f's_mov_b32 s{S_SLOT}, 0')
        a(f'v_mov_b32 v{vF}, {M_F}')
        a(f's_lshl_b32 s{S_T0}, s{S_WV}, 2')
        a(f's_add_u32 s{S_T0}, s{S_T0}, {M_C}')
        a(f'v_mov_b32 v{vC}, s{S_T0}')
        self.token()
        a(f'v_mov_b32 v7, s{S_TOK}')

        def loads(ks):
            a(f'ds_read_b128 {vr(XF + 4 * ks, 4)}, v{vXa + ks}')
            for c in range(3):
                base = WF + 12 * ks + 4 * c
                a(f'ds_read_b64_tr_b16 {vr(base, 2)}, v{vWa} offset:{c * 8192 + ks * 2048}')
                a(f'ds_read_b64_tr_b16 {vr(base + 2, 2)}, v{vWa} offset:{c * 8192 + ks * 2048 + 256}')

        def mfmas(ks):
            xf = vr(XF + 4 * ks, 4)
            w = [vr(WF + 12 * ks + 4 * c, 4) for c in range(3)]
            a(f'v_mfma_f32_32x32x16_bf16 {vr(ACCQ, 16)}, {w[0]}, {xf}, {vr(ACCQ, 16)}')
            a(f'v_mfma_f32_32x32x16_bf16 {vr(ACCK, 16)}, {w[1]}, {xf}, {vr(ACCK, 16)}')
            a(f'v_mfma_f32_32x32x16_bf16 {vr(ACCV, 16)}, {xf}, {w[2]}, {vr(ACCV, 16)}')

        self.lds_spin(vF, vT, 2)
        self.stamp('b0')
        loads(0)
        loads(1)
        a(f'ds_read_b32 v8, v{vF}')
        a.label('L_g_chunk')
        a('s_waitcnt lgkmcnt(8)')
        loads(2)
        mfmas(0)
        a('s_waitcnt lgkmcnt(7)')
        a(f'ds_read_b64 v[2:3], v{vF} offset:8')
        loads(3)
        mfmas(1)
        a('s_waitcnt lgkmcnt(7)')
        a(f's_add_u32 s{S_K}, s{S_K}, 1')
        a(f's_cmp_eq_u32 s{S_K}, 8')
        a('s_cbranch_scc1 L_g_go')
        self.lds_check(2, 2)
        a('s_cbranch_vccnz L_g_wait')
        a.label('L_g_go')
        a(f's_add_u32 s{S_SLOT}, s{S_SLOT}, 1')
        a(f's_mov_b32 s{S_T0}, {SLOT}')
        a(f's_cmp_eq_u32 s{S_SLOT}, {NSLOT}')
        a(f's_cselect_b32 s{S_T0}, {(-(NSLOT - 1) * SLOT) & 0xffffffff}, s{S_T0}')
        a(f's_cselect_b32 s{S_SLOT}, 0, s{S_SLOT}')
        for i in range(5):
            a(f'v_add_u32 v{vXa + i}, s{S_T0}, v{vXa + i}')
        a(f'v_add_u32 v{vF}, 8, v{vF}')
        loads(0)
        mfmas(2)
        a('s_waitcnt lgkmcnt(7)')
        loads(1)
        a(f'ds_write_b32 v{vC}, v7')
        a(f'v_add_u32 v{vC}, 16, v{vC}')
        mfmas(3)
        a(f's_cmp_lt_u32 s{S_K}, 8')
        a('s_cbranch_scc1 L_g_chunk')
        self.stamp('gemm')
        a('s_waitcnt lgkmcnt(0)')
        a(f'v_mov_b32 v6, {M_MODE}')
        self.lds_spin(6, 2, 1, off=4)
        a('ds_read_b32 v2, v6')

        PQ, PK, PV = 64, 72, 80
        for i in range(8):
            a(f'v_cvt_pk_bf16_f32 v{PK + i}, v{ACCK + 2 * i}, v{ACCK + 2 * i + 1}')
        for i in range(8):
            a(f'v_cvt_pk_bf16_f32 v{PV + i}, v{ACCV + 2 * i}, v{ACCV + 2 * i + 1}')
        a(f's_mov_b32 s{S_T7}, {fbits(QSCALE)}')
        a('s_waitcnt lgkmcnt(0)')
        a(f'v_readfirstlane_b32 s{S_MODE}, v2')
        vL, vV = 2, 3
        a(f'v_lshlrev_b32 v{vL}, 4, v{V_LANE}')
        a(f'v_bfe_u32 v4, v{V_LANE}, 4, 1')
        a('v_lshlrev_b32 v4, 16, v4')
        a(f'v_lshrrev_b32 v5, 5, v{V_LANE}')
        a('v_lshlrev_b32 v5, 8, v5')
        a(f'v_and_b32 v6, 15, v{V_LANE}')
        a('v_lshl_add_u32 v5, v6, 4, v5')
        a(f'v_add_u32 v{vV}, v4, v5')
        a(f's_and_b32 s{S_T6}, s{S_WV}, 2')
        a(f's_lshl_b32 s{S_T1}, s{S_CG}, 2')
        a(f's_add_u32 s{S_T6}, s{S_T6}, s{S_T1}')
        a(f's_lshl_b32 s{S_T5}, s{S_XC}, 3')
        a(f's_lshl_b32 s{S_T1}, s{S_RB}, 1')
        a(f's_add_u32 s{S_T5}, s{S_T5}, s{S_T1}')
        a(f's_and_b32 s{S_T1}, s{S_WV}, 1')
        a(f's_add_u32 s{S_T5}, s{S_T5}, s{S_T1}')
        a(f's_lshl_b32 s{S_T0}, s{S_T6}, 6')
        a(f's_add_u32 s{S_T0}, s{S_T0}, s{S_T5}')
        a(f's_lshl_b32 s{S_T0}, s{S_T0}, 10')
        a(f's_add_u32 s{S_T1}, s{S_T0}, {WS_KL}')
        a(f's_add_u32 s{S_T2}, s{S_T1}, 65536')
        a(f's_add_u32 s{S_T3}, s{S_T0}, {WS_VL}')
        self.store_mode([
            f'buffer_store_dwordx4 {vr(PK, 4)}, v{vL}, {WSR}, s{S_T1} offen {{M}}',
            f'buffer_store_dwordx4 {vr(PK + 4, 4)}, v{vL}, {WSR}, s{S_T2} offen {{M}}',
            f'buffer_store_dwordx4 {vr(PV, 4)}, v{vV}, {WSR}, s{S_T3} offen {{M}}',
            f'buffer_store_dwordx4 {vr(PV + 4, 4)}, v{vV}, {WSR}, s{S_T3} offen offset:512 {{M}}',
        ])
        for i in range(16):
            a(f'v_mul_f32 v{ACCQ + i}, s{S_T7}, v{ACCQ + i}')
        for i in range(8):
            a(f'v_cvt_pk_bf16_f32 v{PQ + i}, v{ACCQ + 2 * i}, v{ACCQ + 2 * i + 1}')
        a(f's_add_u32 s{S_T4}, s{S_T0}, {WS_QL}')
        a(f's_add_u32 s{S_T7}, s{S_T4}, 65536')
        self.store_mode([
            f'buffer_store_dwordx4 {vr(PQ, 4)}, v{vL}, {WSR}, s{S_T4} offen {{M}}',
            f'buffer_store_dwordx4 {vr(PQ + 4, 4)}, v{vL}, {WSR}, s{S_T7} offen {{M}}',
        ])
        a(f's_lshl_b32 s{S_T1}, s{S_T6}, 14')
        a(f's_lshl_b32 s{S_T2}, s{S_XC}, 11')
        a(f's_add_u32 s{S_T1}, s{S_T1}, s{S_T2}')
        a(f's_and_b32 s{S_T2}, s{S_T5}, 7')
        a(f's_lshl_b32 s{S_T2}, s{S_T2}, 2')
        a(f's_add_u32 s{S_T1}, s{S_T1}, s{S_T2}')
        a(f's_add_u32 s{S_T1}, s{S_T1}, {WS_INBOX + IB_L}')
        a(f'v_lshlrev_b32 v4, 14, v{V_LANE}')
        a(f'v_mov_b32 v5, s{S_TOK}')
        self.stamp('st_iss')
        a('s_waitcnt vmcnt(0)')
        self.stamp('st_loc')
        a('s_mov_b64 exec, 3')
        self.store_mode([f'buffer_store_dword v5, v4, {WSR}, s{S_T1} offen {{M}}'])
        a('s_mov_b64 exec, -1')
        if 'early_rem' not in self.exp:
            a(f'v_mov_b32 v6, {M_SL}')
            self.lds_spin(6, 8, 4, sleep=1)
        a(f's_add_u32 s{S_T1}, s{S_T0}, {WS_KR}')
        a(f's_add_u32 s{S_T2}, s{S_T1}, 65536')
        a(f's_add_u32 s{S_T3}, s{S_T0}, {WS_VR}')
        a(f'buffer_store_dwordx4 {vr(PK, 4)}, v{vL}, {WSR}, s{S_T1} offen sc1')
        a(f'buffer_store_dwordx4 {vr(PK + 4, 4)}, v{vL}, {WSR}, s{S_T2} offen sc1')
        a(f'buffer_store_dwordx4 {vr(PV, 4)}, v{vV}, {WSR}, s{S_T3} offen sc1')
        a(f'buffer_store_dwordx4 {vr(PV + 4, 4)}, v{vV}, {WSR}, s{S_T3} offen offset:512 sc1')
        a(f's_lshl_b32 s{S_A}, s{S_T6}, 14')
        a(f's_lshl_b32 s{S_T2}, s{S_T5}, 2')
        a(f's_add_u32 s{S_A}, s{S_A}, s{S_T2}')
        a(f's_add_u32 s{S_A}, s{S_A}, {WS_INBOX + IB_KV}')
        a('s_branch L_gap1_join')
        a.label('L_g_wait')
        self.lds_spin(vF, 2, 2, off=8)
        a('s_branch L_g_go')

    def cexp(self, dst, ar, ai, e, t):
        a = self.a
        a(f'v_mul_f32 v{t}, {fbits(float(e))}, v{ar}')
        a(f'v_mul_f32 v{t + 1}, {fbits(float(e))}, v{ai}')
        a(f'v_exp_f32 v{t}, v{t}')
        a(f'v_fract_f32 v{t + 1}, v{t + 1}')
        a(f'v_cos_f32 v{dst}, v{t + 1}')
        a(f'v_sin_f32 v{dst + 1}, v{t + 1}')
        a('s_nop 0')
        a(f'v_mul_f32 v{dst}, v{t}, v{dst}')
        a(f'v_mul_f32 v{dst + 1}, v{t}, v{dst + 1}')

    def cmul(self, d, x, y):
        a = self.a
        a(f'v_mul_f32 v{d}, v{x}, v{y}')
        a(f'v_mul_f32 v{d + 1}, v{x}, v{y + 1}')
        a(f'v_fma_f32 v{d}, -v{x + 1}, v{y + 1}, v{d}')
        a(f'v_fma_f32 v{d + 1}, v{x + 1}, v{y}, v{d + 1}')

    def kgen_waves(self):
        a = self.a
        S_CH, S_KGB, S_HF = S_A, S_B, S_C
        a.label('L_kgen')
        if 'nokg' in self.exp:
            a('s_branch L_gap1_join')
        a(f's_sub_u32 s{S_J}, s{S_WV}, 10')
        a(f's_lshr_b32 s{S_CH}, s{S_J}, 1')
        a(f's_and_b32 s{S_HF}, s{S_J}, 1')
        a(f's_lshl_b32 s{S_T0}, s{S_XC}, 6')
        a(f's_lshl_b32 s{S_T1}, s{S_IDX}, 1')
        a(f's_add_u32 s{S_T0}, s{S_T0}, s{S_T1}')
        a(f's_lshl_b32 s{S_T3}, s{S_T0}, 1')
        a(f's_load_dword s{S_DT}, s[{S_LOGDT}:{S_LOGDT + 1}], s{S_T3}')
        a(f's_add_u32 s{S_T0}, s{S_T0}, s{S_CH}')
        a(f's_lshl_b32 s{S_T0}, s{S_T0}, 8')
        a(f's_lshl_b32 s{S_T1}, s{S_HF}, 7')
        a(f's_add_u32 s{S_T0}, s{S_T0}, s{S_T1}')
        a(f'v_lshlrev_b32 v2, 1, v{V_LANE}')
        a(f'v_add_u32 v2, s{S_T0}, v2')
        for i, ptr in enumerate((S_LOGA, S_AIM, S_CRE, S_CIM)):
            a(f'global_load_ushort v{20 + i}, v2, s[{ptr}:{ptr + 1}]')
        self.token()
        a(f's_lshl_b32 s{S_T2}, s{S_CH}, 4')
        a(f's_lshr_b32 s{S_T1}, s{S_DT}, s{S_T2}')
        a(f's_lshl_b32 s{S_T1}, s{S_T1}, 16')
        L2E = fbits(LOG2E)
        a(f'v_mov_b32 v4, s{S_T1}')
        a(f'v_mul_f32 v4, {L2E}, v4')
        a('v_exp_f32 v4, v4')
        vA, vR = 8, 9
        a(f's_mul_i32 s{S_KGB}, s{S_J}, {KG_SZ}')
        a(f's_add_u32 s{S_KGB}, s{S_KGB}, {L_KG}')
        a(f'v_lshlrev_b32 v{vA}, 2, v{V_LANE}')
        a(f'v_add_u32 v{vA}, s{S_KGB}, v{vA}')
        a('s_waitcnt vmcnt(0)')
        for i in range(4):
            a(f'v_lshlrev_b32 v{20 + i}, 16, v{20 + i}')
        a(f'v_mul_f32 v20, {L2E}, v20')
        a('v_exp_f32 v20, v20')
        a('s_nop 0')
        a('v_cvt_pk_bf16_f32 v5, v4, v20')
        a('v_and_b32 v20, 0xffff0000, v5')
        a('v_lshlrev_b32 v5, 16, v5')
        for i in range(4):
            a(f'v_mul_f32 v{20 + i}, v{20 + i}, v5')
        a(f'v_mul_f32 v20, {fbits(-LOG2E)}, v20')
        a(f'v_mul_f32 v21, {fbits(INV2PI)}, v21')
        a('v_add_f32 v34, v22, v22')
        a('v_add_f32 v35, v23, v23')
        self.cexp(24, 20, 21, 1, 6)
        self.cexp(30, 20, 21, 4, 6)
        self.cexp(32, 20, 21, 128, 6)
        self.cmul(26, 24, 24)
        self.cmul(28, 26, 24)
        self.stamp('kb0')

        def row(r):
            return ((r & 3) + 8 * (r >> 2)) * ROWP

        G, Y, E = [36, 38], [42, 44], 40

        def put(z, reg, base, off, negim):
            a(f'v_cvt_pk_bf16_f32 v{reg}, v{z}, {"-" if negim else ""}v{z + 1}')
            return f'ds_write_b32 v{base}, v{reg} offset:{off}'

        def two_chains(n, xoffs, yoffs):
            for i in range(n):
                x0, x1 = G[i & 1], G[(i + 1) & 1]
                w = [put(x0, 46, vA, xoffs[i], False)]
                self.cmul(x1, x0, 32)
                for k in range(2):
                    y0, y1 = Y[k], Y[k ^ 1]
                    w.append(put(y0, 47 + k, vR, yoffs[2 * i + k], True))
                    self.cmul(y1, y0, 30)
                for ln in w:
                    a(ln)

        a('v_mov_b32 v36, v34')
        a('v_mov_b32 v37, v35')
        a('v_mov_b32 v42, 1.0')
        a('v_mov_b32 v43, 0')
        a(f'v_add_u32 v{vR}, {KG_Y}, v{vA}')
        a(f'v_mov_b32 v10, v{vA}')
        a(f's_mov_b32 s{S_K}, 0')
        a.label('L_kg_chain')
        vA = 10
        two_chains(8, [(r + 4 * hh) * ROWP for r in range(4) for hh in range(2)], [j * ROWP for j in range(16)])
        vA = 8
        a(f'v_add_u32 v10, {8 * ROWP}, v10')
        a(f'v_add_u32 v{vR}, {16 * ROWP}, v{vR}')
        a(f's_add_u32 s{S_K}, s{S_K}, 1')
        a(f's_cmp_lt_u32 s{S_K}, 2')
        a('s_cbranch_scc1 L_kg_chain')
        a(put(G[0], 46, vA, row(12), False))
        for k, wk in enumerate((24, 26, 28)):
            self.cmul(G[0], 34, wk)
            self.cmul(G[1], G[0], 32)
            w = [put(G[0], 46, vA, row(8 + k), False), put(G[1], 47, vA, row(8 + k) + 4 * ROWP, False)]
            if k == 1:
                self.cmul(E, G[1], 32)
            for ln in w:
                a(ln)
        self.cmul(G[1], E, 32)
        w = [put(E, 46, vA, row(11), False), put(G[1], 47, vA, row(11) + 4 * ROWP, False)]
        for ln in w:
            a(ln)
        self.stamp('kg_ch')
        XA, YA, D, FR = 2, 3, 48, 64
        a(f'v_and_b32 v4, 31, v{V_LANE}')
        a(f'v_mul_u32_u24 v4, {ROWP}, v4')
        a(f'v_lshrrev_b32 v5, 5, v{V_LANE}')
        a('v_lshl_add_u32 v4, v5, 4, v4')
        a(f'v_add_u32 v{XA}, s{S_KGB}, v4')
        a(f'v_add_u32 v{YA}, {KG_Y}, v{XA}')
        a('s_waitcnt lgkmcnt(0)')

        def rd(s):
            a(f'ds_read_b128 {vr(FR + 8 * s, 4)}, v{XA} offset:{32 * s}')
            a(f'ds_read_b128 {vr(FR + 8 * s + 4, 4)}, v{YA} offset:{32 * s}')
        for s in range(6):
            rd(s)
        for s in range(8):
            a(f's_waitcnt lgkmcnt({10 if s < 3 else 2 * (7 - s)})')
            c = '0' if s == 0 else vr(D, 16)
            a(f'v_mfma_f32_32x32x16_bf16 {vr(D, 16)}, {vr(FR + 8 * s, 4)}, {vr(FR + 8 * s + 4, 4)}, {c}')
            if s + 6 < 8:
                rd(s + 6)
        a(f's_mov_b32 s{S_T0}, s{S_J}')
        a(f's_lshl_b32 s{S_T1}, s{S_T0}, 2')
        a(f's_add_u32 s{S_T1}, s{S_T1}, {M_KT}')
        a(f'v_mov_b32 v6, s{S_T1}')
        a(f'v_mov_b32 v7, s{S_TOK}')
        a('ds_write_b32 v6, v7')
        a(f'v_mov_b32 v10, {M_KT}')
        self.lds_spin(10, 12, 4, sleep=2)
        a(f's_lshl_b32 s{S_T1}, s{S_T0}, 12')
        a(f's_add_u32 s{S_T1}, s{S_T1}, {L_KPART}')
        a(f'v_lshlrev_b32 v11, 4, v{V_LANE}')
        a(f'v_add_u32 v12, s{S_T1}, v11')
        for i in range(4):
            a(f'ds_write_b128 v12, {vr(D + 4 * i, 4)} offset:{1024 * i}')
        a('s_waitcnt lgkmcnt(0)')
        a('ds_write_b32 v6, v7 offset:16')
        a('v_xor_b32 v6, 4, v6')
        a('v_xor_b32 v12, 4096, v12')
        self.lds_spin(6, 14, 1, off=16, sleep=1)
        for i in range(4):
            a(f'ds_read_b128 {vr(FR + 4 * i, 4)}, v12 offset:{1024 * i}')
        a(f's_mul_i32 s{S_KGB}, s{S_CH}, {KSP_SZ}')
        a(f's_add_u32 s{S_KGB}, s{S_KGB}, {L_KSP}')
        a(f'v_and_b32 v4, 31, v{V_LANE}')
        a('v_lshlrev_b32 v4, 3, v4')
        a('v_lshl_add_u32 v4, v5, 8, v4')
        a(f'v_add_u32 v4, s{S_KGB}, v4')
        a('s_waitcnt lgkmcnt(0)')
        for i in range(14):
            a(f'v_add_f32 v{D + i}, v{D + i}, v{FR + i}')
        for i in range(0, 14, 2):
            a(f'v_cvt_pk_bf16_f32 v{FR + 16 + i // 2}, v{D + i}, v{D + i + 1}')
        for r in range(13):
            op = 'ds_write_b16' if r % 2 == 0 else 'ds_write_b16_d16_hi'
            a(f'{op} v4, v{FR + 16 + r // 2} offset:{2 * HI0[r]}')
        self.stamp('kg_mf')
        a(f's_mul_i32 s{S_T3}, s{S_CH}, {R_SZ}')
        a(f's_lshl_b32 s{S_T1}, s{S_HF}, 11')
        a(f's_add_u32 s{S_T3}, s{S_T3}, s{S_T1}')
        a(f's_add_u32 s{S_T3}, s{S_T3}, {L_R}')
        a(f'v_lshlrev_b32 v8, 2, v{V_LANE}')
        a(f'v_add_u32 v8, s{S_T3}, v8')
        a(f's_lshl_b32 s{S_T1}, s{S_HF}, 10')
        a(f's_sub_u32 s{S_T1}, 2047, s{S_T1}')
        a(f'v_lshlrev_b32 v9, 1, v{V_LANE}')
        a(f'v_sub_u32 v9, s{S_T1}, v9')
        a('v_cvt_f32_i32 v9, v9')
        a('s_waitcnt lgkmcnt(0)')
        EB = 20

        def gather(k, qq):
            t = EB + 4 * k
            a(f'v_add_f32 v{t}, {fbits(-128.0 * qq)}, v9')
            a(f'v_add_f32 v{t + 1}, -1.0, v{t}')
            a(f'v_cvt_pk_bf16_f32 v{t}, v{t}, v{t + 1}')
            a(f'v_and_b32 v{t + 1}, 0xffff0000, v{t}')
            a(f'v_lshlrev_b32 v{t}, 16, v{t}')
            a(f'v_cvt_u32_f32 v{t}, v{t}')
            a(f'v_cvt_u32_f32 v{t + 1}, v{t + 1}')
            a(f'v_lshl_add_u32 v{t}, v{t}, 1, s{S_KGB}')
            a(f'v_lshl_add_u32 v{t + 1}, v{t + 1}, 1, s{S_KGB}')
            a(f'ds_read_u16 v{t + 2}, v{t}')
            a(f'ds_read_u16_d16_hi v{t + 3}, v{t + 1}')

        for batch in (range(0, 5), range(5, 9)):
            for k, qq in enumerate(batch):
                gather(k, qq)
            a('s_waitcnt lgkmcnt(0)')
            for k, qq in enumerate(batch):
                t = EB + 4 * k
                a(f'v_or_b32 v{t + 2}, v{t + 2}, v{t + 3}')
                if qq < 8:
                    a(f'ds_write_b32 v8, v{t + 2} offset:{256 * qq}')
                else:
                    a(f's_cmp_eq_u32 s{S_HF}, 0')
                    a(f's_cselect_b32 s{S_T1}, -1, 0')
                    a(f'v_and_b32 v{t + 2}, s{S_T1}, v{t + 2}')
                    a(f's_cselect_b32 s{S_T4}, 1, 0xff')
                    a(f's_mov_b32 s{S_T5}, 0')
                    a(f's_mov_b64 exec, s[{S_T4}:{S_T4 + 1}]')
                    a(f'ds_write_b32 v8, v{t + 2} offset:{256 * qq}')
                    a('s_mov_b64 exec, -1')
        a('s_waitcnt lgkmcnt(0)')
        for k in range(8):
            if k % 4 == 0:
                a(f'v_add_u32 v10, {256 * k}, v8')
            a(f'ds_read2_b32 {vr(EB + 2 * k, 2)}, v10 offset0:{64 * (k % 4)} offset1:{64 * (k % 4) + 1}')
        a('s_waitcnt lgkmcnt(0)')
        for k in range(8):
            a(f'v_alignbit_b32 v{EB + 2 * k}, v{EB + 2 * k + 1}, v{EB + 2 * k}, 16')
            a(f'ds_write_b32 v8, v{EB + 2 * k} offset:{R_O + 256 * k}')
        a(f's_cmp_eq_u32 s{S_HF}, 0')
        a('s_cbranch_scc1 L_gap1_join')
        a('v_mov_b32 v4, 0')
        a('s_mov_b64 exec, 0x7f')
        a(f'ds_write_b32 v8, v4 offset:{R_O + 2048}')
        a('s_mov_b64 exec, -1')
        self.stamp('kg_fin')
        a('s_branch L_gap1_join')

    def side_waves(self):
        a = self.a
        a.label('L_side')
        a(f's_cmp_eq_u32 s{S_WV}, 14')
        a('s_cbranch_scc1 L_ustage')
        self.token()
        a(f's_add_u32 s{S_T0}, s{S_INB}, {IB_U}')
        a(f'v_lshlrev_b32 v2, 4, v{V_LANE}')
        self.lanes(56)
        a(f'buffer_load_dwordx4 v[12:15], v2, {WSR}, s{S_T0} offen sc1')
        self.lanes(64)
        a(f'v_lshlrev_b32 v2, 14, v{V_LANE}')
        a(f's_lshl_b32 s{S_T0}, s{S_XC}, 11')
        a(f's_lshl_b32 s{S_T1}, s{S_IDX}, 2')
        a(f's_add_u32 s{S_T0}, s{S_T0}, s{S_T1}')
        a(f's_add_u32 s{S_T0}, s{S_T0}, {WS_INBOX + IB_X}')
        a(f's_xor_b32 s{S_T1}, s{S_TOK}, s{S_XCC}')
        a(f's_xor_b32 s{S_T1}, s{S_T1}, 0x80')
        a(f'v_mov_b32 v3, s{S_T1}')
        a(f'v_lshlrev_b32 v9, 2, v{V_LANE}')
        a(f's_add_u32 s{S_T2}, s{S_INB}, {IB_X}')
        a(f'v_add_u32 v9, s{S_T2}, v9')
        self.lanes(32)
        a(f'buffer_store_dword v3, v2, {WSR}, s{S_T0} offen sc1')
        self.lanes(64)
        a(f'v_mov_b32 v17, {M_F}')
        self.lds_spin(17, 12, 2, sleep=4)
        self.lanes(32)
        a(f's_mov_b32 s{S_CNT}, 0')
        a.label('L_x_poll')
        a(f'buffer_load_dword v8, v9, {WSR}, 0 offen sc1')
        a(f's_add_u32 s{S_CNT}, s{S_CNT}, 1')
        a('s_waitcnt vmcnt(0)')
        a(f'v_xor_b32 v7, s{S_TOK}, v8')
        a('v_and_b32 v7, -16, v7')
        a('v_cmp_ne_u32 vcc, 0x80, v7')
        a(f's_cmp_gt_u32 s{S_CNT}, {SPIN_MAX}')
        a('s_cbranch_scc1 L_x_ok')
        a('s_cbranch_vccnz L_x_poll')
        a.label('L_x_ok')
        a(f'v_cmp_ne_u32 vcc, s{S_T1}, v8')
        a('s_nop 1')
        a('s_cmp_eq_u64 vcc, 0')
        a(f's_cselect_b32 s{S_MODE}, 1, 0')
        self.lanes(64)
        a(f'v_mov_b32 v6, {M_MODE}')
        a(f'v_mov_b32 v10, s{S_MODE}')
        a(f'v_mov_b32 v11, s{S_TOK}')
        a('ds_write_b64 v6, v[10:11]')
        self.stamp('mode')
        if 'nous' in self.exp or 'nokg' in self.exp:
            a('s_branch L_gap1_join')
        a(f'v_mov_b32 v17, {M_KT}')
        self.lds_spin(17, 12, 4, sleep=8)
        a(f'v_lshlrev_b32 v2, 2, v{V_LANE}')
        a(f's_add_u32 s{S_T0}, s{S_INB}, {IB_U}')
        a(f'v_add_u32 v2, s{S_T0}, v2')
        self.ws_spin(2, 3, 32, 'uf')
        a(f'v_lshlrev_b32 v4, 4, v{V_LANE}')
        a(f's_lshl_b32 s{S_T0}, s{S_XC}, 18')
        a(f's_lshl_b32 s{S_T1}, s{S_IDX}, 13')
        a(f's_add_u32 s{S_T0}, s{S_T0}, s{S_T1}')
        a(f's_add_u32 s{S_T0}, s{S_T0}, {WS_UT}')
        for c in range(2):
            for i in range(4):
                a(f's_mov_b32 m0, {L_UL + c * UL_SZ + 512 + 1024 * i}')
                a(f's_add_u32 s{S_T1}, s{S_T0}, {4096 * c + 1024 * i}')
                a(f'buffer_load_dwordx4 v4, {WSR}, s{S_T1} offen sc1 lds')
        a(f'v_lshlrev_b32 v2, 3, v{V_LANE}')
        a(f'v_add_u32 v2, {L_UL}, v2')
        a('v_mov_b32 v10, 0')
        a('v_mov_b32 v11, 0')
        a('ds_write_b64 v2, v[10:11]')
        a(f'ds_write_b64 v2, v[10:11] offset:{UL_SZ}')
        a('s_waitcnt vmcnt(0)')
        self.stamp('ul')
        a('s_branch L_gap1_join')

        a.label('L_ustage')
        if 'nous' in self.exp:
            self.token()
            a(f'v_mov_b32 v4, {M_U}')
            a(f'v_mov_b32 v5, s{S_TOK}')
            a('ds_write_b32 v4, v5')
            a('s_branch L_gap1_join')
        a(f'v_lshrrev_b32 v3, 3, v{V_LANE}')
        a('v_lshlrev_b32 v3, 10, v3')
        a(f'v_and_b32 v2, 7, v{V_LANE}')
        a('v_lshl_add_u32 v3, v2, 4, v3')
        a(f's_lshl_b32 s{S_T0}, s{S_IDX}, 16')
        a(f's_lshl_b32 s{S_T1}, s{S_XC}, 7')
        a(f's_add_u32 s{S_T2}, s{S_T0}, s{S_T1}')
        for i in range(8):
            a(f's_mov_b32 m0, {L_USTAGE + 1024 * i}')
            a(f's_add_u32 s{S_T1}, s{S_T2}, {8192 * i}')
            a(f'buffer_load_dwordx4 v3, s[{R_U}:{R_U + 3}], s{S_T1} offen lds')
        self.token()
        B = 20
        a(f'v_bfe_u32 v2, v{V_LANE}, 2, 2')
        a('v_lshlrev_b32 v2, 7, v2')
        a(f'v_lshrrev_b32 v3, 4, v{V_LANE}')
        a('v_lshl_add_u32 v2, v3, 5, v2')
        a(f'v_and_b32 v3, 3, v{V_LANE}')
        a('v_lshl_add_u32 v2, v3, 3, v2')
        a(f'v_add_u32 v2, {L_USTAGE}, v2')
        a('s_waitcnt vmcnt(0)')
        for o in range(8):
            a(f'ds_read_b64_tr_b16 {vr(B + 4 * o, 2)}, v2 offset:{o * 1024}')
            a(f'ds_read_b64_tr_b16 {vr(B + 4 * o + 2, 2)}, v2 offset:{o * 1024 + 512}')
            if o == 5:
                a('s_waitcnt lgkmcnt(6)')
        a(f'v_mov_b32 v4, {M_U}')
        a(f'v_mov_b32 v5, s{S_TOK}')
        a('s_waitcnt lgkmcnt(0)')
        a('ds_write_b32 v4, v5')
        a(f'v_mov_b32 v6, {M_MODE}')
        self.lds_spin(6, 8, 1, off=4, sleep=8)
        a('ds_read_b32 v8, v6')
        a(f'v_lshlrev_b32 v2, 12, v{V_LANE}')
        a(f's_lshl_b32 s{S_T0}, s{S_XC}, 18')
        a(f's_lshl_b32 s{S_T1}, s{S_IDX}, 7')
        a(f's_add_u32 s{S_T0}, s{S_T0}, s{S_T1}')
        a(f's_add_u32 s{S_T0}, s{S_T0}, {WS_UT}')
        a('s_waitcnt lgkmcnt(0)')
        a(f'v_readfirstlane_b32 s{S_MODE}, v8')
        self.store_mode([f'buffer_store_dwordx4 {vr(B + 4 * o, 4)}, v2, {WSR}, s{S_T0} offen offset:{16 * o} {{M}}' for o in range(8)])
        a(f's_lshl_b32 s{S_T0}, s{S_XC}, 11')
        a(f's_lshl_b32 s{S_T1}, s{S_IDX}, 2')
        a(f's_add_u32 s{S_T0}, s{S_T0}, s{S_T1}')
        a(f's_add_u32 s{S_T0}, s{S_T0}, {WS_INBOX + IB_U}')
        a(f'v_lshlrev_b32 v2, 14, v{V_LANE}')
        a('s_waitcnt vmcnt(0)')
        self.lanes(32)
        self.store_mode([f'buffer_store_dword v5, v2, {WSR}, s{S_T0} offen {{M}}'])
        self.lanes(64)
        self.stamp('uf')

    def finish(self):
        a = self.a
        a.label('L_finish')
        if self.prof:
            a('s_waitcnt vmcnt(0)')
            self.stamp('end')
            a('s_waitcnt lgkmcnt(0)')
            a(f's_lshl_b32 s{S_T0}, s{S_WV}, 5')
            a(f's_lshl_b32 s{S_T1}, s2, 9')
            a(f's_add_u32 s{S_T0}, s{S_T0}, s{S_T1}')
            a(f's_add_u32 s{S_T0}, s{S_T0}, {WS_PROF}')
            for i in range(7):
                a(f'v_mov_b32 v{2 + i}, s{S_PROF + 2 * i}')
            a(f'v_mov_b32 v9, s{S_XCC}')
            a('v_mov_b32 v10, 0')
            a('s_mov_b64 exec, 1')
            a(f'buffer_store_dwordx4 v[2:5], v10, {WSR}, s{S_T0} offen')
            a(f'buffer_store_dwordx4 v[6:9], v10, {WSR}, s{S_T0} offen offset:16')
            a('s_mov_b64 exec, -1')
        a('s_cmp_lg_u32 s2, 0')
        a('s_cbranch_scc1 L_exit')
        a(f's_cmp_lg_u32 s{S_WV}, 0')
        a('s_cbranch_scc1 L_exit')
        a(f'v_mov_b32 v2, s{S_TOK}')
        a(f'v_mov_b32 v3, {WS_G}')
        a('s_mov_b64 exec, 1')
        a(f'buffer_store_dword v2, v3, {WSR}, 0 offen sc1')
        a.label('L_exit')
        a('s_endpgm')

    def build(self):
        import phases3
        a = self.a
        self.prologue()
        self.loader_waves()
        a.label('L_notloader')
        a('s_waitcnt lgkmcnt(0)')
        self.common_setup()
        a(f's_cmp_ge_u32 s{S_WV}, 14')
        a('s_cbranch_scc1 L_side')
        a(f's_cmp_ge_u32 s{S_WV}, 10')
        a('s_cbranch_scc1 L_kgen')
        self.gemm_waves()
        self.kgen_waves()
        self.side_waves()
        a.label('L_gap1_join')
        a('s_setprio 0')
        a('s_waitcnt lgkmcnt(0)')
        a('s_barrier')
        phases3.rest(self)
        self.finish()
        a.label('L_code_end')
        a('s_endpgm')
        return self.wrap()

    def wrap(self):
        head = open(os.path.join(os.path.dirname(os.path.abspath(__file__)), 'header.txt')).read()
        body = self.a.text()
        txt = head + f'; @launch grid=(256,1,1) block=(1024,1,1) lds={LDS_BYTES}\n'
        txt += f'.amdgcn_target "amdgcn-amd-amdhsa--gfx950"\n.text\n.globl {KERNEL}\n.p2align 8\n.type {KERNEL},@function\n{KERNEL}:\n'
        txt += body
        txt += f'''.section .rodata,"a"
.p2align 6
.amdhsa_kernel {KERNEL}
  .amdhsa_next_free_vgpr 128
  .amdhsa_next_free_sgpr 102
  .amdhsa_accum_offset 128
  .amdhsa_group_segment_fixed_size 0
  .amdhsa_kernarg_size 104
  .amdhsa_user_sgpr_count 2
  .amdhsa_user_sgpr_kernarg_segment_ptr 1
  .amdhsa_system_sgpr_workgroup_id_x 1
  .amdhsa_float_denorm_mode_32 3
.end_amdhsa_kernel
'''
        return txt, body


def main():
    import argparse
    ap = argparse.ArgumentParser()
    ap.add_argument('-o', default=f'cdna_kernels/{NAME}.s')
    ap.add_argument('--stop', default=None)
    ap.add_argument('--exp', default='')
    ap.add_argument('--prof', default='')
    ap.add_argument('--points', default='entry,gemm,attn0,attn1,conv,end')
    args = ap.parse_args()
    g = Gen(stop=args.stop, prof=args.prof, points=args.points, exp=args.exp)
    txt, body = g.build()
    probs = check_hazards(body)
    for p in probs:
        print('HAZARD', p)
    open(args.o, 'w').write(txt)
    n = sum(1 for l in body.split('\n') if l.startswith('  ') and not l.strip().startswith(';'))
    print(f'wrote {args.o}: {n} instructions, {len(probs)} hazard findings')
    return 1 if probs else 0


if __name__ == '__main__':
    sys.exit(main())
```

```python
from asmlib import vr
from gen2 import *

S_DSKV = 85


def toff(v):
    return (v >> 1) * 4096 + (v & 1) * 1024


def attn_join(g):
    a = g.a
    a(f'v_lshlrev_b32 v{A_L16}, 4, v{V_LANE}')
    a(f's_and_b32 s{S_T0}, s{S_WV}, 7')
    a(f's_lshl_b32 s{S_T0}, s{S_T0}, 10')
    a(f's_add_u32 s{S_T0}, s{S_T0}, {L_QS}')
    a(f'v_add_u32 v2, s{S_T0}, v{A_L16}')
    a(f'ds_read_b128 {vr(A_Q, 4)}, v2')
    a(f'v_mov_b32 v7, {M_MODE}')
    a('ds_read_b32 v7, v7')
    a('s_waitcnt lgkmcnt(0)')
    a(f'v_readfirstlane_b32 s{S_MODE}, v7')
    a('s_barrier')
    g.stamp('attn0')
    a(f's_cmp_ge_u32 s{S_WV}, 8')
    a('s_cbranch_scc1 L_conv')


def attn_setup(g, start):
    a = g.a
    a(f'v_lshlrev_b32 v{A_L16}, 4, v{V_LANE}')
    a(f'v_lshlrev_b32 v{A_PA}, 2, v{V_LANE}')
    a(f's_add_u32 s{S_T0}, s{S_INB}, {IB_KV}')
    a(f'v_add_u32 v{A_PA}, s{S_T0}, v{A_PA}')
    a(f'v_add_u32 v{A_KA}, {start}, v{A_L16}')
    a(f'ds_read_b128 {vr(A_K[0], 4)}, v{A_KA}')
    a(f's_lshl_b32 s{S_T0}, s{S_XC}, 3')
    a(f's_lshl_b64 s[{S_IGN}:{S_IGN + 1}], 0xff, s{S_T0}')
    a(f'v_lshrrev_b32 v2, 5, v{V_LANE}')
    a('v_lshlrev_b32 v2, 8, v2')
    a(f'v_and_b32 v3, 15, v{V_LANE}')
    a('v_lshl_add_u32 v2, v3, 4, v2')
    a(f'v_add_u32 v{A_VA}, {L_V + start}, v2')
    a(f'v_and_b32 v2, 27, v{V_LANE}')
    a('v_cmp_eq_u32 vcc, 16, v2')
    a('v_mov_b32 v3, 0x3f803f80')
    a('s_nop 0')
    a('v_cndmask_b32 v2, 0, v3, vcc')
    for i in range(16):
        a(f'v_mov_b32 v{A_V[0] + i}, v2')
    a(f's_mov_b64 exec, s[{S_MASK}:{S_MASK + 1}]')
    a(f'ds_read_b128 {vr(A_V[0], 4)}, v{A_VA}')
    a(f'ds_read_b128 {vr(A_V[0] + 4, 4)}, v{A_VA} offset:512')
    a('s_mov_b64 exec, -1')
    for i in range(16):
        a(f'v_mov_b32 v{A_O + i}, 0')
    for i in range(8):
        a(f'v_mov_b32 v{A_P + i}, 0')
    a('s_waitcnt lgkmcnt(2)')
    a(f'v_mfma_f32_32x32x16_bf16 {vr(A_S[0], 16)}, {vr(A_K[0], 4)}, {vr(A_Q, 4)}, 0')
    a('s_nop 7')
    a('s_nop 3')


def attn_tile(g, u, top=None, mid=None, nxt_off=None):
    a = g.a
    if nxt_off is None:
        nxt_off = toff(u + 1)
    cur = u & 1
    nxt = cur ^ 1
    S, P = A_S[cur], A_P

    def ex(i):
        a(f'v_exp_f32 v{S + i}, v{S + i}')

    def cv(k):
        a(f'v_cvt_pk_bf16_f32 v{P + k}, v{S + 2 * k}, v{S + 2 * k + 1}')

    if top:
        top()
    a(f'ds_read_b128 {vr(A_K[nxt], 4)}, v{A_KA} offset:{nxt_off}')
    ex(0); ex(1); ex(2); cv(0); ex(3)
    a(f'v_mfma_f32_32x32x16_bf16 {vr(A_O, 16)}, {vr(A_V[nxt] + 4, 4)}, {vr(P + 4, 4)}, {vr(A_O, 16)}')
    a(f's_mov_b64 exec, s[{S_MASK}:{S_MASK + 1}]')
    a(f'ds_read_b128 {vr(A_V[nxt], 4)}, v{A_VA} offset:{nxt_off}')
    a(f'ds_read_b128 {vr(A_V[nxt] + 4, 4)}, v{A_VA} offset:{nxt_off + 512}')
    a('s_mov_b64 exec, -1')
    ex(4); cv(1); ex(5); ex(6); cv(2)
    a('s_waitcnt lgkmcnt(2)')
    a(f'v_mfma_f32_32x32x16_bf16 {vr(A_S[nxt], 16)}, {vr(A_K[nxt], 4)}, {vr(A_Q, 4)}, 0')
    ex(7); ex(8); cv(3); ex(9); ex(10)
    a(f'v_mfma_f32_32x32x16_bf16 {vr(A_O, 16)}, {vr(A_V[cur], 4)}, {vr(P, 4)}, {vr(A_O, 16)}')
    if mid:
        mid()
    cv(4); ex(11); ex(12); cv(5); ex(13); ex(14); ex(15); cv(6); cv(7)


def dma_waves_only(g, body, name):
    a = g.a
    a(f's_and_b32 s{S_T0}, s{S_WV}, 12')
    a(f's_cmp_eq_u32 s{S_T0}, 4')
    a(f's_cbranch_scc0 {name}')
    body()
    a.label(name)


def attn_local(g):
    a = g.a
    a(f's_cmp_lt_u32 s{S_WV}, 4')
    a('s_cbranch_scc0 L_at_norf')
    a(f'v_and_b32 v2, 1, v{V_LANE}')
    a('v_lshlrev_b32 v2, 3, v2')
    a(f'v_lshrrev_b32 v3, 1, v{V_LANE}')
    a('v_add_u32 v2, v2, v3')
    a('v_lshlrev_b32 v2, 11, v2')
    a(f'v_mov_b32 v3, s{S_TOK}')
    a('s_setprio 3')
    a('s_waitcnt vmcnt(0)')
    g.stamp('st_rem')
    a('s_mov_b64 exec, 0xffff')
    a(f'buffer_store_dword v3, v2, {WSR}, s{S_A} offen sc1')
    a('s_mov_b64 exec, -1')
    a('s_setprio 0')
    a.label('L_at_norf')
    attn_setup(g, 0)

    def blocks(*js):
        def f():
            for j in js:
                g.kv_dma(j, WS_KR, WS_VR)
        return f

    def first():
        g.ws_spin(A_PA, A_PV, 64, 'rem', preissued=True, ignore=S_IGN)
        g.stamp('rem_ok')
        blocks(2, 3)()

    def r1():
        g.stamp('r1a')
        a('s_waitcnt vmcnt(0)')
        a('s_barrier')
        g.stamp('r1b')

    mids = {1: lambda: dma_waves_only(g, first, 'L_at_d0'),
            2: lambda: dma_waves_only(g, blocks(4, 5), 'L_at_d1'),
            3: lambda: dma_waves_only(g, blocks(6, 7), 'L_at_d2')}
    for u in range(8):
        attn_tile(g, u, r1 if u == 7 else None, mids.get(u), nxt_off=(u + 1) * 1024)
    a(f'v_add_u32 v{A_KA}, 8192, v{A_KA}')
    a(f'v_add_u32 v{A_VA}, 8192, v{A_VA}')


def attn_shared(g):
    a = g.a
    a.label('L_at_shared')

    def blocks(*js):
        def f():
            for j in js:
                g.kv_dma(j, WS_KR, WS_VR)
        return f

    def yflags():
        a(f's_cmp_ge_u32 s{S_WV}, 8')
        a('s_cbranch_scc0 L_at_noyf')
        a(f'v_lshlrev_b32 v2, 14, v{V_LANE}')
        a(f'v_mov_b32 v3, s{S_TOK}')
        a('s_waitcnt vmcnt(0)')
        g.lanes(8)
        g.store_mode([f'buffer_store_dword v3, v2, {WSR}, s{S_A} offen {{M}}'])
        g.lanes(64)
        a.label('L_at_noyf')

    mids = {0: lambda: (dma_waves_only(g, blocks(8, 9), 'L_at_d3'), yflags()),
            1: lambda: dma_waves_only(g, blocks(10, 11), 'L_at_d4'),
            2: lambda: dma_waves_only(g, blocks(12, 13), 'L_at_d5'),
            3: lambda: dma_waves_only(g, blocks(14, 15), 'L_at_d6')}
    for v in range(4):
        attn_tile(g, v, None, mids[v])
    a(f'v_add_u32 v{A_KA}, 8192, v{A_KA}')
    a(f'v_add_u32 v{A_VA}, 8192, v{A_VA}')
    a(f's_mov_b32 s{S_J}, 1')
    a('.p2align 6')
    a.label('L_at_loop')
    a(f's_cmp_ge_u32 s{S_J}, 2')
    a('s_cbranch_scc1 L_at_hook')
    a.label('L_at_back')

    def r2():
        a(f's_cmp_eq_u32 s{S_J}, 1')
        a('s_cbranch_scc1 L_at_r2')
        a.label('L_at_r2back')
    for u in range(8):
        attn_tile(g, u, r2 if u == 7 else None)
    a(f'v_add_u32 v{A_KA}, 16384, v{A_KA}')
    a(f'v_add_u32 v{A_VA}, 16384, v{A_VA}')
    a(f's_add_u32 s{S_J}, s{S_J}, 1')
    a(f's_cmp_lt_u32 s{S_J}, 4')
    a('s_cbranch_scc1 L_at_loop')
    a(f'v_mfma_f32_32x32x16_bf16 {vr(A_O, 16)}, {vr(A_V[1] + 4, 4)}, {vr(A_P + 4, 4)}, {vr(A_O, 16)}')
    a('s_waitcnt lgkmcnt(0)')


def attn_hooks(g):
    a = g.a
    a.label('L_at_r2')
    g.stamp('r2a')
    a('s_waitcnt vmcnt(0)')
    a('s_barrier')
    g.stamp('r2b')
    a('s_branch L_at_r2back')
    a.label('L_at_hook')
    a(f's_cmp_eq_u32 s{S_J}, 2')
    a('s_cbranch_scc0 L_at_hook3')
    if 'notouch' not in g.exp:
        a(f's_cmp_eq_u32 s{S_WV}, 0')
        a('s_cbranch_scc0 L_at_noot')
        a(f's_cmp_eq_u32 s{S_MODE}, 1')
        a('s_cbranch_scc0 L_at_back')
        a(f'v_lshrrev_b32 v2, 3, v{V_LANE}')
        a('v_lshlrev_b32 v2, 15, v2')
        a(f'v_and_b32 v3, 7, v{V_LANE}')
        a('v_lshl_add_u32 v2, v3, 7, v2')
        a(f's_lshl_b32 s{S_T0}, s{S_XC}, 18')
        a(f's_lshl_b32 s{S_T1}, s{S_H}, 10')
        a(f's_add_u32 s{S_T0}, s{S_T0}, s{S_T1}')
        a(f's_add_u32 s{S_T0}, s{S_T0}, {WS_OF}')
        a(f'buffer_load_dword v10, v2, {WSR}, s{S_T0} offen')
        if 'toucho' in g.exp:
            a(f'v_lshlrev_b32 v2, 11, v{V_LANE}')
            a(f's_lshl_b32 s{S_T0}, s{S_XC}, 19')
            a(f's_and_b32 s{S_T2}, s{S_IDX}, 3')
            a(f's_lshl_b32 s{S_T2}, s{S_T2}, 17')
            a(f's_add_u32 s{S_T0}, s{S_T0}, s{S_T2}')
            a(f's_lshr_b32 s{S_T2}, s{S_IDX}, 2')
            a(f's_lshl_b32 s{S_T2}, s{S_T2}, 7')
            a(f's_add_u32 s{S_T0}, s{S_T0}, s{S_T2}')
            a(f'buffer_load_dword v11, v2, s[{R_OUT}:{R_OUT + 3}], s{S_T0} offen')
        a('s_branch L_at_back')
        a.label('L_at_noot')
    a(f's_cmp_lt_u32 s{S_WV}, 8')
    a('s_cbranch_scc1 L_at_back')
    a(f'v_lshlrev_b32 v2, 2, v{V_LANE}')
    a(f's_add_u32 s{S_T0}, s{S_INB}, {IB_Y}')
    a(f'v_add_u32 v2, s{S_T0}, v2')
    g.ws_spin(2, 3, 64, 'yf')
    a(f'v_lshrrev_b32 v2, 4, v{V_LANE}')
    a('v_lshlrev_b32 v2, 12, v2')
    a(f'v_bfe_u32 v3, v{V_LANE}, 2, 2')
    a('v_lshl_add_u32 v2, v3, 8, v2')
    a(f'v_and_b32 v3, 3, v{V_LANE}')
    a('v_lshl_add_u32 v2, v3, 4, v2')
    a(f's_lshl_b32 s{S_T0}, s{S_XC}, 18')
    a(f's_lshr_b32 s{S_T1}, s{S_IDX}, 3')
    a(f's_lshl_b32 s{S_T1}, s{S_T1}, 10')
    a(f's_add_u32 s{S_T0}, s{S_T0}, s{S_T1}')
    a(f's_and_b32 s{S_T1}, s{S_IDX}, 3')
    a(f's_lshl_b32 s{S_T1}, s{S_T1}, 6')
    a(f's_add_u32 s{S_T0}, s{S_T0}, s{S_T1}')
    a(f's_and_b32 s{S_T2}, s{S_WV}, 7')
    a(f's_lshl_b32 s{S_T1}, s{S_T2}, 15')
    a(f's_add_u32 s{S_T0}, s{S_T0}, s{S_T1}')
    a(f's_add_u32 s{S_T0}, s{S_T0}, {WS_YT}')
    a(f's_mul_i32 s{S_T3}, s{S_T2}, {2 * 1040}')
    for i in range(2):
        a(f's_add_u32 m0, s{S_T3}, {L_YS + i * 1040}')
        a(f's_add_u32 s{S_T1}, s{S_T0}, {i * 16384}')
        a(f'buffer_load_dwordx4 v2, {WSR}, s{S_T1} offen sc1 lds')
    a('s_branch L_at_back')

    a.label('L_at_hook3')
    a('s_waitcnt vmcnt(0)')
    a('s_barrier')
    a(f'v_lshrrev_b32 v2, 2, v{V_LANE}')
    a('v_and_b32 v2, 7, v2')
    a('v_lshlrev_b32 v2, 10, v2')
    a(f'v_lshrrev_b32 v3, 5, v{V_LANE}')
    a('v_lshl_add_u32 v2, v3, 6, v2')
    a(f'v_and_b32 v3, 3, v{V_LANE}')
    a('v_lshl_add_u32 v2, v3, 4, v2')
    a(f's_lshl_b32 s{S_T0}, s{S_WV}, 15')
    a(f's_lshr_b32 s{S_T1}, s{S_IDX}, 2')
    a(f's_lshl_b32 s{S_T1}, s{S_T1}, 7')
    a(f's_add_u32 s{S_T0}, s{S_T0}, s{S_T1}')
    a(f's_lshl_b32 s{S_T2}, s{S_WV}, 12')
    a(f's_cmp_ge_u32 s{S_WV}, 8')
    a(f's_cselect_b32 s{S_T3}, 32768, 0')
    a(f's_add_u32 s{S_T2}, s{S_T2}, s{S_T3}')
    for i in range(4):
        a(f's_add_u32 m0, s{S_T2}, {1024 * i}')
        a(f's_add_u32 s{S_T1}, s{S_T0}, {8192 * i}')
        a(f'buffer_load_dwordx4 v2, s[{R_WO}:{R_WO + 3}], s{S_T1} offen lds')
    a(f's_cmp_lt_u32 s{S_WV}, 8')
    a('s_cbranch_scc1 L_at_back')
    Y0 = 96
    a(f's_and_b32 s{S_T2}, s{S_WV}, 7')
    a(f'v_and_b32 v3, 7, v{V_LANE}')
    a('v_mul_u32_u24 v10, 2080, v3')
    a(f'v_bfe_u32 v11, v{V_LANE}, 5, 1')
    a('v_lshl_add_u32 v10, v11, 6, v10')
    a(f'v_bfe_u32 v11, v{V_LANE}, 3, 2')
    a('v_lshl_add_u32 v10, v11, 1, v10')
    a(f's_bfe_u32 s{S_T0}, s{S_IDX}, 0x10002')
    a(f's_lshl_b32 s{S_T0}, s{S_T0}, 3')
    a(f's_lshr_b32 s{S_T1}, s{S_T2}, 1')
    a(f's_lshl_b32 s{S_T1}, s{S_T1}, 4')
    a(f's_add_u32 s{S_T0}, s{S_T0}, s{S_T1}')
    a(f's_and_b32 s{S_T1}, s{S_T2}, 1')
    a(f's_lshl_b32 s{S_T1}, s{S_T1}, 7')
    a(f's_add_u32 s{S_T0}, s{S_T0}, s{S_T1}')
    a(f's_add_u32 s{S_T0}, s{S_T0}, {L_YS}')
    a(f'v_add_u32 v10, s{S_T0}, v10')
    for e in range(8):
        op = 'ds_read_u16' if e % 2 == 0 else 'ds_read_u16_d16_hi'
        a(f'{op} v{Y0 + 4 + e}, v10 offset:{(e >> 2) * 1040 + (e & 3) * 256}')
    a(f'v_lshrrev_b32 v2, 3, v{V_LANE}')
    a(f's_lshl_b32 s{S_T1}, s{S_T2}, 3')
    a(f'v_add_u32 v2, s{S_T1}, v2')
    a('v_lshlrev_b32 v2, 11, v2')
    a('v_lshl_add_u32 v2, v3, 4, v2')
    a(f's_lshl_b32 s{S_T0}, s{S_IDX}, 17')
    a(f's_lshl_b32 s{S_T1}, s{S_XC}, 7')
    a(f's_add_u32 s{S_T0}, s{S_T0}, s{S_T1}')
    a(f's_add_u32 s{S_T0}, s{S_T0}, 1024')
    a('s_waitcnt lgkmcnt(0)')
    for i in range(4):
        a(f'v_or_b32 v{Y0 + i}, v{Y0 + 4 + 2 * i}, v{Y0 + 5 + 2 * i}')
    a(f'buffer_store_dwordx4 {vr(Y0, 4)}, v2, s[{R_OUT}:{R_OUT + 3}], s{S_T0} offen {g.outmod}')
    a('s_branch L_at_back')


def attn_finish(g):
    a = g.a
    a(f's_and_b32 s{S_T0}, s{S_WV}, 3')
    a(f's_mul_i32 s{S_T0}, s{S_T0}, {PART_SZ}')
    a(f's_bfe_u32 s{S_T1}, s{S_WV}, 0x10002')
    a(f's_lshl_b32 s{S_T1}, s{S_T1}, 16')
    a(f's_add_u32 s{S_T0}, s{S_T0}, s{S_T1}')
    a(f's_add_u32 s{S_T0}, s{S_T0}, {L_HALF[0]}')
    a(f'v_add_u32 v2, s{S_T0}, v{A_L16}')
    a(f'v_lshlrev_b32 v3, 2, v{V_LANE}')
    a(f'v_add_u32 v3, s{S_T0}, v3')
    a(f's_cmp_lt_u32 s{S_WV}, 8')
    a('s_cbranch_scc1 L_at_recv')
    a('s_nop 1')
    a(f'ds_write_b128 v2, {vr(A_O, 4)}')
    a(f'ds_write_b128 v2, {vr(A_O + 4, 4)} offset:1024')
    a(f'ds_write_b32 v3, v{A_O + 8} offset:2048')
    a('s_waitcnt vmcnt(0) lgkmcnt(0)')
    a('s_barrier')
    g.stamp('attn1')
    a('s_branch L_e1')
    a.label('L_at_recv')
    a('s_waitcnt vmcnt(0)')
    a('s_barrier')
    g.stamp('attn1')
    a(f'ds_read_b128 {vr(A_S[0], 4)}, v2')
    a(f'ds_read_b128 {vr(A_S[0] + 4, 4)}, v2 offset:1024')
    a(f'ds_read_b32 v{A_S[0] + 8}, v3 offset:2048')
    a('s_waitcnt lgkmcnt(0)')
    for i in range(9):
        a(f'v_add_f32 v{A_O + i}, v{A_O + i}, v{A_S[0] + i}')
    a(f's_mov_b32 s{S_J}, 0')
    a.label('L_at_norm')
    a(f'v_rcp_f32 v2, v{A_O + 8}')
    a(f's_mov_b32 s{S_T6}, {fbits(2.0 ** -40)}')
    a(f's_mov_b32 s{S_T7}, {fbits(2.0 ** 100)}')
    for i in range(8):
        a(f'v_mul_f32 v{A_P + i}, v{A_O + i}, v2')
    a(f'v_add_f32 v3, |v{A_P}|, |v{A_P + 1}|')
    for i in range(2, 8):
        a(f'v_add_f32 v3, v3, |v{A_P + i}|')
    a(f'v_cmp_nle_f32 vcc, s{S_T6}, v{A_O + 8}')
    a(f'v_cmp_nge_f32 s[{S_T0}:{S_T0 + 1}], s{S_T7}, v{A_O + 8}')
    a(f'v_cmp_nge_f32 s[{S_T2}:{S_T2 + 1}], s{S_T7}, v3')
    a('s_nop 1')
    a(f's_or_b64 vcc, vcc, s[{S_T0}:{S_T0 + 1}]')
    a(f's_or_b64 vcc, vcc, s[{S_T2}:{S_T2 + 1}]')
    a(f's_cmp_eq_u32 s{S_J}, 1')
    a('s_cbranch_scc1 L_at_normok')
    a('s_cbranch_vccnz L_at_fallback')
    a.label('L_at_normok')
    for k in range(4):
        a(f'v_cvt_pk_bf16_f32 v{A_P + k}, v{A_P + 2 * k}, v{A_P + 2 * k + 1}')
    a(f's_lshl_b32 s{S_T0}, s{S_XC}, 3')
    a(f's_add_u32 s{S_T0}, s{S_T0}, s{S_WV}')
    a(f's_lshl_b32 s{S_T0}, s{S_T0}, 5')
    a(f's_add_u32 s{S_T0}, s{S_T0}, s{S_H}')
    a(f's_lshl_b32 s{S_T0}, s{S_T0}, 10')
    a(f's_add_u32 s{S_T0}, s{S_T0}, {WS_OF}')
    g.store_mode([f'buffer_store_dwordx4 {vr(A_P, 4)}, v{A_L16}, {WSR}, s{S_T0} offen {{M}}'])
    g.stamp('ost')
    a(f's_lshr_b32 s{S_T0}, s{S_WV}, 1')
    a(f's_lshl_b32 s{S_T0}, s{S_T0}, 14')
    a(f's_lshl_b32 s{S_T1}, s{S_XC}, 11')
    a(f's_add_u32 s{S_T0}, s{S_T0}, s{S_T1}')
    a(f's_lshl_b32 s{S_T1}, s{S_H}, 3')
    a(f's_add_u32 s{S_T0}, s{S_T0}, s{S_T1}')
    a(f's_and_b32 s{S_T1}, s{S_WV}, 1')
    a(f's_lshl_b32 s{S_T1}, s{S_T1}, 2')
    a(f's_add_u32 s{S_T0}, s{S_T0}, s{S_T1}')
    a(f's_add_u32 s{S_T0}, s{S_T0}, {WS_INBOX + IB_O}')
    a(f'v_lshlrev_b32 v6, 16, v{V_LANE}')
    a(f'v_mov_b32 v7, s{S_TOK}')
    a('s_waitcnt vmcnt(0)')
    g.lanes(8)
    g.store_mode([f'buffer_store_dword v7, v6, {WSR}, s{S_T0} offen {{M}}'])
    g.lanes(64)
    g.stamp('oflag')
    a(f's_cmp_eq_u32 s{S_WV}, 0')
    a('s_cbranch_scc0 L_e1')
    a(f'v_lshlrev_b32 v2, 2, v{V_LANE}')
    a(f's_add_u32 s{S_T0}, s{S_INB}, {IB_O}')
    a(f'v_add_u32 v2, s{S_T0}, v2')
    g.ws_spin(2, 3, 64, 'of')
    g.stamp('of_ok')
    a('s_branch L_e1')


def attn_fallback(g):
    a = g.a
    S, C = A_S[0], A_S[1]

    def src():
        a(f's_lshr_b32 s{S_T0}, s{S_K}, 2')
        a(f's_lshl_b32 s{S_T1}, s{S_XC}, 1')
        a(f's_add_u32 s{S_T1}, s{S_T1}, s{S_T0}')
        a(f's_and_b32 s{S_T1}, s{S_T1}, 15')
        a(f's_lshl_b32 s{S_T1}, s{S_T1}, 12')
        a(f's_and_b32 s{S_T2}, s{S_K}, 3')
        a(f's_lshl_b32 s{S_T2}, s{S_T2}, 10')
        a(f's_add_u32 s{S_T1}, s{S_T1}, s{S_T2}')
        a(f's_lshl_b32 s{S_T2}, s{S_H}, 16')
        a(f's_add_u32 s{S_T1}, s{S_T1}, s{S_T2}')
        a(f's_cmp_lt_u32 s{S_T0}, 2')
        a(f's_cselect_b32 s{S_T2}, {WS_KL - WS_KR}, 0')
        a(f's_add_u32 s{S_T1}, s{S_T1}, s{S_T2}')
        a(f's_add_u32 s{S_T3}, s{S_T1}, {WS_VR}')
        a(f's_add_u32 s{S_T1}, s{S_T1}, {WS_KR}')

    assert WS_KL - WS_KR == WS_VL - WS_VR
    a.label('L_at_fallback')
    a(f'v_mov_b32 v2, {fbits(-3.0e38)}')
    a(f's_mov_b32 s{S_K}, 0')
    a.label('L_fb_max')
    src()
    a(f'buffer_load_dwordx4 {vr(A_K[0], 4)}, v{A_L16}, {WSR}, s{S_T1} offen sc1')
    a('s_waitcnt vmcnt(0)')
    a(f'v_mfma_f32_32x32x16_bf16 {vr(S, 16)}, {vr(A_K[0], 4)}, {vr(A_Q, 4)}, 0')
    a('s_nop 7')
    a('s_nop 3')
    for i in range(0, 16, 2):
        a(f'v_max3_f32 v2, v2, v{S + i}, v{S + i + 1}')
    a(f's_add_u32 s{S_K}, s{S_K}, 1')
    a(f's_cmp_lt_u32 s{S_K}, 64')
    a('s_cbranch_scc1 L_fb_max')
    a('v_mov_b32 v3, v2')
    a('s_nop 1')
    a('v_permlane32_swap_b32 v2, v3')
    a('s_nop 1')
    a('v_max_f32 v2, v2, v3')
    for i in range(16):
        a(f'v_sub_f32 v{C + i}, 0, v2')
    for i in range(16):
        a(f'v_mov_b32 v{A_O + i}, 0')
    a(f'v_lshrrev_b32 v2, 5, v{V_LANE}')
    a('v_lshlrev_b32 v2, 8, v2')
    a(f'v_and_b32 v3, 15, v{V_LANE}')
    a(f'v_lshl_add_u32 v{A_VA}, v3, 4, v2')
    a(f's_mov_b32 s{S_K}, 0')
    a.label('L_fb_sum')
    src()
    a(f'buffer_load_dwordx4 {vr(A_K[0], 4)}, v{A_L16}, {WSR}, s{S_T1} offen sc1')
    a(f's_mov_b64 exec, s[{S_MASK}:{S_MASK + 1}]')
    a(f'buffer_load_dwordx4 {vr(A_V[0], 4)}, v{A_VA}, {WSR}, s{S_T3} offen sc1')
    a(f'buffer_load_dwordx4 {vr(A_V[0] + 4, 4)}, v{A_VA}, {WSR}, s{S_T3} offen offset:512 sc1')
    a('s_mov_b64 exec, -1')
    a('s_waitcnt vmcnt(0)')
    a(f'v_mfma_f32_32x32x16_bf16 {vr(S, 16)}, {vr(A_K[0], 4)}, {vr(A_Q, 4)}, {vr(C, 16)}')
    a('s_nop 7')
    a('s_nop 3')
    for i in range(16):
        a(f'v_exp_f32 v{S + i}, v{S + i}')
    a('s_nop 0')
    for k in range(8):
        a(f'v_cvt_pk_bf16_f32 v{A_P + k}, v{S + 2 * k}, v{S + 2 * k + 1}')
    a('s_nop 1')
    a(f'v_mfma_f32_32x32x16_bf16 {vr(A_O, 16)}, {vr(A_V[0], 4)}, {vr(A_P, 4)}, {vr(A_O, 16)}')
    a(f'v_mfma_f32_32x32x16_bf16 {vr(A_O, 16)}, {vr(A_V[0] + 4, 4)}, {vr(A_P + 4, 4)}, {vr(A_O, 16)}')
    a(f's_add_u32 s{S_K}, s{S_K}, 1')
    a(f's_cmp_lt_u32 s{S_K}, 64')
    a('s_cbranch_scc1 L_fb_sum')
    a(f's_mov_b32 s{S_J}, 1')
    a('s_nop 7')
    a('s_nop 3')
    a('s_branch L_at_norm')


def conv(g):
    a = g.a
    a.label('L_conv')
    vA, vB, vT = 2, 3, 4
    ACC, AF, BF = 8, 40, 72
    if 'cvprio0' not in g.exp:
        a('s_setprio 2')
    a(f's_lshl_b32 s{S_T0}, s{S_XC}, 6')
    a(f's_lshl_b32 s{S_T1}, s{S_IDX}, 1')
    a(f's_add_u32 s{S_T0}, s{S_T0}, s{S_T1}')
    a(f's_lshl_b32 s{S_T0}, s{S_T0}, 1')
    a(f's_load_dword s{S_DSKV}, s[{S_DSK}:{S_DSK + 1}], s{S_T0}')
    a(f's_bfe_u32 s{S_A}, s{S_WV}, 0x10002')
    a(f's_and_b32 s{S_B}, s{S_WV}, 3')
    a(f's_mul_i32 s{S_T0}, s{S_A}, {UL_SZ}')
    a(f's_lshl_b32 s{S_T1}, s{S_B}, 7')
    a(f's_sub_u32 s{S_T0}, s{S_T0}, s{S_T1}')
    a(f's_add_u32 s{S_T0}, s{S_T0}, {L_UL + 480}')
    a(f'v_and_b32 v5, 15, v{V_LANE}')
    a(f'v_lshrrev_b32 v6, 4, v{V_LANE}')
    a('v_lshlrev_b32 v7, 5, v5')
    a('v_lshl_add_u32 v7, v6, 4, v7')
    a(f'v_add_u32 v{vB}, s{S_T0}, v7')
    a(f's_mul_i32 s{S_T0}, s{S_A}, {R_SZ}')
    a(f's_sub_u32 s{S_T0}, s{S_T0}, s{S_T1}')
    a(f's_add_u32 s{S_T0}, s{S_T0}, {L_R + 4 * 1015}')
    a('v_lshrrev_b32 v7, 1, v5')
    a('v_lshlrev_b32 v7, 2, v7')
    a('v_lshlrev_b32 v6, 4, v6')
    a('v_sub_u32 v6, v6, v7')
    a('v_and_b32 v5, 1, v5')
    a('v_cmp_eq_u32 vcc, 0, v5')
    a(f'v_mov_b32 v7, {R_O}')
    a('s_nop 0')
    a('v_cndmask_b32 v5, 0, v7, vcc')
    a('v_add_u32 v6, v6, v5')
    a(f'v_add_u32 v{vA}, s{S_T0}, v6')

    def one_class(first):
        q = LdsQueue()

        def rd_b(i):
            a(f'ds_read_b128 {vr(BF + 4 * i, 4)}, v{vB} offset:{512 * i}')
            q.push(f'b{i}')

        def rd_a(j):
            if j % 2 == 0:
                a(f'v_subrev_u32 v{vT + (j // 2) % 2}, {512 * (j + 1)}, v{vA}')
            base = vT + (j // 2) % 2
            o = 128 if j % 2 == 0 else 0
            a(f'ds_read2_b32 {vr(AF + 4 * j, 2)}, v{base} offset0:{o} offset1:{o + 1}')
            a(f'ds_read2_b32 {vr(AF + 4 * j + 2, 2)}, v{base} offset0:{o + 2} offset1:{o + 3}')
            q.push(f'a{j}')
            q.push(f'a{j}')

        rd_a(0)
        for i in range(8):
            rd_b(i)
        rd_a(1)
        for j in range(8):
            for i in range(8 - j):
                if j == 0:
                    q.wait(a, f'b{i}')
                elif i == 0:
                    q.wait(a, f'a{j}')
                t = i + j
                c = '0' if (first and j == 0) else vr(ACC + 4 * t, 4)
                a(f'v_mfma_f32_16x16x32_bf16 {vr(ACC + 4 * t, 4)}, {vr(AF + 4 * j, 4)}, {vr(BF + 4 * i, 4)}, {c}')
                if j == 0 and i in (1, 3, 5):
                    rd_a(2 + (i - 1) // 2)
                if j == 1 and i in (0, 2, 4):
                    rd_a(5 + i // 2)

    g.stamp('cv0')
    one_class(True)
    g.stamp('cv1')
    a(f'v_subrev_u32 v{vA}, 64, v{vA}')
    a(f'v_subrev_u32 v{vB}, 64, v{vB}')
    one_class(False)
    g.stamp('cv_mf')
    a(f'v_lshlrev_b32 v5, 4, v{V_LANE}')
    a(f's_lshl_b32 s{S_T2}, s{S_A}, 16')
    a(f's_add_u32 s{S_T2}, s{S_T2}, {L_HALF[0]}')
    a(f's_lshl_b32 s{S_T0}, s{S_B}, 13')
    a(f's_add_u32 s{S_T0}, s{S_T0}, s{S_T2}')
    a(f'v_add_u32 v6, s{S_T0}, v5')
    a('s_waitcnt lgkmcnt(0)')
    for t in range(8):
        a(f'ds_write_b128 v6, {vr(ACC + 4 * t, 4)} offset:{1024 * t}')
    a(f's_and_b32 s{S_T0}, s{S_WV}, 7')
    a(f's_lshl_b32 s{S_T0}, s{S_T0}, 2')
    a(f's_add_u32 s{S_T0}, s{S_T0}, {M_RW}')
    a(f'v_mov_b32 v6, s{S_T0}')
    a(f'v_mov_b32 v7, s{S_TOK}')
    a('s_waitcnt lgkmcnt(0)')
    a('ds_write_b32 v6, v7')
    a(f's_lshl_b32 s{S_T0}, s{S_A}, 4')
    a(f's_add_u32 s{S_T0}, s{S_T0}, {M_RW}')
    a(f'v_mov_b32 v6, s{S_T0}')
    g.lds_spin(6, 8, 4)
    a(f's_lshl_b32 s{S_T1}, s{S_B}, 11')
    a(f's_add_u32 s{S_T0}, s{S_T2}, s{S_T1}')
    a(f'v_add_u32 v6, s{S_T0}, v5')
    for s in range(4):
        for tt in range(2):
            a(f'ds_read_b128 {vr(40 + 16 * tt + 4 * s, 4)}, v6 offset:{8192 * s + 1024 * tt}')
    a(f's_mul_i32 s{S_T0}, s{S_A}, {UL_SZ}')
    a(f's_lshl_b32 s{S_T1}, s{S_B}, 10')
    a(f's_add_u32 s{S_T0}, s{S_T0}, s{S_T1}')
    a(f's_add_u32 s{S_T0}, s{S_T0}, {L_UL + 512}')
    a(f'v_and_b32 v7, 15, v{V_LANE}')
    a('v_lshlrev_b32 v7, 5, v7')
    a(f'v_lshrrev_b32 v8, 4, v{V_LANE}')
    a('v_lshl_add_u32 v7, v8, 3, v7')
    a(f'v_add_u32 v7, s{S_T0}, v7')
    a('ds_read_b64 v[72:73], v7')
    a('ds_read_b64 v[74:75], v7 offset:512')
    a('s_waitcnt lgkmcnt(0)')
    a(f's_lshl_b32 s{S_T1}, s{S_A}, 4')
    a(f's_lshr_b32 s{S_DSKV}, s{S_DSKV}, s{S_T1}')
    a(f's_lshl_b32 s{S_DSKV}, s{S_DSKV}, 16')
    for tt in range(2):
        b = 40 + 16 * tt
        for r in range(4):
            a(f'v_add_f32 v{b + r}, v{b + r}, v{b + 4 + r}')
            a(f'v_add_f32 v{b + 8 + r}, v{b + 8 + r}, v{b + 12 + r}')
        for r in range(4):
            a(f'v_add_f32 v{b + r}, v{b + r}, v{b + 8 + r}')
        a(f'v_cvt_pk_bf16_f32 v{b + 4}, v{b}, v{b + 1}')
        a(f'v_cvt_pk_bf16_f32 v{b + 5}, v{b + 2}, v{b + 3}')
        u = 72 + 2 * tt
        a(f'v_lshlrev_b32 v{b + 8}, 16, v{u}')
        a(f'v_and_b32 v{b + 9}, 0xffff0000, v{u}')
        a(f'v_lshlrev_b32 v{b + 10}, 16, v{u + 1}')
        a(f'v_and_b32 v{b + 11}, 0xffff0000, v{u + 1}')
        for r in range(4):
            a(f'v_mul_f32 v{b + 8 + r}, s{S_DSKV}, v{b + 8 + r}')
        a(f'v_cvt_pk_bf16_f32 v{b + 6}, v{b + 8}, v{b + 9}')
        a(f'v_cvt_pk_bf16_f32 v{b + 7}, v{b + 10}, v{b + 11}')
        for k in range(2):
            a(f'v_lshlrev_b32 v{b + 8}, 16, v{b + 4 + k}')
            a(f'v_and_b32 v{b + 9}, 0xffff0000, v{b + 4 + k}')
            a(f'v_lshlrev_b32 v{b + 10}, 16, v{b + 6 + k}')
            a(f'v_and_b32 v{b + 11}, 0xffff0000, v{b + 6 + k}')
            a(f'v_add_f32 v{b + 8}, v{b + 8}, v{b + 10}')
            a(f'v_add_f32 v{b + 9}, v{b + 9}, v{b + 11}')
            a(f'v_cvt_pk_bf16_f32 v{76 + 2 * tt + k}, v{b + 8}, v{b + 9}')
    a(f's_lshl_b32 s{S_T0}, s{S_XC}, 6')
    a(f's_lshl_b32 s{S_T1}, s{S_IDX}, 1')
    a(f's_add_u32 s{S_T0}, s{S_T0}, s{S_T1}')
    a(f's_add_u32 s{S_T0}, s{S_T0}, s{S_A}')
    a(f's_lshl_b32 s{S_T0}, s{S_T0}, 2')
    a(f's_add_u32 s{S_T0}, s{S_T0}, s{S_B}')
    a(f's_lshl_b32 s{S_T0}, s{S_T0}, 10')
    a(f's_add_u32 s{S_T0}, s{S_T0}, {WS_YT}')
    g.store_mode([f'buffer_store_dwordx4 v[76:79], v5, {WSR}, s{S_T0} offen {{M}}'])
    a(f's_lshl_b32 s{S_T0}, s{S_B}, 17')
    a(f's_lshl_b32 s{S_T1}, s{S_XC}, 11')
    a(f's_add_u32 s{S_T0}, s{S_T0}, s{S_T1}')
    a(f's_lshl_b32 s{S_T1}, s{S_IDX}, 3')
    a(f's_add_u32 s{S_T0}, s{S_T0}, s{S_T1}')
    a(f's_lshl_b32 s{S_T1}, s{S_A}, 2')
    a(f's_add_u32 s{S_T0}, s{S_T0}, s{S_T1}')
    a(f's_add_u32 s{S_A}, s{S_T0}, {WS_INBOX + IB_Y}')
    a('s_setprio 0')
    g.stamp('conv')
    a('s_barrier')
    attn_setup(g, 8192 + 2048)
    a('s_branch L_at_shared')


def outproj(g):
    a = g.a
    a.label('L_e1')
    a('s_barrier')
    g.stamp('e3')
    a(f's_and_b32 s{S_T0}, s{S_IDX}, 3')
    a(f's_lshl_b32 s{S_T0}, s{S_T0}, 1')
    a(f's_lshl_b32 s{S_T1}, s{S_XC}, 3')
    a(f's_add_u32 s{S_T0}, s{S_T0}, s{S_T1}')
    a(f's_lshl_b32 s{S_T0}, s{S_T0}, 15')
    a(f's_lshl_b32 s{S_T2}, s{S_WV}, 12')
    a(f's_add_u32 s{S_T0}, s{S_T0}, s{S_T2}')
    a(f's_add_u32 s{S_T0}, s{S_T0}, {WS_OF}')
    a(f's_cmp_ge_u32 s{S_WV}, 8')
    a(f's_cselect_b32 s{S_T3}, 32768, 0')
    a(f's_add_u32 s{S_T2}, s{S_T2}, s{S_T3}')
    a(f'v_lshlrev_b32 v5, 4, v{V_LANE}')
    for i in range(4):
        a(f's_add_u32 m0, s{S_T2}, {L_HALF[0] + i * 1024}')
        a(f's_add_u32 s{S_T1}, s{S_T0}, {i * 1024}')
        a(f'buffer_load_dwordx4 v5, {WSR}, s{S_T1} offen sc1 lds')
    a(f's_cmp_ge_u32 s{S_WV}, 4')
    a('s_cbranch_scc1 L_ys')
    vW, vW2, vO, ACC, WF, OF = 6, 8, 7, 16, 32, 64
    a(f'v_lshrrev_b32 v2, 5, v{V_LANE}')
    a(f'v_bfe_u32 v3, v{V_LANE}, 2, 2')
    a('v_lshl_add_u32 v2, v2, 2, v3')
    a('v_lshlrev_b32 v2, 6, v2')
    a(f'v_bfe_u32 v3, v{V_LANE}, 4, 1')
    a('v_lshl_add_u32 v2, v3, 5, v2')
    a(f'v_and_b32 v3, 3, v{V_LANE}')
    a('v_lshl_add_u32 v2, v3, 3, v2')
    a(f's_lshr_b32 s{S_T0}, s{S_WV}, 1')
    a(f's_lshl_b32 s{S_T0}, s{S_T0}, 9')
    a(f'v_add_u32 v{vW}, s{S_T0}, v2')
    a(f'v_add_u32 v{vW2}, {L_V}, v{vW}')
    a(f's_and_b32 s{S_T0}, s{S_WV}, 1')
    a(f's_lshl_b32 s{S_T0}, s{S_T0}, 16')
    a(f's_add_u32 s{S_T0}, s{S_T0}, {L_HALF[0]}')
    a(f'v_add_u32 v{vO}, s{S_T0}, v5')
    a('s_waitcnt vmcnt(0)')
    a('s_barrier')
    g.stamp('e4')
    q = LdsQueue()
    DEPTH = 4

    def rd(h):
        b = h % (DEPTH + 1)
        w = vW if h < 16 else vW2
        a(f'ds_read_b64_tr_b16 {vr(WF + 4 * b, 2)}, v{w} offset:{2048 * (h & 15)}')
        a(f'ds_read_b64_tr_b16 {vr(WF + 4 * b + 2, 2)}, v{w} offset:{2048 * (h & 15) + 1024}')
        a(f'ds_read_b128 {vr(OF + 4 * b, 4)}, v{vO} offset:{1024 * h}')
        for _ in range(3):
            q.push(h)
    for h in range(DEPTH):
        rd(h)
    for h in range(32):
        if h + DEPTH < 32:
            rd(h + DEPTH)
        q.wait(a, h)
        b = h % (DEPTH + 1)
        c = '0' if h == 0 else vr(ACC, 16)
        a(f'v_mfma_f32_32x32x16_bf16 {vr(ACC, 16)}, {vr(WF + 4 * b, 4)}, {vr(OF + 4 * b, 4)}, {c}')
    a(f'v_and_b32 v2, 31, v{V_LANE}')
    a(f's_and_b32 s{S_T0}, s{S_WV}, 1')
    a(f's_lshl_b32 s{S_T0}, s{S_T0}, 5')
    a(f'v_add_u32 v2, s{S_T0}, v2')
    a(f'v_mul_u32_u24 v2, {OUT_P}, v2')
    a(f'v_lshrrev_b32 v3, 5, v{V_LANE}')
    a('v_lshl_add_u32 v2, v3, 3, v2')
    a(f's_lshr_b32 s{S_T0}, s{S_WV}, 1')
    a(f's_lshl_b32 s{S_T0}, s{S_T0}, 6')
    a(f's_add_u32 s{S_T0}, s{S_T0}, {L_OUT}')
    a(f'v_add_u32 v2, s{S_T0}, v2')
    a('s_nop 3')
    for gq in range(4):
        a(f'v_cvt_pk_bf16_f32 v{32 + 2 * gq}, v{ACC + 4 * gq}, v{ACC + 4 * gq + 1}')
        a(f'v_cvt_pk_bf16_f32 v{33 + 2 * gq}, v{ACC + 4 * gq + 2}, v{ACC + 4 * gq + 3}')
        a(f'ds_write_b64 v2, {vr(32 + 2 * gq, 2)} offset:{16 * gq}')
    a('s_waitcnt lgkmcnt(0)')
    g.stamp('op_mf')
    a('s_barrier')
    g.stamp('e5')
    a.label('L_outstore')
    a(f'v_lshrrev_b32 v2, 3, v{V_LANE}')
    a(f's_lshl_b32 s{S_T0}, s{S_WV}, 3')
    a(f'v_add_u32 v2, s{S_T0}, v2')
    a(f'v_mul_u32_u24 v3, {OUT_P}, v2')
    a(f'v_and_b32 v4, 7, v{V_LANE}')
    a('v_lshl_add_u32 v3, v4, 4, v3')
    a(f'v_add_u32 v3, {L_OUT}, v3')
    a('ds_read_b128 v[8:11], v3')
    a('v_lshlrev_b32 v2, 11, v2')
    a('v_lshl_add_u32 v2, v4, 4, v2')
    a(f's_lshl_b32 s{S_T0}, s{S_XC}, 19')
    a(f's_and_b32 s{S_T2}, s{S_IDX}, 3')
    a(f's_lshl_b32 s{S_T2}, s{S_T2}, 17')
    a(f's_add_u32 s{S_T0}, s{S_T0}, s{S_T2}')
    a(f's_lshr_b32 s{S_T2}, s{S_IDX}, 2')
    a(f's_lshl_b32 s{S_T2}, s{S_T2}, 7')
    a(f's_add_u32 s{S_T0}, s{S_T0}, s{S_T2}')
    a('s_waitcnt lgkmcnt(0)')
    a(f'buffer_store_dwordx4 v[8:11], v2, s[{R_OUT}:{R_OUT + 3}], s{S_T0} offen {g.outmod}')
    a('s_branch L_finish')


def tail_idle(g):
    a = g.a
    a.label('L_ys')
    a('s_waitcnt vmcnt(0)')
    a('s_barrier')
    a('s_barrier')
    a(f's_cmp_lt_u32 s{S_WV}, 8')
    a('s_cbranch_scc1 L_outstore')
    a('s_branch L_finish')


def rest(g):
    a = g.a
    if g.stop == 'p1':
        a('s_branch L_finish')
        return
    attn_join(g)
    attn_local(g)
    attn_shared(g)
    attn_finish(g)
    outproj(g)
    tail_idle(g)
    conv(g)
    attn_hooks(g)
    attn_fallback(g)
```

```python
import os
import struct
import sys

sys.path.insert(0, os.path.dirname(os.path.abspath(__file__)))
from asmlib import Asm, VmQueue, check_hazards, vr

NAME = 'concat_heads__softmax_full_mha__ssm_conv_s4d__prompt'
KERNEL = NAME + '_kernel'

WS_G = 0x0
WS_INBOX = 0x100000
IB_KV, IB_X, IB_U, IB_L, IB_O, IB_Y = 0, 512, 640, 768, 1024, 1280
WS_UT = 0x200000
WS_KR = 0x400000
WS_VR = 0x600000
WS_QL = 0x800000
WS_KL = 0xA00000
WS_VL = 0xC00000
WS_OF = 0xE00000
WS_YT = 0x1000000
WS_PROF = 0x1400000
WS_SIZE = 0x1800000

LDS_BYTES = 163840
SLOT, NSLOT = 32768, 3
L_USTAGE = 65536
L_KG = 98304
ROWP = 272
KG_Y = 25 * ROWP
KG_SZ = KG_Y + 32 * ROWP
L_KPART = 98304
L_KSP = 114688
KSP_SZ = 4608
L_K, L_V = 0, 65536
L_R = 131072
R_O, R_SZ = 4160, 8320
L_UL = L_R + 2 * R_SZ
UL_SZ = 4608
L_QS = 73728
L_MISC = 163520
M_MODE = L_MISC
M_F = L_MISC + 16
M_I = L_MISC + 96
M_C = L_MISC + 144
M_KT = L_MISC - 32
M_SL = L_MISC - 48
M_RW = L_MISC - 80
M_U = L_MISC - 96
L_HALF = (32768, 98304)
L_OUT = L_R
OUT_P = 144
L_YS = L_R + 64 * OUT_P
PART_SZ = 2304

S_X, S_WQKV, S_WO, S_U, S_LOGA, S_AIM, S_CRE, S_CIM, S_LOGDT, S_DSK, S_OUT, S_DBG, S_WS = range(8, 34, 2)
R_X, R_W, R_WS, R_U, R_WO, R_OUT = 36, 40, 44, 48, 52, 56
S_XC, S_IDX, S_CG, S_RB, S_S0, S_WV, S_TOK, S_MODE, S_H, S_XCC = range(60, 70)
S_T0, S_T1, S_T2, S_T3, S_T4, S_T5, S_T6, S_T7 = range(70, 78)
S_MASK = 78
S_RET = 80
S_K, S_SLOT, S_CNT, S_DT, S_INB = 82, 83, 84, 85, 86
S_A, S_B, S_C = 3, 4, 5
S_IGN = 6
S_J, S_SRC = 34, 35
S_PROF = 88

V_LANE = 1
LOG2E = 1.4426950408889634
INV2PI = 0.15915494309189535
QSCALE = 0.25 * LOG2E
SPIN_MAX = 400000
HI0 = [0, 256, 512, 768, 1024, 1280, 1536, 1792, 1, 2, 3, 258, 2048]
WSR = f's[{R_WS}:{R_WS + 3}]'

A_L16, A_PA, A_PV, A_KA, A_VA, A_Q, A_O = 4, 5, 6, 8, 9, 108, 16
A_S, A_P, A_K, A_V = (32, 48), 64, (72, 76), (80, 88)


def fbits(x):
    return '0x%08x' % struct.unpack('<I', struct.pack('<f', x))[0]


class LdsQueue:
    def __init__(self):
        self.q = []

    def push(self, tag):
        self.q.append(tag)

    def wait(self, a, tag):
        idx = max(i for i, t in enumerate(self.q) if t == tag)
        n = len(self.q) - 1 - idx
        assert n <= 15
        a(f's_waitcnt lgkmcnt({n})')


class Gen:
    def __init__(self, stop=None, prof='', points='', exp=''):
        self.a = Asm()
        self.stop = stop
        self.prof = prof
        self.points = points.split(',') if points else []
        self.exp = set(exp.split(',')) if exp else set()
        assert len(self.points) <= 7
        self.outmod = 'sc1' if 'outwt' in self.exp else ('nt' if 'outnt' in self.exp else '')

    def srd(self, r, base, size):
        a = self.a
        a(f's_mov_b32 s{r}, s{base}')
        a(f's_mov_b32 s{r + 1}, s{base + 1}')
        a(f's_mov_b32 s{r + 2}, {size}')
        a(f's_mov_b32 s{r + 3}, 0x20000')

    def lanes(self, n):
        if n == 64:
            self.a('s_mov_b64 exec, -1')
        elif n >= 32:
            self.a(f's_mov_b32 exec_hi, {hex((1 << (n - 32)) - 1)}')
        else:
            self.a(f's_mov_b64 exec, {hex((1 << n) - 1)}')

    def stamp(self, name):
        if self.prof and name in self.points:
            i = self.points.index(name)
            op = 's_memtime' if self.prof == 'cyc' else 's_memrealtime'
            self.a(f'{op} s[{S_PROF + 2 * i}:{S_PROF + 2 * i + 1}]')

    def stamp_k(self, prefix):
        for k in range(8):
            if self.prof and f'{prefix}{k}' in self.points:
                lb = self.a.uid('nost')
                self.a(f's_cmp_eq_u32 s{S_K}, {k}')
                self.a(f's_cbranch_scc0 {lb}')
                self.stamp(f'{prefix}{k}')
                self.a.label(lb)

    def lds_check(self, vtmp, n):
        a = self.a
        a(f'v_cmp_ne_u32 vcc, s{S_TOK}, v{vtmp}')
        for i in range(1, n):
            a(f'v_cmp_ne_u32 s[{S_IGN}:{S_IGN + 1}], s{S_TOK}, v{vtmp + i}')
            a('s_nop 0')
            a(f's_or_b64 vcc, vcc, s[{S_IGN}:{S_IGN + 1}]')

    def lds_spin(self, vaddr, vtmp, n, off=0, sleep=0):
        a = self.a
        lp = a.uid('lspin')
        rd = {1: 'ds_read_b32', 2: 'ds_read_b64', 4: 'ds_read_b128'}[n]
        a(f's_mov_b32 s{S_CNT}, 0')
        a.label(lp)
        a(f'{rd} {vr(vtmp, n)}, v{vaddr} offset:{off}')
        a(f's_add_u32 s{S_CNT}, s{S_CNT}, 1')
        a('s_waitcnt lgkmcnt(0)')
        self.lds_check(vtmp, n)
        a(f's_cbranch_vccz {lp}_x')
        if sleep:
            a(f's_sleep {sleep}')
        a(f's_cmp_gt_u32 s{S_CNT}, {SPIN_MAX}')
        a(f's_cbranch_scc0 {lp}')
        a.label(lp + '_x')

    def ws_spin(self, voff, vtmp, nlanes, name, preissued=False, ignore=None):
        a = self.a
        lp, done = a.uid(name), a.uid(name + '_ok')
        a(f's_mov_b32 s{S_CNT}, 0')
        if nlanes < 64:
            self.lanes(nlanes)
        if not preissued:
            a(f'buffer_load_dword v{vtmp}, v{voff}, {WSR}, 0 offen sc1')
        a.label(lp)
        a('s_waitcnt vmcnt(0)')
        a(f'v_cmp_ne_u32 vcc, s{S_TOK}, v{vtmp}')
        a(f's_add_u32 s{S_CNT}, s{S_CNT}, 1')
        a('s_nop 0')
        if ignore is not None:
            a(f's_andn2_b64 vcc, vcc, s[{ignore}:{ignore + 1}]')
        else:
            a('s_and_b64 vcc, vcc, exec')
        a(f's_cbranch_scc0 {done}')
        a(f's_cmp_gt_u32 s{S_CNT}, {SPIN_MAX}')
        a(f's_cbranch_scc1 {done}')
        a(f'buffer_load_dword v{vtmp}, v{voff}, {WSR}, 0 offen sc1')
        a(f's_branch {lp}')
        a.label(done)
        if nlanes < 64:
            self.lanes(64)

    def store_mode(self, lines):
        a = self.a
        wt, done = a.uid('wt'), a.uid('std')
        a(f's_cmp_eq_u32 s{S_MODE}, 0')
        a(f's_cbranch_scc1 {wt}')
        for ln in lines:
            a(ln.replace('{M}', ''))
        a(f's_branch {done}')
        a.label(wt)
        for ln in lines:
            a(ln.replace('{M}', 'sc1'))
        a.label(done)

    def token(self):
        a = self.a
        a('s_waitcnt lgkmcnt(0)')
        a(f's_mul_i32 s{S_TOK}, s{S_TOK}, 0x9e3779b1')
        a(f's_add_u32 s{S_TOK}, s{S_TOK}, 0x7f4a7c15')

    def common_setup(self):
        a = self.a
        if 'wstop' in self.exp:
            a(f's_mov_b32 s{S_T7}, {(256 << 20) - WS_SIZE}')
            a(f's_load_dword s{S_TOK}, s[{S_WS}:{S_WS + 1}], s{S_T7}')
        else:
            a(f's_load_dword s{S_TOK}, s[{S_WS}:{S_WS + 1}], {WS_G}')
        a(f's_getreg_b32 s{S_XCC}, hwreg(HW_REG_XCC_ID)')
        self.srd(R_WS, S_WS, WS_SIZE)
        if 'wstop' in self.exp:
            a(f's_add_u32 s{R_WS}, s{R_WS}, {(256 << 20) - WS_SIZE}')
            a(f's_addc_u32 s{R_WS + 1}, s{R_WS + 1}, 0')
        self.srd(R_U, S_U, 2048 * 1024)
        self.srd(R_WO, S_WO, 512 * 1024)
        self.srd(R_OUT, S_OUT, 2048 * 2048)
        a(f's_mov_b32 s{S_H}, s{S_IDX}')
        a(f's_and_b32 s{S_XCC}, s{S_XCC}, 15')
        a(f's_lshl_b32 s{S_INB}, s2, 11')
        a(f's_add_u32 s{S_INB}, s{S_INB}, {WS_INBOX}')
        a(f's_mov_b32 s{S_MASK}, 0x0000ffff')
        a(f's_mov_b32 s{S_MASK + 1}, 0x0000ffff')

    def prologue(self):
        a = self.a
        a('s_cmp_ge_u32 s2, 256')
        a('s_cbranch_scc1 L_exit')
        a('s_load_dwordx16 s[8:23], s[0:1], 0')
        a('s_load_dwordx8 s[24:31], s[0:1], 64')
        a('s_load_dwordx2 s[32:33], s[0:1], 96')
        if self.prof:
            for i in range(14):
                a(f's_mov_b32 s{S_PROF + i}, 0')
        self.stamp('entry')
        a('s_getpc_b64 s[70:71]')
        a.label('L_pc')
        a('v_lshrrev_b32 v2, 6, v0')
        a(f'v_and_b32 v{V_LANE}, 63, v0')
        a(f's_lshr_b32 s{S_IDX}, s2, 3')
        a(f's_lshl_b32 s{S_T2}, s{S_IDX}, 10')
        a(f'v_lshl_add_u32 v3, v0, 7, s{S_T2}')
        a('v_min_u32 v3, L_code_end-L_pc-4, v3')
        a('v_cmp_gt_u32 vcc, 8, v0')
        a(f's_and_saveexec_b64 s[{S_T4}:{S_T4 + 1}], vcc')
        a('s_cbranch_execz L_nocodepf')
        a('global_load_dword v9, v3, s[70:71]')
        a.label('L_nocodepf')
        a('s_mov_b64 exec, -1')
        a(f's_and_b32 s{S_XC}, s2, 7')
        a(f'v_readfirstlane_b32 s{S_WV}, v2')
        a(f's_lshr_b32 s{S_CG}, s{S_IDX}, 2')
        a(f's_and_b32 s{S_RB}, s{S_IDX}, 3')
        a(f's_lshl_b32 s{S_S0}, s{S_RB}, 1')
        a(f's_add_u32 s{S_S0}, s{S_S0}, s{S_CG}')
        a(f's_sub_u32 s{S_T0}, s{S_WV}, 4')
        a(f's_cmp_lt_u32 s{S_T0}, 6')
        a('s_cbranch_scc0 L_notloader')

    def issue_chunk(self):
        a = self.a
        if 'nodma' in self.exp:
            return
        a(f's_add_u32 s{S_T2}, s{S_S0}, s{S_K}')
        a(f's_and_b32 s{S_T2}, s{S_T2}, 7')
        a(f's_lshl_b32 s{S_T0}, s{S_T2}, 7')
        a(f's_add_u32 s{S_T0}, s{S_T0}, s{S_A}')
        a(f's_mul_i32 s{S_T4}, s{S_T2}, {64 * 3072}')
        a(f's_add_u32 s{S_T4}, s{S_T4}, s{S_B}')
        for j in range(4):
            a(f's_add_u32 m0, s{S_C}, {j * 1024}')
            a(f's_add_u32 s{S_T1}, s{S_T0}, {j * 8192}')
            a(f'buffer_load_dwordx4 v{10 + (j & 1)}, s[{R_X}:{R_X + 3}], s{S_T1} offen lds')
            for c in range(3):
                a(f's_add_u32 m0, s{S_C}, {8192 + c * 8192 + j * 1024}')
                a(f's_add_u32 s{S_T1}, s{S_T4}, {j * 8 * 3072 + c * 1024}')
                a(f'buffer_load_dwordx4 v12, s[{R_W}:{R_W + 3}], s{S_T1} offen lds')

    def loader_waves(self):
        a = self.a
        a('s_setprio 2')
        a(f'v_lshrrev_b32 v4, 3, v{V_LANE}')
        a(f'v_and_b32 v5, 7, v{V_LANE}')
        a('v_lshrrev_b32 v6, 1, v4')
        a('v_xor_b32 v7, v5, v6')
        a('v_lshlrev_b32 v7, 4, v7')
        a('v_lshl_add_u32 v10, v4, 10, v7')
        a('v_xor_b32 v11, 64, v10')
        a(f'v_bfe_u32 v4, v{V_LANE}, 2, 3')
        a('v_mul_u32_u24 v4, 3072, v4')
        a(f'v_lshrrev_b32 v5, 5, v{V_LANE}')
        a('v_lshl_add_u32 v4, v5, 6, v4')
        a(f'v_and_b32 v5, 3, v{V_LANE}')
        a('v_lshl_add_u32 v12, v5, 4, v4')
        a(f's_and_b32 s{S_T1}, s{S_T0}, 1')
        a(f's_lshr_b32 s{S_K}, s{S_T0}, 1')
        a(f's_lshl_b32 s{S_C}, s{S_K}, 15')
        a(f's_lshl_b32 s{S_T2}, s{S_T1}, 12')
        a(f's_add_u32 s{S_C}, s{S_C}, s{S_T2}')
        a(f's_lshl_b32 s{S_A}, s{S_XC}, 18')
        a(f's_lshl_b32 s{S_T2}, s{S_RB}, 16')
        a(f's_add_u32 s{S_A}, s{S_A}, s{S_T2}')
        a(f's_lshl_b32 s{S_T2}, s{S_T1}, 15')
        a(f's_add_u32 s{S_A}, s{S_A}, s{S_T2}')
        a(f's_mul_i32 s{S_B}, s{S_T1}, {32 * 3072}')
        a(f's_lshl_b32 s{S_T2}, s{S_CG}, 7')
        a(f's_add_u32 s{S_B}, s{S_B}, s{S_T2}')
        vF, vC, vT = 13, 14, 20
        a(f's_lshl_b32 s{S_T1}, s{S_T1}, 2')
        a(f's_add_u32 s{S_T2}, s{S_T1}, {M_F}')
        a(f'v_mov_b32 v{vF}, s{S_T2}')
        a(f's_lshl_b32 s{S_T2}, s{S_K}, 3')
        a(f's_add_u32 s{S_T2}, s{S_T2}, s{S_T1}')
        a(f's_add_u32 s{S_T2}, s{S_T2}, {M_I}')
        a(f'v_mov_b32 v17, s{S_T2}')
        a('s_waitcnt lgkmcnt(0)')
        self.srd(R_X, S_X, 2048 * 1024)
        self.srd(R_W, S_WQKV, 512 * 3072)
        a(f's_cmp_eq_u32 s{S_K}, 0')
        a('s_cbranch_scc1 L_ld_first')
        self.common_setup()
        self.token()
        a(f's_lshl_b32 s{S_T2}, s{S_K}, 3')
        a(f's_add_u32 s{S_T2}, s{S_T2}, {M_I - 8}')
        a(f'v_mov_b32 v{vC}, s{S_T2}')
        self.lds_spin(vC, vT, 2)
        a(f's_cmp_eq_u32 s{S_K}, 2')
        a('s_cbranch_scc0 L_ld_go')
        a(f'v_mov_b32 v{vC}, {M_U}')
        self.lds_spin(vC, vT, 1, sleep=1)
        a.label('L_ld_go')
        self.issue_chunk()
        a('s_branch L_ld_issued')
        a.label('L_ld_first')
        self.stamp('iss0')
        self.issue_chunk()
        self.common_setup()
        self.token()
        a.label('L_ld_issued')
        self.stamp('iss1')
        a(f'v_mov_b32 v15, s{S_TOK}')
        a('ds_write_b32 v17, v15')
        a(f'v_mov_b32 v{vC}, {M_C}')
        a.label('L_ld_loop')
        a(f's_lshl_b32 s{S_T0}, s{S_K}, 3')
        a(f'v_add_u32 v18, s{S_T0}, v{vF}')
        a('s_waitcnt vmcnt(0)')
        a('ds_write_b32 v18, v15')
        self.stamp_k('lF')
        a(f's_add_u32 s{S_K}, s{S_K}, 3')
        a(f's_cmp_ge_u32 s{S_K}, 8')
        a('s_cbranch_scc1 L_ld_done')
        a(f's_lshl_b32 s{S_T0}, s{S_K}, 4')
        a(f's_add_u32 s{S_T0}, s{S_T0}, {M_C - 48}')
        a(f'v_mov_b32 v{vC}, s{S_T0}')
        self.lds_spin(vC, vT, 4, sleep=1)
        self.stamp_k('lC')
        if 'dma3' not in self.exp:
            self.issue_chunk()
        self.stamp_k('lI')
        if 'notouch' not in self.exp:
            a(f's_cmp_eq_u32 s{S_K}, 7')
            a('s_cbranch_scc0 L_ld_loop')
            a(f'v_mov_b32 v{vC}, {M_MODE}')
            a(f'ds_read_b64 v[20:21], v{vC}')
            a(f'v_lshrrev_b32 v22, 4, v{V_LANE}')
            a('v_lshlrev_b32 v22, 16, v22')
            a(f'v_and_b32 v23, 15, v{V_LANE}')
            a('v_lshl_add_u32 v22, v23, 7, v22')
            a(f's_lshl_b32 s{S_T0}, s{S_CG}, 18')
            a(f's_lshl_b32 s{S_T1}, s{S_XC}, 13')
            a(f's_add_u32 s{S_T0}, s{S_T0}, s{S_T1}')
            a(f's_lshl_b32 s{S_T1}, s{S_RB}, 11')
            a(f's_add_u32 s{S_T0}, s{S_T0}, s{S_T1}')
            a('s_waitcnt lgkmcnt(0)')
            a(f'v_readfirstlane_b32 s{S_T1}, v20')
            a(f'v_readfirstlane_b32 s{S_T2}, v21')
            a(f's_cmp_eq_u32 s{S_T2}, s{S_TOK}')
            a('s_cbranch_scc0 L_ld_loop')
            a(f's_cmp_eq_u32 s{S_T1}, 1')
            a('s_cbranch_scc0 L_ld_loop')
            a(f's_lshl_b32 s{S_T2}, s{S_K}, 3')
            a(f'v_add_u32 v18, s{S_T2}, v{vF}')
            a(f's_cmp_eq_u32 s{S_WV}, 6')
            a('s_cbranch_scc0 L_ld_touchv')
            a(f's_add_u32 s{S_T1}, s{S_T0}, {WS_KL}')
            a(f'buffer_load_dword v24, v22, {WSR}, s{S_T1} offen')
            a(f's_add_u32 s{S_T1}, s{S_T0}, {WS_QL}')
            a(f'buffer_load_dword v25, v22, {WSR}, s{S_T1} offen')
            if 'touchr' in self.exp:
                a(f's_add_u32 s{S_T1}, s{S_T0}, {WS_KR}')
                a(f'buffer_load_dword v26, v22, {WSR}, s{S_T1} offen sc1')
            a(f"s_waitcnt vmcnt({3 if 'touchr' in self.exp else 2})")
            a('s_branch L_ld_touched')
            a.label('L_ld_touchv')
            a(f's_add_u32 s{S_T1}, s{S_T0}, {WS_VL}')
            a(f'buffer_load_dword v24, v22, {WSR}, s{S_T1} offen')
            if 'touchr' in self.exp:
                a(f's_add_u32 s{S_T1}, s{S_T0}, {WS_VR}')
                a(f'buffer_load_dword v26, v22, {WSR}, s{S_T1} offen sc1')
            a(f"s_waitcnt vmcnt({2 if 'touchr' in self.exp else 1})")
            a.label('L_ld_touched')
            a('ds_write_b32 v18, v15')
            a('s_branch L_ld_done')
        a('s_branch L_ld_loop')
        a.label('L_ld_done')
        self.stamp('lb7')
        a(f's_cmp_ge_u32 s{S_WV}, 8')
        a('s_cbranch_scc1 L_gap1_join')
        self.stage_local()
        a('s_branch L_gap1_join')

    def kv_src(self):
        a = self.a
        a(f's_lshl_b32 s{S_C}, s{S_XC}, 1')
        a(f's_lshl_b32 s{S_T0}, s{S_H}, 16')
        a(f's_and_b32 s{S_B}, s{S_WV}, 3')
        a(f's_lshl_b32 s{S_B}, s{S_B}, 10')
        a(f's_add_u32 s{S_SRC}, s{S_T0}, s{S_B}')
        a(f'v_lshlrev_b32 v{A_L16}, 4, v{V_LANE}')

    def kv_dma(self, j, kbase, vbase):
        a = self.a
        a(f's_add_u32 s{S_T0}, s{S_C}, {j}')
        a(f's_and_b32 s{S_T0}, s{S_T0}, 15')
        a(f's_lshl_b32 s{S_T0}, s{S_T0}, 12')
        a(f's_add_u32 s{S_T0}, s{S_T0}, s{S_SRC}')
        a(f's_add_u32 m0, s{S_B}, {L_K + 4096 * j}')
        a(f's_add_u32 s{S_T4}, s{S_T0}, {kbase}')
        a(f'buffer_load_dwordx4 v{A_L16}, {WSR}, s{S_T4} offen sc1 lds')
        a(f's_add_u32 m0, s{S_B}, {L_V + 4096 * j}')
        a(f's_add_u32 s{S_T4}, s{S_T0}, {vbase}')
        a(f'buffer_load_dwordx4 v{A_L16}, {WSR}, s{S_T4} offen sc1 lds')

    def stage_local(self):
        a = self.a
        self.kv_src()
        a(f'v_lshlrev_b32 v2, 2, v{V_LANE}')
        a(f's_add_u32 s{S_T0}, s{S_INB}, {IB_L}')
        a('v_add_u32 v2, s70, v2')
        self.ws_spin(2, 3, 8, 'loc')
        self.stamp('loc_ok')
        for j in range(2):
            self.kv_dma(j, WS_KL, WS_VL)
        a(f's_lshl_b32 s{S_T0}, s{S_H}, 16')
        a(f's_lshl_b32 s{S_T1}, s{S_XC}, 13')
        a(f's_add_u32 s{S_T0}, s{S_T0}, s{S_T1}')
        a(f's_lshl_b32 s{S_T1}, s{S_B}, 1')
        a(f's_add_u32 s{S_T0}, s{S_T0}, s{S_T1}')
        a(f's_add_u32 s{S_T0}, s{S_T0}, {WS_QL}')
        for i in range(2):
            a(f's_add_u32 m0, s{S_T1}, {L_QS + 1024 * i}')
            a(f's_add_u32 s{S_T4}, s{S_T0}, {1024 * i}')
            a(f'buffer_load_dwordx4 v{A_L16}, {WSR}, s{S_T4} offen sc1 lds')
        a(f's_and_b32 s{S_T0}, s{S_WV}, 3')
        a(f's_lshl_b32 s{S_T0}, s{S_T0}, 2')
        a(f's_add_u32 s{S_T0}, s{S_T0}, {M_SL}')
        a(f'v_mov_b32 v2, s{S_T0}')
        a(f'v_mov_b32 v3, s{S_TOK}')
        a('ds_write_b32 v2, v3')
        a(f'v_lshlrev_b32 v{A_PA}, 2, v{V_LANE}')
        a(f's_add_u32 s{S_T0}, s{S_INB}, {IB_KV}')
        a(f'v_add_u32 v{A_PA}, s{S_T0}, v{A_PA}')
        a(f'buffer_load_dword v{A_PV}, v{A_PA}, {WSR}, 0 offen sc1')
        a('s_waitcnt vmcnt(1)')

    def gemm_waves(self):
        a = self.a
        vXa, vWa, vF, vC, vT = 10, 14, 15, 6, 2
        ACCQ, ACCK, ACCV = 16, 32, 48
        XF, WF = 64, 80
        a.label('L_gemm')
        if 'noprio' not in self.exp:
            a('s_setprio 3')
        a(f'v_and_b32 v2, 31, v{V_LANE}')
        a(f'v_lshrrev_b32 v3, 5, v{V_LANE}')
        a('v_bfe_u32 v4, v2, 1, 3')
        a('v_xor_b32 v4, v4, v3')
        a('v_lshlrev_b32 v4, 4, v4')
        a(f's_and_b32 s{S_T0}, s{S_WV}, 1')
        a(f's_lshl_b32 s{S_T0}, s{S_T0}, 12')
        a('v_lshl_add_u32 v4, v2, 7, v4')
        a(f'v_add_u32 v{vXa}, s{S_T0}, v4')
        for ks in range(1, 4):
            a(f'v_xor_b32 v{vXa + ks}, {32 * ks}, v{vXa}')
        a(f'v_bfe_u32 v4, v{V_LANE}, 2, 2')
        a('v_lshlrev_b32 v4, 6, v4')
        a('v_lshl_add_u32 v4, v3, 10, v4')
        a(f'v_bfe_u32 v5, v{V_LANE}, 4, 1')
        a('v_lshl_add_u32 v4, v5, 5, v4')
        a(f'v_and_b32 v5, 3, v{V_LANE}')
        a('v_lshl_add_u32 v4, v5, 3, v4')
        a(f's_lshr_b32 s{S_T0}, s{S_WV}, 1')
        a(f's_lshl_b32 s{S_T0}, s{S_T0}, 9')
        a(f's_add_u32 s{S_T0}, s{S_T0}, 8192')
        a(f'v_add_u32 v{vWa}, s{S_T0}, v4')
        for i in range(48):
            a(f'v_mov_b32 v{ACCQ + i}, 0')
        a(f's_mov_b32 s{S_K}, 0')
        a(f's_mov_b32 s{S_SLOT}, 0')
        a(f'v_mov_b32 v{vF}, {M_F}')
        a(f's_lshl_b32 s{S_T0}, s{S_WV}, 2')
        a(f's_add_u32 s{S_T0}, s{S_T0}, {M_C}')
        a(f'v_mov_b32 v{vC}, s{S_T0}')
        self.token()
        a(f'v_mov_b32 v7, s{S_TOK}')

        def loads(ks):
            a(f'ds_read_b128 {vr(XF + 4 * ks, 4)}, v{vXa + ks}')
            for c in range(3):
                base = WF + 12 * ks + 4 * c
                a(f'ds_read_b64_tr_b16 {vr(base, 2)}, v{vWa} offset:{c * 8192 + ks * 2048}')
                a(f'ds_read_b64_tr_b16 {vr(base + 2, 2)}, v{vWa} offset:{c * 8192 + ks * 2048 + 256}')

        def mfmas(ks):
            xf = vr(XF + 4 * ks, 4)
            w = [vr(WF + 12 * ks + 4 * c, 4) for c in range(3)]
            a(f'v_mfma_f32_32x32x16_bf16 {vr(ACCQ, 16)}, {w[0]}, {xf}, {vr(ACCQ, 16)}')
            a(f'v_mfma_f32_32x32x16_bf16 {vr(ACCK, 16)}, {w[1]}, {xf}, {vr(ACCK, 16)}')
            a(f'v_mfma_f32_32x32x16_bf16 {vr(ACCV, 16)}, {xf}, {w[2]}, {vr(ACCV, 16)}')

        self.lds_spin(vF, vT, 2)
        self.stamp('b0')
        loads(0)
        loads(1)
        a(f'ds_read_b32 v8, v{vF}')
        a.label('L_g_chunk')
        a('s_waitcnt lgkmcnt(8)')
        loads(2)
        mfmas(0)
        a('s_waitcnt lgkmcnt(7)')
        a(f'ds_read_b64 v[2:3], v{vF} offset:8')
        loads(3)
        mfmas(1)
        a('s_waitcnt lgkmcnt(7)')
        a(f's_add_u32 s{S_K}, s{S_K}, 1')
        a(f's_cmp_eq_u32 s{S_K}, 8')
        a('s_cbranch_scc1 L_g_go')
        self.lds_check(2, 2)
        a('s_cbranch_vccnz L_g_wait')
        a.label('L_g_go')
        a(f's_add_u32 s{S_SLOT}, s{S_SLOT}, 1')
        a(f's_mov_b32 s{S_T0}, {SLOT}')
        a(f's_cmp_eq_u32 s{S_SLOT}, {NSLOT}')
        a(f's_cselect_b32 s{S_T0}, {(-(NSLOT - 1) * SLOT) & 0xffffffff}, s{S_T0}')
        a(f's_cselect_b32 s{S_SLOT}, 0, s{S_SLOT}')
        for i in range(5):
            a(f'v_add_u32 v{vXa + i}, s{S_T0}, v{vXa + i}')
        a(f'v_add_u32 v{vF}, 8, v{vF}')
        loads(0)
        mfmas(2)
        a('s_waitcnt lgkmcnt(7)')
        loads(1)
        a(f'ds_write_b32 v{vC}, v7')
        a(f'v_add_u32 v{vC}, 16, v{vC}')
        mfmas(3)
        a(f's_cmp_lt_u32 s{S_K}, 8')
        a('s_cbranch_scc1 L_g_chunk')
        self.stamp('gemm')
        a('s_waitcnt lgkmcnt(0)')
        a(f'v_mov_b32 v6, {M_MODE}')
        self.lds_spin(6, 2, 1, off=4)
        a('ds_read_b32 v2, v6')

        PQ, PK, PV = 64, 72, 80
        for i in range(8):
            a(f'v_cvt_pk_bf16_f32 v{PK + i}, v{ACCK + 2 * i}, v{ACCK + 2 * i + 1}')
        for i in range(8):
            a(f'v_cvt_pk_bf16_f32 v{PV + i}, v{ACCV + 2 * i}, v{ACCV + 2 * i + 1}')
        a(f's_mov_b32 s{S_T7}, {fbits(QSCALE)}')
        a('s_waitcnt lgkmcnt(0)')
        a(f'v_readfirstlane_b32 s{S_MODE}, v2')
        vL, vV = 2, 3
        a(f'v_lshlrev_b32 v{vL}, 4, v{V_LANE}')
        a(f'v_bfe_u32 v4, v{V_LANE}, 4, 1')
        a('v_lshlrev_b32 v4, 16, v4')
        a(f'v_lshrrev_b32 v5, 5, v{V_LANE}')
        a('v_lshlrev_b32 v5, 8, v5')
        a(f'v_and_b32 v6, 15, v{V_LANE}')
        a('v_lshl_add_u32 v5, v6, 4, v5')
        a(f'v_add_u32 v{vV}, v4, v5')
        a(f's_and_b32 s{S_T6}, s{S_WV}, 2')
        a(f's_lshl_b32 s{S_T1}, s{S_CG}, 2')
        a(f's_add_u32 s{S_T6}, s{S_T6}, s{S_T1}')
        a(f's_lshl_b32 s{S_T5}, s{S_XC}, 3')
        a(f's_lshl_b32 s{S_T1}, s{S_RB}, 1')
        a(f's_add_u32 s{S_T5}, s{S_T5}, s{S_T1}')
        a(f's_and_b32 s{S_T1}, s{S_WV}, 1')
        a(f's_add_u32 s{S_T5}, s{S_T5}, s{S_T1}')
        a(f's_lshl_b32 s{S_T0}, s{S_T6}, 6')
        a(f's_add_u32 s{S_T0}, s{S_T0}, s{S_T5}')
        a(f's_lshl_b32 s{S_T0}, s{S_T0}, 10')
        a(f's_add_u32 s{S_T1}, s{S_T0}, {WS_KL}')
        a(f's_add_u32 s{S_T2}, s{S_T1}, 65536')
        a(f's_add_u32 s{S_T3}, s{S_T0}, {WS_VL}')
        self.store_mode([
            f'buffer_store_dwordx4 {vr(PK, 4)}, v{vL}, {WSR}, s{S_T1} offen {{M}}',
            f'buffer_store_dwordx4 {vr(PK + 4, 4)}, v{vL}, {WSR}, s{S_T2} offen {{M}}',
            f'buffer_store_dwordx4 {vr(PV, 4)}, v{vV}, {WSR}, s{S_T3} offen {{M}}',
            f'buffer_store_dwordx4 {vr(PV + 4, 4)}, v{vV}, {WSR}, s{S_T3} offen offset:512 {{M}}',
        ])
        for i in range(16):
            a(f'v_mul_f32 v{ACCQ + i}, s{S_T7}, v{ACCQ + i}')
        for i in range(8):
            a(f'v_cvt_pk_bf16_f32 v{PQ + i}, v{ACCQ + 2 * i}, v{ACCQ + 2 * i + 1}')
        a(f's_add_u32 s{S_T4}, s{S_T0}, {WS_QL}')
        a(f's_add_u32 s{S_T7}, s{S_T4}, 65536')
        self.store_mode([
            f'buffer_store_dwordx4 {vr(PQ, 4)}, v{vL}, {WSR}, s{S_T4} offen {{M}}',
            f'buffer_store_dwordx4 {vr(PQ + 4, 4)}, v{vL}, {WSR}, s{S_T7} offen {{M}}',
        ])
        a(f's_lshl_b32 s{S_T1}, s{S_T6}, 14')
        a(f's_lshl_b32 s{S_T2}, s{S_XC}, 11')
        a(f's_add_u32 s{S_T1}, s{S_T1}, s{S_T2}')
        a(f's_and_b32 s{S_T2}, s{S_T5}, 7')
        a(f's_lshl_b32 s{S_T2}, s{S_T2}, 2')
        a(f's_add_u32 s{S_T1}, s{S_T1}, s{S_T2}')
        a(f's_add_u32 s{S_T1}, s{S_T1}, {WS_INBOX + IB_L}')
        a(f'v_lshlrev_b32 v4, 14, v{V_LANE}')
        a(f'v_mov_b32 v5, s{S_TOK}')
        self.stamp('st_iss')
        a('s_waitcnt vmcnt(0)')
        self.stamp('st_loc')
        a('s_mov_b64 exec, 3')
        self.store_mode([f'buffer_store_dword v5, v4, {WSR}, s{S_T1} offen {{M}}'])
        a('s_mov_b64 exec, -1')
        if 'early_rem' not in self.exp:
            a(f'v_mov_b32 v6, {M_SL}')
            self.lds_spin(6, 8, 4, sleep=1)
        a(f's_add_u32 s{S_T1}, s{S_T0}, {WS_KR}')
        a(f's_add_u32 s{S_T2}, s{S_T1}, 65536')
        a(f's_add_u32 s{S_T3}, s{S_T0}, {WS_VR}')
        a(f'buffer_store_dwordx4 {vr(PK, 4)}, v{vL}, {WSR}, s{S_T1} offen sc1')
        a(f'buffer_store_dwordx4 {vr(PK + 4, 4)}, v{vL}, {WSR}, s{S_T2} offen sc1')
        a(f'buffer_store_dwordx4 {vr(PV, 4)}, v{vV}, {WSR}, s{S_T3} offen sc1')
        a(f'buffer_store_dwordx4 {vr(PV + 4, 4)}, v{vV}, {WSR}, s{S_T3} offen offset:512 sc1')
        a(f's_lshl_b32 s{S_A}, s{S_T6}, 14')
        a(f's_lshl_b32 s{S_T2}, s{S_T5}, 2')
        a(f's_add_u32 s{S_A}, s{S_A}, s{S_T2}')
        a(f's_add_u32 s{S_A}, s{S_A}, {WS_INBOX + IB_KV}')
        a('s_branch L_gap1_join')
        a.label('L_g_wait')
        self.lds_spin(vF, 2, 2, off=8)
        a('s_branch L_g_go')

    def cexp(self, dst, ar, ai, e, t):
        a = self.a
        a(f'v_mul_f32 v{t}, {fbits(float(e))}, v{ar}')
        a(f'v_mul_f32 v{t + 1}, {fbits(float(e))}, v{ai}')
        a(f'v_exp_f32 v{t}, v{t}')
        a(f'v_fract_f32 v{t + 1}, v{t + 1}')
        a(f'v_cos_f32 v{dst}, v{t + 1}')
        a(f'v_sin_f32 v{dst + 1}, v{t + 1}')
        a('s_nop 0')
        a(f'v_mul_f32 v{dst}, v{t}, v{dst}')
        a(f'v_mul_f32 v{dst + 1}, v{t}, v{dst + 1}')

    def cmul(self, d, x, y):
        a = self.a
        a(f'v_mul_f32 v{d}, v{x}, v{y}')
        a(f'v_mul_f32 v{d + 1}, v{x}, v{y + 1}')
        a(f'v_fma_f32 v{d}, -v{x + 1}, v{y + 1}, v{d}')
        a(f'v_fma_f32 v{d + 1}, v{x + 1}, v{y}, v{d + 1}')

    def kgen_waves(self):
        a = self.a
        S_CH, S_KGB, S_HF = S_A, S_B, S_C
        a.label('L_kgen')
        if 'nokg' in self.exp:
            a('s_branch L_gap1_join')
        a(f's_sub_u32 s{S_J}, s{S_WV}, 10')
        a(f's_lshr_b32 s{S_CH}, s{S_J}, 1')
        a(f's_and_b32 s{S_HF}, s{S_J}, 1')
        a(f's_lshl_b32 s{S_T0}, s{S_XC}, 6')
        a(f's_lshl_b32 s{S_T1}, s{S_IDX}, 1')
        a(f's_add_u32 s{S_T0}, s{S_T0}, s{S_T1}')
        a(f's_lshl_b32 s{S_T3}, s{S_T0}, 1')
        a(f's_load_dword s{S_DT}, s[{S_LOGDT}:{S_LOGDT + 1}], s{S_T3}')
        a(f's_add_u32 s{S_T0}, s{S_T0}, s{S_CH}')
        a(f's_lshl_b32 s{S_T0}, s{S_T0}, 8')
        a(f's_lshl_b32 s{S_T1}, s{S_HF}, 7')
        a(f's_add_u32 s{S_T0}, s{S_T0}, s{S_T1}')
        a(f'v_lshlrev_b32 v2, 1, v{V_LANE}')
        a(f'v_add_u32 v2, s{S_T0}, v2')
        for i, ptr in enumerate((S_LOGA, S_AIM, S_CRE, S_CIM)):
            a(f'global_load_ushort v{20 + i}, v2, s[{ptr}:{ptr + 1}]')
        self.token()
        a(f's_lshl_b32 s{S_T2}, s{S_CH}, 4')
        a(f's_lshr_b32 s{S_T1}, s{S_DT}, s{S_T2}')
        a(f's_lshl_b32 s{S_T1}, s{S_T1}, 16')
        L2E = fbits(LOG2E)
        a(f'v_mov_b32 v4, s{S_T1}')
        a(f'v_mul_f32 v4, {L2E}, v4')
        a('v_exp_f32 v4, v4')
        vA, vR = 8, 9
        a(f's_mul_i32 s{S_KGB}, s{S_J}, {KG_SZ}')
        a(f's_add_u32 s{S_KGB}, s{S_KGB}, {L_KG}')
        a(f'v_lshlrev_b32 v{vA}, 2, v{V_LANE}')
        a(f'v_add_u32 v{vA}, s{S_KGB}, v{vA}')
        a('s_waitcnt vmcnt(0)')
        for i in range(4):
            a(f'v_lshlrev_b32 v{20 + i}, 16, v{20 + i}')
        a(f'v_mul_f32 v20, {L2E}, v20')
        a('v_exp_f32 v20, v20')
        a('s_nop 0')
        a('v_cvt_pk_bf16_f32 v5, v4, v20')
        a('v_and_b32 v20, 0xffff0000, v5')
        a('v_lshlrev_b32 v5, 16, v5')
        for i in range(4):
            a(f'v_mul_f32 v{20 + i}, v{20 + i}, v5')
        a(f'v_mul_f32 v20, {fbits(-LOG2E)}, v20')
        a(f'v_mul_f32 v21, {fbits(INV2PI)}, v21')
        a('v_add_f32 v34, v22, v22')
        a('v_add_f32 v35, v23, v23')
        self.cexp(24, 20, 21, 1, 6)
        self.cexp(30, 20, 21, 4, 6)
        self.cexp(32, 20, 21, 128, 6)
        self.cmul(26, 24, 24)
        self.cmul(28, 26, 24)
        self.stamp('kb0')

        def row(r):
            return ((r & 3) + 8 * (r >> 2)) * ROWP

        G, Y, E = [36, 38], [42, 44], 40

        def put(z, reg, base, off, negim):
            a(f'v_cvt_pk_bf16_f32 v{reg}, v{z}, {"-" if negim else ""}v{z + 1}')
            return f'ds_write_b32 v{base}, v{reg} offset:{off}'

        def two_chains(n, xoffs, yoffs):
            for i in range(n):
                x0, x1 = G[i & 1], G[(i + 1) & 1]
                w = [put(x0, 46, vA, xoffs[i], False)]
                self.cmul(x1, x0, 32)
                for k in range(2):
                    y0, y1 = Y[k], Y[k ^ 1]
                    w.append(put(y0, 47 + k, vR, yoffs[2 * i + k], True))
                    self.cmul(y1, y0, 30)
                for ln in w:
                    a(ln)

        a('v_mov_b32 v36, v34')
        a('v_mov_b32 v37, v35')
        a('v_mov_b32 v42, 1.0')
        a('v_mov_b32 v43, 0')
        a(f'v_add_u32 v{vR}, {KG_Y}, v{vA}')
        a(f'v_mov_b32 v10, v{vA}')
        a(f's_mov_b32 s{S_K}, 0')
        a.label('L_kg_chain')
        vA = 10
        two_chains(8, [(r + 4 * hh) * ROWP for r in range(4) for hh in range(2)], [j * ROWP for j in range(16)])
        vA = 8
        a(f'v_add_u32 v10, {8 * ROWP}, v10')
        a(f'v_add_u32 v{vR}, {16 * ROWP}, v{vR}')
        a(f's_add_u32 s{S_K}, s{S_K}, 1')
        a(f's_cmp_lt_u32 s{S_K}, 2')
        a('s_cbranch_scc1 L_kg_chain')
        a(put(G[0], 46, vA, row(12), False))
        for k, wk in enumerate((24, 26, 28)):
            self.cmul(G[0], 34, wk)
            self.cmul(G[1], G[0], 32)
            w = [put(G[0], 46, vA, row(8 + k), False), put(G[1], 47, vA, row(8 + k) + 4 * ROWP, False)]
            if k == 1:
                self.cmul(E, G[1], 32)
            for ln in w:
                a(ln)
        self.cmul(G[1], E, 32)
        w = [put(E, 46, vA, row(11), False), put(G[1], 47, vA, row(11) + 4 * ROWP, False)]
        for ln in w:
            a(ln)
        self.stamp('kg_ch')
        XA, YA, D, FR = 2, 3, 48, 64
        a(f'v_and_b32 v4, 31, v{V_LANE}')
        a(f'v_mul_u32_u24 v4, {ROWP}, v4')
        a(f'v_lshrrev_b32 v5, 5, v{V_LANE}')
        a('v_lshl_add_u32 v4, v5, 4, v4')
        a(f'v_add_u32 v{XA}, s{S_KGB}, v4')
        a(f'v_add_u32 v{YA}, {KG_Y}, v{XA}')
        a('s_waitcnt lgkmcnt(0)')

        def rd(s):
            a(f'ds_read_b128 {vr(FR + 8 * s, 4)}, v{XA} offset:{32 * s}')
            a(f'ds_read_b128 {vr(FR + 8 * s + 4, 4)}, v{YA} offset:{32 * s}')
        for s in range(6):
            rd(s)
        for s in range(8):
            a(f's_waitcnt lgkmcnt({10 if s < 3 else 2 * (7 - s)})')
            c = '0' if s == 0 else vr(D, 16)
            a(f'v_mfma_f32_32x32x16_bf16 {vr(D, 16)}, {vr(FR + 8 * s, 4)}, {vr(FR + 8 * s + 4, 4)}, {c}')
            if s + 6 < 8:
                rd(s + 6)
        a(f's_mov_b32 s{S_T0}, s{S_J}')
        a(f's_lshl_b32 s{S_T1}, s{S_T0}, 2')
        a(f's_add_u32 s{S_T1}, s{S_T1}, {M_KT}')
        a(f'v_mov_b32 v6, s{S_T1}')
        a(f'v_mov_b32 v7, s{S_TOK}')
        a('ds_write_b32 v6, v7')
        a(f'v_mov_b32 v10, {M_KT}')
        self.lds_spin(10, 12, 4, sleep=2)
        a(f's_lshl_b32 s{S_T1}, s{S_T0}, 12')
        a(f's_add_u32 s{S_T1}, s{S_T1}, {L_KPART}')
        a(f'v_lshlrev_b32 v11, 4, v{V_LANE}')
        a(f'v_add_u32 v12, s{S_T1}, v11')
        for i in range(4):
            a(f'ds_write_b128 v12, {vr(D + 4 * i, 4)} offset:{1024 * i}')
        a('s_waitcnt lgkmcnt(0)')
        a('ds_write_b32 v6, v7 offset:16')
        a('v_xor_b32 v6, 4, v6')
        a('v_xor_b32 v12, 4096, v12')
        self.lds_spin(6, 14, 1, off=16, sleep=1)
        for i in range(4):
            a(f'ds_read_b128 {vr(FR + 4 * i, 4)}, v12 offset:{1024 * i}')
        a(f's_mul_i32 s{S_KGB}, s{S_CH}, {KSP_SZ}')
        a(f's_add_u32 s{S_KGB}, s{S_KGB}, {L_KSP}')
        a(f'v_and_b32 v4, 31, v{V_LANE}')
        a('v_lshlrev_b32 v4, 3, v4')
        a('v_lshl_add_u32 v4, v5, 8, v4')
        a(f'v_add_u32 v4, s{S_KGB}, v4')
        a('s_waitcnt lgkmcnt(0)')
        for i in range(14):
            a(f'v_add_f32 v{D + i}, v{D + i}, v{FR + i}')
        for i in range(0, 14, 2):
            a(f'v_cvt_pk_bf16_f32 v{FR + 16 + i // 2}, v{D + i}, v{D + i + 1}')
        for r in range(13):
            op = 'ds_write_b16' if r % 2 == 0 else 'ds_write_b16_d16_hi'
            a(f'{op} v4, v{FR + 16 + r // 2} offset:{2 * HI0[r]}')
        self.stamp('kg_mf')
        a(f's_mul_i32 s{S_T3}, s{S_CH}, {R_SZ}')
        a(f's_lshl_b32 s{S_T1}, s{S_HF}, 11')
        a(f's_add_u32 s{S_T3}, s{S_T3}, s{S_T1}')
        a(f's_add_u32 s{S_T3}, s{S_T3}, {L_R}')
        a(f'v_lshlrev_b32 v8, 2, v{V_LANE}')
        a(f'v_add_u32 v8, s{S_T3}, v8')
        a(f's_lshl_b32 s{S_T1}, s{S_HF}, 10')
        a(f's_sub_u32 s{S_T1}, 2047, s{S_T1}')
        a(f'v_lshlrev_b32 v9, 1, v{V_LANE}')
        a(f'v_sub_u32 v9, s{S_T1}, v9')
        a('v_cvt_f32_i32 v9, v9')
        a('s_waitcnt lgkmcnt(0)')
        EB = 20

        def gather(k, qq):
            t = EB + 4 * k
            a(f'v_add_f32 v{t}, {fbits(-128.0 * qq)}, v9')
            a(f'v_add_f32 v{t + 1}, -1.0, v{t}')
            a(f'v_cvt_pk_bf16_f32 v{t}, v{t}, v{t + 1}')
            a(f'v_and_b32 v{t + 1}, 0xffff0000, v{t}')
            a(f'v_lshlrev_b32 v{t}, 16, v{t}')
            a(f'v_cvt_u32_f32 v{t}, v{t}')
            a(f'v_cvt_u32_f32 v{t + 1}, v{t + 1}')
            a(f'v_lshl_add_u32 v{t}, v{t}, 1, s{S_KGB}')
            a(f'v_lshl_add_u32 v{t + 1}, v{t + 1}, 1, s{S_KGB}')
            a(f'ds_read_u16 v{t + 2}, v{t}')
            a(f'ds_read_u16_d16_hi v{t + 3}, v{t + 1}')

        for batch in (range(0, 5), range(5, 9)):
            for k, qq in enumerate(batch):
                gather(k, qq)
            a('s_waitcnt lgkmcnt(0)')
            for k, qq in enumerate(batch):
                t = EB + 4 * k
                a(f'v_or_b32 v{t + 2}, v{t + 2}, v{t + 3}')
                if qq < 8:
                    a(f'ds_write_b32 v8, v{t + 2} offset:{256 * qq}')
                else:
                    a(f's_cmp_eq_u32 s{S_HF}, 0')
                    a(f's_cselect_b32 s{S_T1}, -1, 0')
                    a(f'v_and_b32 v{t + 2}, s{S_T1}, v{t + 2}')
                    a(f's_cselect_b32 s{S_T4}, 1, 0xff')
                    a(f's_mov_b32 s{S_T5}, 0')
                    a(f's_mov_b64 exec, s[{S_T4}:{S_T4 + 1}]')
                    a(f'ds_write_b32 v8, v{t + 2} offset:{256 * qq}')
                    a('s_mov_b64 exec, -1')
        a('s_waitcnt lgkmcnt(0)')
        for k in range(8):
            if k % 4 == 0:
                a(f'v_add_u32 v10, {256 * k}, v8')
            a(f'ds_read2_b32 {vr(EB + 2 * k, 2)}, v10 offset0:{64 * (k % 4)} offset1:{64 * (k % 4) + 1}')
        a('s_waitcnt lgkmcnt(0)')
        for k in range(8):
            a(f'v_alignbit_b32 v{EB + 2 * k}, v{EB + 2 * k + 1}, v{EB + 2 * k}, 16')
            a(f'ds_write_b32 v8, v{EB + 2 * k} offset:{R_O + 256 * k}')
        a(f's_cmp_eq_u32 s{S_HF}, 0')
        a('s_cbranch_scc1 L_gap1_join')
        a('v_mov_b32 v4, 0')
        a('s_mov_b64 exec, 0x7f')
        a(f'ds_write_b32 v8, v4 offset:{R_O + 2048}')
        a('s_mov_b64 exec, -1')
        self.stamp('kg_fin')
        a('s_branch L_gap1_join')

    def side_waves(self):
        a = self.a
        a.label('L_side')
        a(f's_cmp_eq_u32 s{S_WV}, 14')
        a('s_cbranch_scc1 L_ustage')
        self.token()
        a(f's_add_u32 s{S_T0}, s{S_INB}, {IB_U}')
        a(f'v_lshlrev_b32 v2, 4, v{V_LANE}')
        self.lanes(56)
        a(f'buffer_load_dwordx4 v[12:15], v2, {WSR}, s{S_T0} offen sc1')
        self.lanes(64)
        a(f'v_lshlrev_b32 v2, 14, v{V_LANE}')
        a(f's_lshl_b32 s{S_T0}, s{S_XC}, 11')
        a(f's_lshl_b32 s{S_T1}, s{S_IDX}, 2')
        a(f's_add_u32 s{S_T0}, s{S_T0}, s{S_T1}')
        a(f's_add_u32 s{S_T0}, s{S_T0}, {WS_INBOX + IB_X}')
        a(f's_xor_b32 s{S_T1}, s{S_TOK}, s{S_XCC}')
        a(f's_xor_b32 s{S_T1}, s{S_T1}, 0x80')
        a(f'v_mov_b32 v3, s{S_T1}')
        a(f'v_lshlrev_b32 v9, 2, v{V_LANE}')
        a(f's_add_u32 s{S_T2}, s{S_INB}, {IB_X}')
        a(f'v_add_u32 v9, s{S_T2}, v9')
        self.lanes(32)
        a(f'buffer_store_dword v3, v2, {WSR}, s{S_T0} offen sc1')
        self.lanes(64)
        a(f'v_mov_b32 v17, {M_F}')
        self.lds_spin(17, 12, 2, sleep=4)
        self.lanes(32)
        a(f's_mov_b32 s{S_CNT}, 0')
        a.label('L_x_poll')
        a(f'buffer_load_dword v8, v9, {WSR}, 0 offen sc1')
        a(f's_add_u32 s{S_CNT}, s{S_CNT}, 1')
        a('s_waitcnt vmcnt(0)')
        a(f'v_xor_b32 v7, s{S_TOK}, v8')
        a('v_and_b32 v7, -16, v7')
        a('v_cmp_ne_u32 vcc, 0x80, v7')
        a(f's_cmp_gt_u32 s{S_CNT}, {SPIN_MAX}')
        a('s_cbranch_scc1 L_x_ok')
        a('s_cbranch_vccnz L_x_poll')
        a.label('L_x_ok')
        a(f'v_cmp_ne_u32 vcc, s{S_T1}, v8')
        a('s_nop 1')
        a('s_cmp_eq_u64 vcc, 0')
        a(f's_cselect_b32 s{S_MODE}, 1, 0')
        self.lanes(64)
        a(f'v_mov_b32 v6, {M_MODE}')
        a(f'v_mov_b32 v10, s{S_MODE}')
        a(f'v_mov_b32 v11, s{S_TOK}')
        a('ds_write_b64 v6, v[10:11]')
        self.stamp('mode')
        if 'nous' in self.exp or 'nokg' in self.exp:
            a('s_branch L_gap1_join')
        a(f'v_mov_b32 v17, {M_KT}')
        self.lds_spin(17, 12, 4, sleep=8)
        a(f'v_lshlrev_b32 v2, 2, v{V_LANE}')
        a(f's_add_u32 s{S_T0}, s{S_INB}, {IB_U}')
        a(f'v_add_u32 v2, s{S_T0}, v2')
        self.ws_spin(2, 3, 32, 'uf')
        a(f'v_lshlrev_b32 v4, 4, v{V_LANE}')
        a(f's_lshl_b32 s{S_T0}, s{S_XC}, 18')
        a(f's_lshl_b32 s{S_T1}, s{S_IDX}, 13')
        a(f's_add_u32 s{S_T0}, s{S_T0}, s{S_T1}')
        a(f's_add_u32 s{S_T0}, s{S_T0}, {WS_UT}')
        for c in range(2):
            for i in range(4):
                a(f's_mov_b32 m0, {L_UL + c * UL_SZ + 512 + 1024 * i}')
                a(f's_add_u32 s{S_T1}, s{S_T0}, {4096 * c + 1024 * i}')
                a(f'buffer_load_dwordx4 v4, {WSR}, s{S_T1} offen sc1 lds')
        a(f'v_lshlrev_b32 v2, 3, v{V_LANE}')
        a(f'v_add_u32 v2, {L_UL}, v2')
        a('v_mov_b32 v10, 0')
        a('v_mov_b32 v11, 0')
        a('ds_write_b64 v2, v[10:11]')
        a(f'ds_write_b64 v2, v[10:11] offset:{UL_SZ}')
        a('s_waitcnt vmcnt(0)')
        self.stamp('ul')
        a('s_branch L_gap1_join')

        a.label('L_ustage')
        if 'nous' in self.exp:
            self.token()
            a(f'v_mov_b32 v4, {M_U}')
            a(f'v_mov_b32 v5, s{S_TOK}')
            a('ds_write_b32 v4, v5')
            a('s_branch L_gap1_join')
        a(f'v_lshrrev_b32 v3, 3, v{V_LANE}')
        a('v_lshlrev_b32 v3, 10, v3')
        a(f'v_and_b32 v2, 7, v{V_LANE}')
        a('v_lshl_add_u32 v3, v2, 4, v3')
        a(f's_lshl_b32 s{S_T0}, s{S_IDX}, 16')
        a(f's_lshl_b32 s{S_T1}, s{S_XC}, 7')
        a(f's_add_u32 s{S_T2}, s{S_T0}, s{S_T1}')
        for i in range(8):
            a(f's_mov_b32 m0, {L_USTAGE + 1024 * i}')
            a(f's_add_u32 s{S_T1}, s{S_T2}, {8192 * i}')
            a(f'buffer_load_dwordx4 v3, s[{R_U}:{R_U + 3}], s{S_T1} offen lds')
        self.token()
        B = 20
        a(f'v_bfe_u32 v2, v{V_LANE}, 2, 2')
        a('v_lshlrev_b32 v2, 7, v2')
        a(f'v_lshrrev_b32 v3, 4, v{V_LANE}')
        a('v_lshl_add_u32 v2, v3, 5, v2')
        a(f'v_and_b32 v3, 3, v{V_LANE}')
        a('v_lshl_add_u32 v2, v3, 3, v2')
        a(f'v_add_u32 v2, {L_USTAGE}, v2')
        a('s_waitcnt vmcnt(0)')
        for o in range(8):
            a(f'ds_read_b64_tr_b16 {vr(B + 4 * o, 2)}, v2 offset:{o * 1024}')
            a(f'ds_read_b64_tr_b16 {vr(B + 4 * o + 2, 2)}, v2 offset:{o * 1024 + 512}')
            if o == 5:
                a('s_waitcnt lgkmcnt(6)')
        a(f'v_mov_b32 v4, {M_U}')
        a(f'v_mov_b32 v5, s{S_TOK}')
        a('s_waitcnt lgkmcnt(0)')
        a('ds_write_b32 v4, v5')
        a(f'v_mov_b32 v6, {M_MODE}')
        self.lds_spin(6, 8, 1, off=4, sleep=8)
        a('ds_read_b32 v8, v6')
        a(f'v_lshlrev_b32 v2, 12, v{V_LANE}')
        a(f's_lshl_b32 s{S_T0}, s{S_XC}, 18')
        a(f's_lshl_b32 s{S_T1}, s{S_IDX}, 7')
        a(f's_add_u32 s{S_T0}, s{S_T0}, s{S_T1}')
        a(f's_add_u32 s{S_T0}, s{S_T0}, {WS_UT}')
        a('s_waitcnt lgkmcnt(0)')
        a(f'v_readfirstlane_b32 s{S_MODE}, v8')
        self.store_mode([f'buffer_store_dwordx4 {vr(B + 4 * o, 4)}, v2, {WSR}, s{S_T0} offen offset:{16 * o} {{M}}' for o in range(8)])
        a(f's_lshl_b32 s{S_T0}, s{S_XC}, 11')
        a(f's_lshl_b32 s{S_T1}, s{S_IDX}, 2')
        a(f's_add_u32 s{S_T0}, s{S_T0}, s{S_T1}')
        a(f's_add_u32 s{S_T0}, s{S_T0}, {WS_INBOX + IB_U}')
        a(f'v_lshlrev_b32 v2, 14, v{V_LANE}')
        a('s_waitcnt vmcnt(0)')
        self.lanes(32)
        self.store_mode([f'buffer_store_dword v5, v2, {WSR}, s{S_T0} offen {{M}}'])
        self.lanes(64)
        self.stamp('uf')

    def finish(self):
        a = self.a
        a.label('L_finish')
        if self.prof:
            a('s_waitcnt vmcnt(0)')
            self.stamp('end')
            a('s_waitcnt lgkmcnt(0)')
            a(f's_lshl_b32 s{S_T0}, s{S_WV}, 5')
            a(f's_lshl_b32 s{S_T1}, s2, 9')
            a(f's_add_u32 s{S_T0}, s{S_T0}, s{S_T1}')
            a(f's_add_u32 s{S_T0}, s{S_T0}, {WS_PROF}')
            for i in range(7):
                a(f'v_mov_b32 v{2 + i}, s{S_PROF + 2 * i}')
            a(f'v_mov_b32 v9, s{S_XCC}')
            a('v_mov_b32 v10, 0')
            a('s_mov_b64 exec, 1')
            a(f'buffer_store_dwordx4 v[2:5], v10, {WSR}, s{S_T0} offen')
            a(f'buffer_store_dwordx4 v[6:9], v10, {WSR}, s{S_T0} offen offset:16')
            a('s_mov_b64 exec, -1')
        a('s_cmp_lg_u32 s2, 0')
        a('s_cbranch_scc1 L_exit')
        a(f's_cmp_lg_u32 s{S_WV}, 0')
        a('s_cbranch_scc1 L_exit')
        a(f'v_mov_b32 v2, s{S_TOK}')
        a(f'v_mov_b32 v3, {WS_G}')
        a('s_mov_b64 exec, 1')
        a(f'buffer_store_dword v2, v3, {WSR}, 0 offen sc1')
        a.label('L_exit')
        a('s_endpgm')

    def build(self):
        import phases3
        a = self.a
        self.prologue()
        self.loader_waves()
        a.label('L_notloader')
        a('s_waitcnt lgkmcnt(0)')
        self.common_setup()
        a(f's_cmp_ge_u32 s{S_WV}, 14')
        a('s_cbranch_scc1 L_side')
        a(f's_cmp_ge_u32 s{S_WV}, 10')
        a('s_cbranch_scc1 L_kgen')
        self.gemm_waves()
        self.kgen_waves()
        self.side_waves()
        a.label('L_gap1_join')
        a('s_setprio 0')
        a('s_waitcnt lgkmcnt(0)')
        a('s_barrier')
        phases3.rest(self)
        self.finish()
        a.label('L_code_end')
        a('s_endpgm')
        return self.wrap()

    def wrap(self):
        head = open(os.path.join(os.path.dirname(os.path.abspath(__file__)), 'header.txt')).read()
        body = self.a.text()
        txt = head + f'; @launch grid=(256,1,1) block=(1024,1,1) lds={LDS_BYTES}\n'
        txt += f'.amdgcn_target "amdgcn-amd-amdhsa--gfx950"\n.text\n.globl {KERNEL}\n.p2align 8\n.type {KERNEL},@function\n{KERNEL}:\n'
        txt += body
        txt += f'''.section .rodata,"a"
.p2align 6
.amdhsa_kernel {KERNEL}
  .amdhsa_next_free_vgpr 128
  .amdhsa_next_free_sgpr 102
  .amdhsa_accum_offset 128
  .amdhsa_group_segment_fixed_size 0
  .amdhsa_kernarg_size 104
  .amdhsa_user_sgpr_count 2
  .amdhsa_user_sgpr_kernarg_segment_ptr 1
  .amdhsa_system_sgpr_workgroup_id_x 1
  .amdhsa_float_denorm_mode_32 3
.end_amdhsa_kernel
'''
        return txt, body


def main():
    import argparse
    ap = argparse.ArgumentParser()
    ap.add_argument('-o', default=f'cdna_kernels/{NAME}.s')
    ap.add_argument('--stop', default=None)
    ap.add_argument('--exp', default='')
    ap.add_argument('--prof', default='')
    ap.add_argument('--points', default='entry,gemm,attn0,attn1,conv,end')
    args = ap.parse_args()
    g = Gen(stop=args.stop, prof=args.prof, points=args.points, exp=args.exp)
    txt, body = g.build()
    probs = check_hazards(body)
    for p in probs:
        print('HAZARD', p)
    open(args.o, 'w').write(txt)
    n = sum(1 for l in body.split('\n') if l.startswith('  ') and not l.strip().startswith(';'))
    print(f'wrote {args.o}: {n} instructions, {len(probs)} hazard findings')
    return 1 if probs else 0


if __name__ == '__main__':
    sys.exit(main())
```

```python
import os
import struct
import sys

sys.path.insert(0, os.path.dirname(os.path.abspath(__file__)))
from asmlib import Asm, VmQueue, check_hazards, vr

NAME = 'concat_heads__softmax_full_mha__ssm_conv_s4d__prompt'
KERNEL = NAME + '_kernel'

WS_G = 0x0
WS_INBOX = 0x100000
IB_KV, IB_X, IB_U, IB_L, IB_O, IB_Y = 0, 512, 640, 768, 1024, 1280
WS_UT = 0x200000
WS_KR = 0x400000
WS_VR = 0x600000
WS_QL = 0x800000
WS_KL = 0xA00000
WS_VL = 0xC00000
WS_OF = 0xE00000
WS_YT = 0x1000000
WS_PROF = 0x1400000
WS_SIZE = 0x1800000

LDS_BYTES = 163840
SLOT, NSLOT = 32768, 3
L_USTAGE = 65536
L_KG = 98304
ROWP = 272
KG_Y = 25 * ROWP
KG_SZ = KG_Y + 32 * ROWP
L_KPART = 98304
L_KSP = 114688
KSP_SZ = 4608
L_K, L_V = 0, 65536
L_R = 131072
R_O, R_SZ = 4160, 8320
L_UL = L_R + 2 * R_SZ
UL_SZ = 4608
L_QS = 73728
L_MISC = 163520
M_MODE = L_MISC
M_F = L_MISC + 16
M_I = L_MISC + 96
M_C = L_MISC + 144
M_KT = L_MISC - 32
M_SL = L_MISC - 48
M_RW = L_MISC - 80
M_U = L_MISC - 96
L_HALF = (32768, 98304)
L_OUT = L_R
OUT_P = 144
L_YS = L_R + 64 * OUT_P
PART_SZ = 2304

S_X, S_WQKV, S_WO, S_U, S_LOGA, S_AIM, S_CRE, S_CIM, S_LOGDT, S_DSK, S_OUT, S_DBG, S_WS = range(8, 34, 2)
R_X, R_W, R_WS, R_U, R_WO, R_OUT = 36, 40, 44, 48, 52, 56
S_XC, S_IDX, S_CG, S_RB, S_S0, S_WV, S_TOK, S_MODE, S_H, S_XCC = range(60, 70)
S_T0, S_T1, S_T2, S_T3, S_T4, S_T5, S_T6, S_T7 = range(70, 78)
S_MASK = 78
S_RET = 80
S_K, S_SLOT, S_CNT, S_DT, S_INB = 82, 83, 84, 85, 86
S_A, S_B, S_C = 3, 4, 5
S_IGN = 6
S_J, S_SRC = 34, 35
S_PROF = 88

V_LANE = 1
LOG2E = 1.4426950408889634
INV2PI = 0.15915494309189535
QSCALE = 0.25 * LOG2E
SPIN_MAX = 400000
KG_WAIT = 5
HI0 = [0, 256, 512, 768, 1024, 1280, 1536, 1792, 1, 2, 3, 258, 2048]
WSR = f's[{R_WS}:{R_WS + 3}]'

A_L16, A_PA, A_PV, A_KA, A_VA, A_Q, A_O = 4, 5, 6, 8, 9, 108, 16
A_S, A_P, A_K, A_V = (32, 48), 64, (72, 76), (80, 88)


def fbits(x):
    return '0x%08x' % struct.unpack('<I', struct.pack('<f', x))[0]


class LdsQueue:
    def __init__(self):
        self.q = []

    def push(self, tag):
        self.q.append(tag)

    def wait(self, a, tag):
        idx = max(i for i, t in enumerate(self.q) if t == tag)
        n = len(self.q) - 1 - idx
        assert n <= 15
        a(f's_waitcnt lgkmcnt({n})')


class Gen:
    def __init__(self, stop=None, prof='', points='', exp=''):
        self.a = Asm()
        self.stop = stop
        self.prof = prof
        self.points = points.split(',') if points else []
        self.exp = set(exp.split(',')) if exp else set()
        assert len(self.points) <= 7
        self.outmod = 'sc1' if 'outwt' in self.exp else ('nt' if 'outnt' in self.exp else '')

    def srd(self, r, base, size):
        a = self.a
        a(f's_mov_b32 s{r}, s{base}')
        a(f's_mov_b32 s{r + 1}, s{base + 1}')
        a(f's_mov_b32 s{r + 2}, {size}')
        a(f's_mov_b32 s{r + 3}, 0x20000')

    def lanes(self, n):
        if n == 64:
            self.a('s_mov_b64 exec, -1')
        elif n >= 32:
            self.a(f's_mov_b32 exec_hi, {hex((1 << (n - 32)) - 1)}')
        else:
            self.a(f's_mov_b64 exec, {hex((1 << n) - 1)}')

    def stamp(self, name):
        if self.prof and name in self.points:
            i = self.points.index(name)
            op = 's_memtime' if self.prof == 'cyc' else 's_memrealtime'
            self.a(f'{op} s[{S_PROF + 2 * i}:{S_PROF + 2 * i + 1}]')

    def stamp_k(self, prefix):
        for k in range(8):
            if self.prof and f'{prefix}{k}' in self.points:
                lb = self.a.uid('nost')
                self.a(f's_cmp_eq_u32 s{S_K}, {k}')
                self.a(f's_cbranch_scc0 {lb}')
                self.stamp(f'{prefix}{k}')
                self.a.label(lb)

    def lds_check(self, vtmp, n):
        a = self.a
        a(f'v_cmp_ne_u32 vcc, s{S_TOK}, v{vtmp}')
        for i in range(1, n):
            a(f'v_cmp_ne_u32 s[{S_IGN}:{S_IGN + 1}], s{S_TOK}, v{vtmp + i}')
            a('s_nop 0')
            a(f's_or_b64 vcc, vcc, s[{S_IGN}:{S_IGN + 1}]')

    def lds_spin(self, vaddr, vtmp, n, off=0, sleep=0):
        a = self.a
        lp = a.uid('lspin')
        rd = {1: 'ds_read_b32', 2: 'ds_read_b64', 4: 'ds_read_b128'}[n]
        a(f's_mov_b32 s{S_CNT}, 0')
        a.label(lp)
        a(f'{rd} {vr(vtmp, n)}, v{vaddr} offset:{off}')
        a(f's_add_u32 s{S_CNT}, s{S_CNT}, 1')
        a('s_waitcnt lgkmcnt(0)')
        self.lds_check(vtmp, n)
        a(f's_cbranch_vccz {lp}_x')
        if sleep:
            a(f's_sleep {sleep}')
        a(f's_cmp_gt_u32 s{S_CNT}, {SPIN_MAX}')
        a(f's_cbranch_scc0 {lp}')
        a.label(lp + '_x')

    def ws_spin(self, voff, vtmp, nlanes, name, preissued=False, ignore=None):
        a = self.a
        lp, done = a.uid(name), a.uid(name + '_ok')
        a(f's_mov_b32 s{S_CNT}, 0')
        if nlanes < 64:
            self.lanes(nlanes)
        if not preissued:
            a(f'buffer_load_dword v{vtmp}, v{voff}, {WSR}, 0 offen sc1')
        a.label(lp)
        a('s_waitcnt vmcnt(0)')
        a(f'v_cmp_ne_u32 vcc, s{S_TOK}, v{vtmp}')
        a(f's_add_u32 s{S_CNT}, s{S_CNT}, 1')
        a('s_nop 0')
        if ignore is not None:
            a(f's_andn2_b64 vcc, vcc, s[{ignore}:{ignore + 1}]')
        else:
            a('s_and_b64 vcc, vcc, exec')
        a(f's_cbranch_scc0 {done}')
        a(f's_cmp_gt_u32 s{S_CNT}, {SPIN_MAX}')
        a(f's_cbranch_scc1 {done}')
        a(f'buffer_load_dword v{vtmp}, v{voff}, {WSR}, 0 offen sc1')
        a(f's_branch {lp}')
        a.label(done)
        if nlanes < 64:
            self.lanes(64)

    def store_mode(self, lines):
        a = self.a
        wt, done = a.uid('wt'), a.uid('std')
        a(f's_cmp_eq_u32 s{S_MODE}, 0')
        a(f's_cbranch_scc1 {wt}')
        for ln in lines:
            a(ln.replace('{M}', ''))
        a(f's_branch {done}')
        a.label(wt)
        for ln in lines:
            a(ln.replace('{M}', 'sc1'))
        a.label(done)

    def token(self):
        a = self.a
        a('s_waitcnt lgkmcnt(0)')
        a(f's_mul_i32 s{S_TOK}, s{S_TOK}, 0x9e3779b1')
        a(f's_add_u32 s{S_TOK}, s{S_TOK}, 0x7f4a7c15')

    def common_setup(self):
        a = self.a
        if 'wstop' in self.exp:
            a(f's_mov_b32 s{S_T7}, {(256 << 20) - WS_SIZE}')
            a(f's_load_dword s{S_TOK}, s[{S_WS}:{S_WS + 1}], s{S_T7}')
        else:
            a(f's_load_dword s{S_TOK}, s[{S_WS}:{S_WS + 1}], {WS_G}')
        a(f's_getreg_b32 s{S_XCC}, hwreg(HW_REG_XCC_ID)')
        self.srd(R_WS, S_WS, WS_SIZE)
        if 'wstop' in self.exp:
            a(f's_add_u32 s{R_WS}, s{R_WS}, {(256 << 20) - WS_SIZE}')
            a(f's_addc_u32 s{R_WS + 1}, s{R_WS + 1}, 0')
        self.srd(R_U, S_U, 2048 * 1024)
        self.srd(R_WO, S_WO, 512 * 1024)
        self.srd(R_OUT, S_OUT, 2048 * 2048)
        a(f's_mov_b32 s{S_H}, s{S_IDX}')
        a(f's_and_b32 s{S_XCC}, s{S_XCC}, 15')
        a(f's_lshl_b32 s{S_INB}, s2, 11')
        a(f's_add_u32 s{S_INB}, s{S_INB}, {WS_INBOX}')
        a(f's_mov_b32 s{S_MASK}, 0x0000ffff')
        a(f's_mov_b32 s{S_MASK + 1}, 0x0000ffff')

    def prologue(self):
        a = self.a
        a('s_cmp_ge_u32 s2, 256')
        a('s_cbranch_scc1 L_exit')
        a('s_load_dwordx16 s[8:23], s[0:1], 0')
        a('s_load_dwordx8 s[24:31], s[0:1], 64')
        a('s_load_dwordx2 s[32:33], s[0:1], 96')
        if self.prof:
            for i in range(14):
                a(f's_mov_b32 s{S_PROF + i}, 0')
        self.stamp('entry')
        a('s_getpc_b64 s[70:71]')
        a.label('L_pc')
        a('v_lshrrev_b32 v2, 6, v0')
        a(f'v_and_b32 v{V_LANE}, 63, v0')
        a(f's_lshr_b32 s{S_IDX}, s2, 3')
        a(f's_lshl_b32 s{S_T2}, s{S_IDX}, 10')
        a(f'v_lshl_add_u32 v3, v0, 7, s{S_T2}')
        a('v_min_u32 v3, L_code_end-L_pc-4, v3')
        a('v_cmp_gt_u32 vcc, 8, v0')
        a(f's_and_saveexec_b64 s[{S_T4}:{S_T4 + 1}], vcc')
        a('s_cbranch_execz L_nocodepf')
        a('global_load_dword v9, v3, s[70:71]')
        a.label('L_nocodepf')
        a('s_mov_b64 exec, -1')
        a(f's_and_b32 s{S_XC}, s2, 7')
        a(f'v_readfirstlane_b32 s{S_WV}, v2')
        a(f's_lshr_b32 s{S_CG}, s{S_IDX}, 2')
        a(f's_and_b32 s{S_RB}, s{S_IDX}, 3')
        a(f's_lshl_b32 s{S_S0}, s{S_RB}, 1')
        a(f's_add_u32 s{S_S0}, s{S_S0}, s{S_CG}')
        a(f's_sub_u32 s{S_T0}, s{S_WV}, 4')
        a(f's_cmp_lt_u32 s{S_T0}, 6')
        a('s_cbranch_scc0 L_notloader')

    def issue_chunk(self):
        a = self.a
        if 'nodma' in self.exp:
            return
        a(f's_add_u32 s{S_T2}, s{S_S0}, s{S_K}')
        a(f's_and_b32 s{S_T2}, s{S_T2}, 7')
        a(f's_lshl_b32 s{S_T0}, s{S_T2}, 7')
        a(f's_add_u32 s{S_T0}, s{S_T0}, s{S_A}')
        a(f's_mul_i32 s{S_T4}, s{S_T2}, {64 * 3072}')
        a(f's_add_u32 s{S_T4}, s{S_T4}, s{S_B}')
        for j in range(4):
            a(f's_add_u32 m0, s{S_C}, {j * 1024}')
            a(f's_add_u32 s{S_T1}, s{S_T0}, {j * 8192}')
            a(f'buffer_load_dwordx4 v{10 + (j & 1)}, s[{R_X}:{R_X + 3}], s{S_T1} offen lds')
            for c in range(3):
                a(f's_add_u32 m0, s{S_C}, {8192 + c * 8192 + j * 1024}')
                a(f's_add_u32 s{S_T1}, s{S_T4}, {j * 8 * 3072 + c * 1024}')
                a(f'buffer_load_dwordx4 v12, s[{R_W}:{R_W + 3}], s{S_T1} offen lds')

    def loader_waves(self):
        a = self.a
        a('s_setprio 2')
        a(f'v_lshrrev_b32 v4, 3, v{V_LANE}')
        a(f'v_and_b32 v5, 7, v{V_LANE}')
        a('v_lshrrev_b32 v6, 1, v4')
        a('v_xor_b32 v7, v5, v6')
        a('v_lshlrev_b32 v7, 4, v7')
        a('v_lshl_add_u32 v10, v4, 10, v7')
        a('v_xor_b32 v11, 64, v10')
        a(f'v_bfe_u32 v4, v{V_LANE}, 2, 3')
        a('v_mul_u32_u24 v4, 3072, v4')
        a(f'v_lshrrev_b32 v5, 5, v{V_LANE}')
        a('v_lshl_add_u32 v4, v5, 6, v4')
        a(f'v_and_b32 v5, 3, v{V_LANE}')
        a('v_lshl_add_u32 v12, v5, 4, v4')
        a(f's_and_b32 s{S_T1}, s{S_T0}, 1')
        a(f's_lshr_b32 s{S_K}, s{S_T0}, 1')
        a(f's_lshl_b32 s{S_C}, s{S_K}, 15')
        a(f's_lshl_b32 s{S_T2}, s{S_T1}, 12')
        a(f's_add_u32 s{S_C}, s{S_C}, s{S_T2}')
        a(f's_lshl_b32 s{S_A}, s{S_XC}, 18')
        a(f's_lshl_b32 s{S_T2}, s{S_RB}, 16')
        a(f's_add_u32 s{S_A}, s{S_A}, s{S_T2}')
        a(f's_lshl_b32 s{S_T2}, s{S_T1}, 15')
        a(f's_add_u32 s{S_A}, s{S_A}, s{S_T2}')
        a(f's_mul_i32 s{S_B}, s{S_T1}, {32 * 3072}')
        a(f's_lshl_b32 s{S_T2}, s{S_CG}, 7')
        a(f's_add_u32 s{S_B}, s{S_B}, s{S_T2}')
        vF, vC, vT = 13, 14, 20
        a(f's_lshl_b32 s{S_T1}, s{S_T1}, 2')
        a(f's_add_u32 s{S_T2}, s{S_T1}, {M_F}')
        a(f'v_mov_b32 v{vF}, s{S_T2}')
        a(f's_lshl_b32 s{S_T2}, s{S_K}, 3')
        a(f's_add_u32 s{S_T2}, s{S_T2}, s{S_T1}')
        a(f's_add_u32 s{S_T2}, s{S_T2}, {M_I}')
        a(f'v_mov_b32 v17, s{S_T2}')
        a('s_waitcnt lgkmcnt(0)')
        self.srd(R_X, S_X, 2048 * 1024)
        self.srd(R_W, S_WQKV, 512 * 3072)
        a(f's_cmp_eq_u32 s{S_K}, 0')
        a('s_cbranch_scc1 L_ld_first')
        self.common_setup()
        self.token()
        a(f's_lshl_b32 s{S_T2}, s{S_K}, 3')
        a(f's_add_u32 s{S_T2}, s{S_T2}, {M_I - 8}')
        a(f'v_mov_b32 v{vC}, s{S_T2}')
        self.lds_spin(vC, vT, 2, sleep=2)
        a(f's_cmp_eq_u32 s{S_K}, 2')
        a('s_cbranch_scc0 L_ld_go')
        a(f'v_mov_b32 v{vC}, {M_U}')
        self.lds_spin(vC, vT, 1, sleep=1)
        a.label('L_ld_go')
        self.issue_chunk()
        a('s_branch L_ld_issued')
        a.label('L_ld_first')
        self.stamp('iss0')
        self.issue_chunk()
        self.common_setup()
        self.token()
        a.label('L_ld_issued')
        self.stamp('iss1')
        a(f'v_mov_b32 v15, s{S_TOK}')
        a('ds_write_b32 v17, v15')
        a(f'v_mov_b32 v{vC}, {M_C}')
        a.label('L_ld_loop')
        a(f's_lshl_b32 s{S_T0}, s{S_K}, 3')
        a(f'v_add_u32 v18, s{S_T0}, v{vF}')
        a('s_waitcnt vmcnt(0)')
        a('ds_write_b32 v18, v15')
        self.stamp_k('lF')
        a(f's_add_u32 s{S_K}, s{S_K}, 3')
        a(f's_cmp_ge_u32 s{S_K}, 8')
        a('s_cbranch_scc1 L_ld_done')
        a(f's_lshl_b32 s{S_T0}, s{S_K}, 4')
        a(f's_add_u32 s{S_T0}, s{S_T0}, {M_C - 48}')
        a(f'v_mov_b32 v{vC}, s{S_T0}')
        self.lds_spin(vC, vT, 4, sleep=1)
        self.stamp_k('lC')
        if 'dma3' not in self.exp:
            self.issue_chunk()
        self.stamp_k('lI')
        a(f's_cmp_eq_u32 s{S_K}, 7')
        a('s_cbranch_scc0 L_ld_loop')
        if 'notouch' not in self.exp:
            a(f'v_mov_b32 v{vC}, {M_MODE}')
            a(f'ds_read_b64 v[20:21], v{vC}')
            a(f'v_lshrrev_b32 v22, 4, v{V_LANE}')
            a('v_lshlrev_b32 v22, 16, v22')
            a(f'v_and_b32 v23, 15, v{V_LANE}')
            a('v_lshl_add_u32 v22, v23, 7, v22')
            a(f's_lshl_b32 s{S_T0}, s{S_CG}, 18')
            a(f's_lshl_b32 s{S_T1}, s{S_XC}, 13')
            a(f's_add_u32 s{S_T0}, s{S_T0}, s{S_T1}')
            a(f's_lshl_b32 s{S_T1}, s{S_RB}, 11')
            a(f's_add_u32 s{S_T0}, s{S_T0}, s{S_T1}')
            a('s_waitcnt lgkmcnt(0)')
            a(f'v_readfirstlane_b32 s{S_T1}, v20')
            a(f'v_readfirstlane_b32 s{S_T2}, v21')
            a(f's_cmp_eq_u32 s{S_T2}, s{S_TOK}')
            a('s_cbranch_scc0 L_ld_loop')
            a(f's_cmp_eq_u32 s{S_T1}, 1')
            a('s_cbranch_scc0 L_ld_loop')
            a(f's_lshl_b32 s{S_T2}, s{S_K}, 3')
            a(f'v_add_u32 v18, s{S_T2}, v{vF}')
            a(f's_cmp_eq_u32 s{S_WV}, 6')
            a('s_cbranch_scc0 L_ld_touchv')
            a(f's_add_u32 s{S_T1}, s{S_T0}, {WS_KL}')
            a(f'buffer_load_dword v24, v22, {WSR}, s{S_T1} offen')
            a(f's_add_u32 s{S_T1}, s{S_T0}, {WS_QL}')
            a(f'buffer_load_dword v25, v22, {WSR}, s{S_T1} offen')
            if 'touchr' in self.exp:
                a(f's_add_u32 s{S_T1}, s{S_T0}, {WS_KR}')
                a(f'buffer_load_dword v26, v22, {WSR}, s{S_T1} offen sc1')
            a(f"s_waitcnt vmcnt({3 if 'touchr' in self.exp else 2})")
            a('s_branch L_ld_touched')
            a.label('L_ld_touchv')
            a(f's_add_u32 s{S_T1}, s{S_T0}, {WS_VL}')
            a(f'buffer_load_dword v24, v22, {WSR}, s{S_T1} offen')
            if 'touchr' in self.exp:
                a(f's_add_u32 s{S_T1}, s{S_T0}, {WS_VR}')
                a(f'buffer_load_dword v26, v22, {WSR}, s{S_T1} offen sc1')
            a(f"s_waitcnt vmcnt({2 if 'touchr' in self.exp else 1})")
            a.label('L_ld_touched')
            a('ds_write_b32 v18, v15')
            a('s_branch L_ld_done')
        a('s_branch L_ld_loop')
        a.label('L_ld_done')
        self.stamp('lb7')
        a(f's_cmp_ge_u32 s{S_WV}, 8')
        a('s_cbranch_scc1 L_gap1_join')
        self.stage_local()
        a('s_branch L_gap1_join')

    def kv_src(self):
        a = self.a
        a(f's_lshl_b32 s{S_C}, s{S_XC}, 1')
        a(f's_lshl_b32 s{S_T0}, s{S_H}, 16')
        a(f's_and_b32 s{S_B}, s{S_WV}, 3')
        a(f's_lshl_b32 s{S_B}, s{S_B}, 10')
        a(f's_add_u32 s{S_SRC}, s{S_T0}, s{S_B}')
        a(f'v_lshlrev_b32 v{A_L16}, 4, v{V_LANE}')

    def kv_dma(self, j, kbase, vbase):
        a = self.a
        a(f's_add_u32 s{S_T0}, s{S_C}, {j}')
        a(f's_and_b32 s{S_T0}, s{S_T0}, 15')
        a(f's_lshl_b32 s{S_T0}, s{S_T0}, 12')
        a(f's_add_u32 s{S_T0}, s{S_T0}, s{S_SRC}')
        a(f's_add_u32 m0, s{S_B}, {L_K + 4096 * j}')
        a(f's_add_u32 s{S_T4}, s{S_T0}, {kbase}')
        a(f'buffer_load_dwordx4 v{A_L16}, {WSR}, s{S_T4} offen sc1 lds')
        a(f's_add_u32 m0, s{S_B}, {L_V + 4096 * j}')
        a(f's_add_u32 s{S_T4}, s{S_T0}, {vbase}')
        a(f'buffer_load_dwordx4 v{A_L16}, {WSR}, s{S_T4} offen sc1 lds')

    def stage_local(self):
        a = self.a
        self.kv_src()
        a(f'v_lshlrev_b32 v2, 2, v{V_LANE}')
        a(f's_add_u32 s{S_T0}, s{S_INB}, {IB_L}')
        a('v_add_u32 v2, s70, v2')
        self.ws_spin(2, 3, 8, 'loc')
        self.stamp('loc_ok')
        for j in range(2):
            self.kv_dma(j, WS_KL, WS_VL)
        a(f's_lshl_b32 s{S_T0}, s{S_H}, 16')
        a(f's_lshl_b32 s{S_T1}, s{S_XC}, 13')
        a(f's_add_u32 s{S_T0}, s{S_T0}, s{S_T1}')
        a(f's_lshl_b32 s{S_T1}, s{S_B}, 1')
        a(f's_add_u32 s{S_T0}, s{S_T0}, s{S_T1}')
        a(f's_add_u32 s{S_T0}, s{S_T0}, {WS_QL}')
        for i in range(2):
            a(f's_add_u32 m0, s{S_T1}, {L_QS + 1024 * i}')
            a(f's_add_u32 s{S_T4}, s{S_T0}, {1024 * i}')
            a(f'buffer_load_dwordx4 v{A_L16}, {WSR}, s{S_T4} offen sc1 lds')
        a(f's_and_b32 s{S_T0}, s{S_WV}, 3')
        a(f's_lshl_b32 s{S_T0}, s{S_T0}, 2')
        a(f's_add_u32 s{S_T0}, s{S_T0}, {M_SL}')
        a(f'v_mov_b32 v2, s{S_T0}')
        a(f'v_mov_b32 v3, s{S_TOK}')
        a('ds_write_b32 v2, v3')
        a(f'v_lshlrev_b32 v{A_PA}, 2, v{V_LANE}')
        a(f's_add_u32 s{S_T0}, s{S_INB}, {IB_KV}')
        a(f'v_add_u32 v{A_PA}, s{S_T0}, v{A_PA}')
        a(f'buffer_load_dword v{A_PV}, v{A_PA}, {WSR}, 0 offen sc1')
        a('s_waitcnt vmcnt(1)')

    def gemm_waves(self):
        a = self.a
        vXa, vWa, vF, vC, vT = 10, 14, 15, 6, 2
        ACCQ, ACCK, ACCV = 16, 32, 48
        XF, WF = 64, 80
        a.label('L_gemm')
        if 'noprio' not in self.exp:
            a('s_setprio 3')
        a(f'v_and_b32 v2, 31, v{V_LANE}')
        a(f'v_lshrrev_b32 v3, 5, v{V_LANE}')
        a('v_bfe_u32 v4, v2, 1, 3')
        a('v_xor_b32 v4, v4, v3')
        a('v_lshlrev_b32 v4, 4, v4')
        a(f's_and_b32 s{S_T0}, s{S_WV}, 1')
        a(f's_lshl_b32 s{S_T0}, s{S_T0}, 12')
        a('v_lshl_add_u32 v4, v2, 7, v4')
        a(f'v_add_u32 v{vXa}, s{S_T0}, v4')
        for ks in range(1, 4):
            a(f'v_xor_b32 v{vXa + ks}, {32 * ks}, v{vXa}')
        a(f'v_bfe_u32 v4, v{V_LANE}, 2, 2')
        a('v_lshlrev_b32 v4, 6, v4')
        a('v_lshl_add_u32 v4, v3, 10, v4')
        a(f'v_bfe_u32 v5, v{V_LANE}, 4, 1')
        a('v_lshl_add_u32 v4, v5, 5, v4')
        a(f'v_and_b32 v5, 3, v{V_LANE}')
        a('v_lshl_add_u32 v4, v5, 3, v4')
        a(f's_lshr_b32 s{S_T0}, s{S_WV}, 1')
        a(f's_lshl_b32 s{S_T0}, s{S_T0}, 9')
        a(f's_add_u32 s{S_T0}, s{S_T0}, 8192')
        a(f'v_add_u32 v{vWa}, s{S_T0}, v4')
        for i in range(48):
            a(f'v_mov_b32 v{ACCQ + i}, 0')
        a(f's_mov_b32 s{S_K}, 0')
        a(f's_mov_b32 s{S_SLOT}, 0')
        a(f'v_mov_b32 v{vF}, {M_F}')
        a(f's_lshl_b32 s{S_T0}, s{S_WV}, 2')
        a(f's_add_u32 s{S_T0}, s{S_T0}, {M_C}')
        a(f'v_mov_b32 v{vC}, s{S_T0}')
        self.token()
        a(f'v_mov_b32 v7, s{S_TOK}')

        def loads(ks):
            a(f'ds_read_b128 {vr(XF + 4 * ks, 4)}, v{vXa + ks}')
            for c in range(3):
                base = WF + 12 * ks + 4 * c
                a(f'ds_read_b64_tr_b16 {vr(base, 2)}, v{vWa} offset:{c * 8192 + ks * 2048}')
                a(f'ds_read_b64_tr_b16 {vr(base + 2, 2)}, v{vWa} offset:{c * 8192 + ks * 2048 + 256}')

        def mfmas(ks):
            xf = vr(XF + 4 * ks, 4)
            w = [vr(WF + 12 * ks + 4 * c, 4) for c in range(3)]
            a(f'v_mfma_f32_32x32x16_bf16 {vr(ACCQ, 16)}, {w[0]}, {xf}, {vr(ACCQ, 16)}')
            a(f'v_mfma_f32_32x32x16_bf16 {vr(ACCK, 16)}, {w[1]}, {xf}, {vr(ACCK, 16)}')
            a(f'v_mfma_f32_32x32x16_bf16 {vr(ACCV, 16)}, {xf}, {w[2]}, {vr(ACCV, 16)}')

        self.lds_spin(vF, vT, 2, sleep=2)
        self.stamp('b0')
        loads(0)
        loads(1)
        a(f'ds_read_b32 v8, v{vF}')
        a.label('L_g_chunk')
        a('s_waitcnt lgkmcnt(8)')
        loads(2)
        mfmas(0)
        a('s_waitcnt lgkmcnt(7)')
        a(f'ds_read_b64 v[2:3], v{vF} offset:8')
        loads(3)
        mfmas(1)
        a('s_waitcnt lgkmcnt(7)')
        a(f's_add_u32 s{S_K}, s{S_K}, 1')
        a(f's_cmp_eq_u32 s{S_K}, 8')
        a('s_cbranch_scc1 L_g_go')
        self.lds_check(2, 2)
        a('s_cbranch_vccnz L_g_wait')
        a.label('L_g_go')
        a(f's_add_u32 s{S_SLOT}, s{S_SLOT}, 1')
        a(f's_mov_b32 s{S_T0}, {SLOT}')
        a(f's_cmp_eq_u32 s{S_SLOT}, {NSLOT}')
        a(f's_cselect_b32 s{S_T0}, {(-(NSLOT - 1) * SLOT) & 0xffffffff}, s{S_T0}')
        a(f's_cselect_b32 s{S_SLOT}, 0, s{S_SLOT}')
        for i in range(5):
            a(f'v_add_u32 v{vXa + i}, s{S_T0}, v{vXa + i}')
        a(f'v_add_u32 v{vF}, 8, v{vF}')
        loads(0)
        mfmas(2)
        a('s_waitcnt lgkmcnt(7)')
        loads(1)
        a(f'ds_write_b32 v{vC}, v7')
        a(f'v_add_u32 v{vC}, 16, v{vC}')
        mfmas(3)
        a(f's_cmp_lt_u32 s{S_K}, 8')
        a('s_cbranch_scc1 L_g_chunk')
        self.stamp('gemm')
        a('s_waitcnt lgkmcnt(0)')
        a(f'v_mov_b32 v6, {M_MODE}')
        self.lds_spin(6, 2, 1, off=4)
        a('ds_read_b32 v2, v6')

        PQ, PK, PV = 64, 72, 80
        for i in range(8):
            a(f'v_cvt_pk_bf16_f32 v{PK + i}, v{ACCK + 2 * i}, v{ACCK + 2 * i + 1}')
        for i in range(8):
            a(f'v_cvt_pk_bf16_f32 v{PV + i}, v{ACCV + 2 * i}, v{ACCV + 2 * i + 1}')
        a(f's_mov_b32 s{S_T7}, {fbits(QSCALE)}')
        a('s_waitcnt lgkmcnt(0)')
        a(f'v_readfirstlane_b32 s{S_MODE}, v2')
        vL, vV = 2, 3
        a(f'v_lshlrev_b32 v{vL}, 4, v{V_LANE}')
        a(f'v_bfe_u32 v4, v{V_LANE}, 4, 1')
        a('v_lshlrev_b32 v4, 16, v4')
        a(f'v_lshrrev_b32 v5, 5, v{V_LANE}')
        a('v_lshlrev_b32 v5, 8, v5')
        a(f'v_and_b32 v6, 15, v{V_LANE}')
        a('v_lshl_add_u32 v5, v6, 4, v5')
        a(f'v_add_u32 v{vV}, v4, v5')
        a(f's_and_b32 s{S_T6}, s{S_WV}, 2')
        a(f's_lshl_b32 s{S_T1}, s{S_CG}, 2')
        a(f's_add_u32 s{S_T6}, s{S_T6}, s{S_T1}')
        a(f's_lshl_b32 s{S_T5}, s{S_XC}, 3')
        a(f's_lshl_b32 s{S_T1}, s{S_RB}, 1')
        a(f's_add_u32 s{S_T5}, s{S_T5}, s{S_T1}')
        a(f's_and_b32 s{S_T1}, s{S_WV}, 1')
        a(f's_add_u32 s{S_T5}, s{S_T5}, s{S_T1}')
        a(f's_lshl_b32 s{S_T0}, s{S_T6}, 6')
        a(f's_add_u32 s{S_T0}, s{S_T0}, s{S_T5}')
        a(f's_lshl_b32 s{S_T0}, s{S_T0}, 10')
        a(f's_add_u32 s{S_T1}, s{S_T0}, {WS_KL}')
        a(f's_add_u32 s{S_T2}, s{S_T1}, 65536')
        a(f's_add_u32 s{S_T3}, s{S_T0}, {WS_VL}')
        self.store_mode([
            f'buffer_store_dwordx4 {vr(PK, 4)}, v{vL}, {WSR}, s{S_T1} offen {{M}}',
            f'buffer_store_dwordx4 {vr(PK + 4, 4)}, v{vL}, {WSR}, s{S_T2} offen {{M}}',
            f'buffer_store_dwordx4 {vr(PV, 4)}, v{vV}, {WSR}, s{S_T3} offen {{M}}',
            f'buffer_store_dwordx4 {vr(PV + 4, 4)}, v{vV}, {WSR}, s{S_T3} offen offset:512 {{M}}',
        ])
        for i in range(16):
            a(f'v_mul_f32 v{ACCQ + i}, s{S_T7}, v{ACCQ + i}')
        for i in range(8):
            a(f'v_cvt_pk_bf16_f32 v{PQ + i}, v{ACCQ + 2 * i}, v{ACCQ + 2 * i + 1}')
        a(f's_add_u32 s{S_T4}, s{S_T0}, {WS_QL}')
        a(f's_add_u32 s{S_T7}, s{S_T4}, 65536')
        self.store_mode([
            f'buffer_store_dwordx4 {vr(PQ, 4)}, v{vL}, {WSR}, s{S_T4} offen {{M}}',
            f'buffer_store_dwordx4 {vr(PQ + 4, 4)}, v{vL}, {WSR}, s{S_T7} offen {{M}}',
        ])
        a(f's_lshl_b32 s{S_T1}, s{S_T6}, 14')
        a(f's_lshl_b32 s{S_T2}, s{S_XC}, 11')
        a(f's_add_u32 s{S_T1}, s{S_T1}, s{S_T2}')
        a(f's_and_b32 s{S_T2}, s{S_T5}, 7')
        a(f's_lshl_b32 s{S_T2}, s{S_T2}, 2')
        a(f's_add_u32 s{S_T1}, s{S_T1}, s{S_T2}')
        a(f's_add_u32 s{S_T1}, s{S_T1}, {WS_INBOX + IB_L}')
        a(f'v_lshlrev_b32 v4, 14, v{V_LANE}')
        a(f'v_mov_b32 v5, s{S_TOK}')
        self.stamp('st_iss')
        a('s_waitcnt vmcnt(0)')
        self.stamp('st_loc')
        a('s_mov_b64 exec, 3')
        self.store_mode([f'buffer_store_dword v5, v4, {WSR}, s{S_T1} offen {{M}}'])
        a('s_mov_b64 exec, -1')
        if 'early_rem' not in self.exp:
            a(f'v_mov_b32 v6, {M_SL}')
            self.lds_spin(6, 8, 4, sleep=1)
        a(f's_add_u32 s{S_T1}, s{S_T0}, {WS_KR}')
        a(f's_add_u32 s{S_T2}, s{S_T1}, 65536')
        a(f's_add_u32 s{S_T3}, s{S_T0}, {WS_VR}')
        a(f'buffer_store_dwordx4 {vr(PK, 4)}, v{vL}, {WSR}, s{S_T1} offen sc1')
        a(f'buffer_store_dwordx4 {vr(PK + 4, 4)}, v{vL}, {WSR}, s{S_T2} offen sc1')
        a(f'buffer_store_dwordx4 {vr(PV, 4)}, v{vV}, {WSR}, s{S_T3} offen sc1')
        a(f'buffer_store_dwordx4 {vr(PV + 4, 4)}, v{vV}, {WSR}, s{S_T3} offen offset:512 sc1')
        a(f's_lshl_b32 s{S_A}, s{S_T6}, 14')
        a(f's_lshl_b32 s{S_T2}, s{S_T5}, 2')
        a(f's_add_u32 s{S_A}, s{S_A}, s{S_T2}')
        a(f's_add_u32 s{S_A}, s{S_A}, {WS_INBOX + IB_KV}')
        a('s_branch L_gap1_join')
        a.label('L_g_wait')
        self.lds_spin(vF, 2, 2, off=8, sleep=1)
        a('s_branch L_g_go')

    def cexp(self, dst, ar, ai, e, t):
        a = self.a
        a(f'v_mul_f32 v{t}, {fbits(float(e))}, v{ar}')
        a(f'v_mul_f32 v{t + 1}, {fbits(float(e))}, v{ai}')
        a(f'v_exp_f32 v{t}, v{t}')
        a(f'v_fract_f32 v{t + 1}, v{t + 1}')
        a(f'v_cos_f32 v{dst}, v{t + 1}')
        a(f'v_sin_f32 v{dst + 1}, v{t + 1}')
        a('s_nop 0')
        a(f'v_mul_f32 v{dst}, v{t}, v{dst}')
        a(f'v_mul_f32 v{dst + 1}, v{t}, v{dst + 1}')

    def cmul(self, d, x, y):
        a = self.a
        a(f'v_mul_f32 v{d}, v{x}, v{y}')
        a(f'v_mul_f32 v{d + 1}, v{x}, v{y + 1}')
        a(f'v_fma_f32 v{d}, -v{x + 1}, v{y + 1}, v{d}')
        a(f'v_fma_f32 v{d + 1}, v{x + 1}, v{y}, v{d + 1}')

    def kgen_waves(self):
        a = self.a
        S_CH, S_KGB, S_HF = S_A, S_B, S_C
        a.label('L_kgen')
        if 'nokg' in self.exp:
            a('s_branch L_gap1_join')
        a(f's_sub_u32 s{S_J}, s{S_WV}, 10')
        a(f's_lshr_b32 s{S_CH}, s{S_J}, 1')
        a(f's_and_b32 s{S_HF}, s{S_J}, 1')
        a(f's_lshl_b32 s{S_T0}, s{S_XC}, 6')
        a(f's_lshl_b32 s{S_T1}, s{S_IDX}, 1')
        a(f's_add_u32 s{S_T0}, s{S_T0}, s{S_T1}')
        a(f's_lshl_b32 s{S_T3}, s{S_T0}, 1')
        a(f's_load_dword s{S_DT}, s[{S_LOGDT}:{S_LOGDT + 1}], s{S_T3}')
        a(f's_add_u32 s{S_T0}, s{S_T0}, s{S_CH}')
        a(f's_lshl_b32 s{S_T0}, s{S_T0}, 8')
        a(f's_lshl_b32 s{S_T1}, s{S_HF}, 7')
        a(f's_add_u32 s{S_T0}, s{S_T0}, s{S_T1}')
        a(f'v_lshlrev_b32 v2, 1, v{V_LANE}')
        a(f'v_add_u32 v2, s{S_T0}, v2')
        for i, ptr in enumerate((S_LOGA, S_AIM, S_CRE, S_CIM)):
            a(f'global_load_ushort v{20 + i}, v2, s[{ptr}:{ptr + 1}]')
        self.token()
        a(f's_lshl_b32 s{S_T2}, s{S_CH}, 4')
        a(f's_lshr_b32 s{S_T1}, s{S_DT}, s{S_T2}')
        a(f's_lshl_b32 s{S_T1}, s{S_T1}, 16')
        L2E = fbits(LOG2E)
        a(f'v_mov_b32 v4, s{S_T1}')
        a(f'v_mul_f32 v4, {L2E}, v4')
        a('v_exp_f32 v4, v4')
        vA, vR = 8, 9
        a(f's_mul_i32 s{S_KGB}, s{S_J}, {KG_SZ}')
        a(f's_add_u32 s{S_KGB}, s{S_KGB}, {L_KG}')
        a(f'v_lshlrev_b32 v{vA}, 2, v{V_LANE}')
        a(f'v_add_u32 v{vA}, s{S_KGB}, v{vA}')
        a('s_waitcnt vmcnt(0)')
        for i in range(4):
            a(f'v_lshlrev_b32 v{20 + i}, 16, v{20 + i}')
        a(f'v_mul_f32 v20, {L2E}, v20')
        a('v_exp_f32 v20, v20')
        a('s_nop 0')
        a('v_cvt_pk_bf16_f32 v5, v4, v20')
        a('v_and_b32 v20, 0xffff0000, v5')
        a('v_lshlrev_b32 v5, 16, v5')
        for i in range(4):
            a(f'v_mul_f32 v{20 + i}, v{20 + i}, v5')
        a(f'v_mul_f32 v20, {fbits(-LOG2E)}, v20')
        a(f'v_mul_f32 v21, {fbits(INV2PI)}, v21')
        a('v_add_f32 v34, v22, v22')
        a('v_add_f32 v35, v23, v23')
        self.cexp(24, 20, 21, 1, 6)
        self.cexp(30, 20, 21, 4, 6)
        self.cexp(32, 20, 21, 128, 6)
        self.cmul(26, 24, 24)
        self.cmul(28, 26, 24)
        self.stamp('kb0')

        def row(r):
            return ((r & 3) + 8 * (r >> 2)) * ROWP

        G, Y, E = [36, 38], [42, 44], 40

        def put(z, reg, base, off, negim):
            a(f'v_cvt_pk_bf16_f32 v{reg}, v{z}, {"-" if negim else ""}v{z + 1}')
            return f'ds_write_b32 v{base}, v{reg} offset:{off}'

        def two_chains(n, xoffs, yoffs):
            for i in range(n):
                x0, x1 = G[i & 1], G[(i + 1) & 1]
                w = [put(x0, 46, vA, xoffs[i], False)]
                self.cmul(x1, x0, 32)
                for k in range(2):
                    y0, y1 = Y[k], Y[k ^ 1]
                    w.append(put(y0, 47 + k, vR, yoffs[2 * i + k], True))
                    self.cmul(y1, y0, 30)
                for ln in w:
                    a(ln)

        a('v_mov_b32 v36, v34')
        a('v_mov_b32 v37, v35')
        a('v_mov_b32 v42, 1.0')
        a('v_mov_b32 v43, 0')
        a(f'v_add_u32 v{vR}, {KG_Y}, v{vA}')
        a(f'v_mov_b32 v10, v{vA}')
        a(f's_mov_b32 s{S_K}, 0')
        a.label('L_kg_chain')
        vA = 10
        two_chains(8, [(r + 4 * hh) * ROWP for r in range(4) for hh in range(2)], [j * ROWP for j in range(16)])
        vA = 8
        a(f'v_add_u32 v10, {8 * ROWP}, v10')
        a(f'v_add_u32 v{vR}, {16 * ROWP}, v{vR}')
        a(f's_add_u32 s{S_K}, s{S_K}, 1')
        a(f's_cmp_lt_u32 s{S_K}, 2')
        a('s_cbranch_scc1 L_kg_chain')
        a(put(G[0], 46, vA, row(12), False))
        for k, wk in enumerate((24, 26, 28)):
            self.cmul(G[0], 34, wk)
            self.cmul(G[1], G[0], 32)
            w = [put(G[0], 46, vA, row(8 + k), False), put(G[1], 47, vA, row(8 + k) + 4 * ROWP, False)]
            if k == 1:
                self.cmul(E, G[1], 32)
            for ln in w:
                a(ln)
        self.cmul(G[1], E, 32)
        w = [put(E, 46, vA, row(11), False), put(G[1], 47, vA, row(11) + 4 * ROWP, False)]
        for ln in w:
            a(ln)
        self.stamp('kg_ch')
        if 'kgnow' not in self.exp:
            a(f'v_mov_b32 v10, {M_C}')
            self.lds_spin(10, 12, 4, off=16 * KG_WAIT, sleep=8)
        XA, YA, D, FR = 2, 3, 48, 64
        a(f'v_and_b32 v4, 31, v{V_LANE}')
        a(f'v_mul_u32_u24 v4, {ROWP}, v4')
        a(f'v_lshrrev_b32 v5, 5, v{V_LANE}')
        a('v_lshl_add_u32 v4, v5, 4, v4')
        a(f'v_add_u32 v{XA}, s{S_KGB}, v4')
        a(f'v_add_u32 v{YA}, {KG_Y}, v{XA}')
        a('s_waitcnt lgkmcnt(0)')

        def rd(s):
            a(f'ds_read_b128 {vr(FR + 8 * s, 4)}, v{XA} offset:{32 * s}')
            a(f'ds_read_b128 {vr(FR + 8 * s + 4, 4)}, v{YA} offset:{32 * s}')
        for s in range(6):
            rd(s)
        for s in range(8):
            a(f's_waitcnt lgkmcnt({10 if s < 3 else 2 * (7 - s)})')
            c = '0' if s == 0 else vr(D, 16)
            a(f'v_mfma_f32_32x32x16_bf16 {vr(D, 16)}, {vr(FR + 8 * s, 4)}, {vr(FR + 8 * s + 4, 4)}, {c}')
            if s + 6 < 8:
                rd(s + 6)
        a(f's_mov_b32 s{S_T0}, s{S_J}')
        a(f's_lshl_b32 s{S_T1}, s{S_T0}, 2')
        a(f's_add_u32 s{S_T1}, s{S_T1}, {M_KT}')
        a(f'v_mov_b32 v6, s{S_T1}')
        a(f'v_mov_b32 v7, s{S_TOK}')
        a('ds_write_b32 v6, v7')
        a(f'v_mov_b32 v10, {M_KT}')
        self.lds_spin(10, 12, 4, sleep=2)
        a(f's_lshl_b32 s{S_T1}, s{S_T0}, 12')
        a(f's_add_u32 s{S_T1}, s{S_T1}, {L_KPART}')
        a(f'v_lshlrev_b32 v11, 4, v{V_LANE}')
        a(f'v_add_u32 v12, s{S_T1}, v11')
        for i in range(4):
            a(f'ds_write_b128 v12, {vr(D + 4 * i, 4)} offset:{1024 * i}')
        a('s_waitcnt lgkmcnt(0)')
        a('ds_write_b32 v6, v7 offset:16')
        a('v_xor_b32 v6, 4, v6')
        a('v_xor_b32 v12, 4096, v12')
        self.lds_spin(6, 14, 1, off=16, sleep=1)
        for i in range(4):
            a(f'ds_read_b128 {vr(FR + 4 * i, 4)}, v12 offset:{1024 * i}')
        a(f's_mul_i32 s{S_KGB}, s{S_CH}, {KSP_SZ}')
        a(f's_add_u32 s{S_KGB}, s{S_KGB}, {L_KSP}')
        a(f'v_and_b32 v4, 31, v{V_LANE}')
        a('v_lshlrev_b32 v4, 3, v4')
        a('v_lshl_add_u32 v4, v5, 8, v4')
        a(f'v_add_u32 v4, s{S_KGB}, v4')
        a('s_waitcnt lgkmcnt(0)')
        for i in range(14):
            a(f'v_add_f32 v{D + i}, v{D + i}, v{FR + i}')
        for i in range(0, 14, 2):
            a(f'v_cvt_pk_bf16_f32 v{FR + 16 + i // 2}, v{D + i}, v{D + i + 1}')
        for r in range(13):
            op = 'ds_write_b16' if r % 2 == 0 else 'ds_write_b16_d16_hi'
            a(f'{op} v4, v{FR + 16 + r // 2} offset:{2 * HI0[r]}')
        self.stamp('kg_mf')
        a(f's_mul_i32 s{S_T3}, s{S_CH}, {R_SZ}')
        a(f's_lshl_b32 s{S_T1}, s{S_HF}, 11')
        a(f's_add_u32 s{S_T3}, s{S_T3}, s{S_T1}')
        a(f's_add_u32 s{S_T3}, s{S_T3}, {L_R}')
        a(f'v_lshlrev_b32 v8, 2, v{V_LANE}')
        a(f'v_add_u32 v8, s{S_T3}, v8')
        a(f's_lshl_b32 s{S_T1}, s{S_HF}, 10')
        a(f's_sub_u32 s{S_T1}, 2047, s{S_T1}')
        a(f'v_lshlrev_b32 v9, 1, v{V_LANE}')
        a(f'v_sub_u32 v9, s{S_T1}, v9')
        a('v_cvt_f32_i32 v9, v9')
        a('s_waitcnt lgkmcnt(0)')
        EB = 20

        def gather(k, qq):
            t = EB + 4 * k
            a(f'v_add_f32 v{t}, {fbits(-128.0 * qq)}, v9')
            a(f'v_add_f32 v{t + 1}, -1.0, v{t}')
            a(f'v_cvt_pk_bf16_f32 v{t}, v{t}, v{t + 1}')
            a(f'v_and_b32 v{t + 1}, 0xffff0000, v{t}')
            a(f'v_lshlrev_b32 v{t}, 16, v{t}')
            a(f'v_cvt_u32_f32 v{t}, v{t}')
            a(f'v_cvt_u32_f32 v{t + 1}, v{t + 1}')
            a(f'v_lshl_add_u32 v{t}, v{t}, 1, s{S_KGB}')
            a(f'v_lshl_add_u32 v{t + 1}, v{t + 1}, 1, s{S_KGB}')
            a(f'ds_read_u16 v{t + 2}, v{t}')
            a(f'ds_read_u16_d16_hi v{t + 3}, v{t + 1}')

        for batch in (range(0, 5), range(5, 9)):
            for k, qq in enumerate(batch):
                gather(k, qq)
            a('s_waitcnt lgkmcnt(0)')
            for k, qq in enumerate(batch):
                t = EB + 4 * k
                a(f'v_or_b32 v{t + 2}, v{t + 2}, v{t + 3}')
                if qq < 8:
                    a(f'ds_write_b32 v8, v{t + 2} offset:{256 * qq}')
                else:
                    a(f's_cmp_eq_u32 s{S_HF}, 0')
                    a(f's_cselect_b32 s{S_T1}, -1, 0')
                    a(f'v_and_b32 v{t + 2}, s{S_T1}, v{t + 2}')
                    a(f's_cselect_b32 s{S_T4}, 1, 0xff')
                    a(f's_mov_b32 s{S_T5}, 0')
                    a(f's_mov_b64 exec, s[{S_T4}:{S_T4 + 1}]')
                    a(f'ds_write_b32 v8, v{t + 2} offset:{256 * qq}')
                    a('s_mov_b64 exec, -1')
        a('s_waitcnt lgkmcnt(0)')
        for k in range(8):
            if k % 4 == 0:
                a(f'v_add_u32 v10, {256 * k}, v8')
            a(f'ds_read2_b32 {vr(EB + 2 * k, 2)}, v10 offset0:{64 * (k % 4)} offset1:{64 * (k % 4) + 1}')
        a('s_waitcnt lgkmcnt(0)')
        for k in range(8):
            a(f'v_alignbit_b32 v{EB + 2 * k}, v{EB + 2 * k + 1}, v{EB + 2 * k}, 16')
            a(f'ds_write_b32 v8, v{EB + 2 * k} offset:{R_O + 256 * k}')
        a(f's_cmp_eq_u32 s{S_HF}, 0')
        a('s_cbranch_scc1 L_gap1_join')
        a('v_mov_b32 v4, 0')
        a('s_mov_b64 exec, 0x7f')
        a(f'ds_write_b32 v8, v4 offset:{R_O + 2048}')
        a('s_mov_b64 exec, -1')
        self.stamp('kg_fin')
        a('s_branch L_gap1_join')

    def side_waves(self):
        a = self.a
        a.label('L_side')
        a(f's_cmp_eq_u32 s{S_WV}, 14')
        a('s_cbranch_scc1 L_ustage')
        self.token()
        a(f's_add_u32 s{S_T0}, s{S_INB}, {IB_L}')
        a(f'v_lshlrev_b32 v2, 4, v{V_LANE}')
        self.lanes(48)
        a(f'buffer_load_dwordx4 v[12:15], v2, {WSR}, s{S_T0} offen sc1')
        self.lanes(64)
        a(f'v_lshlrev_b32 v2, 14, v{V_LANE}')
        a(f's_lshl_b32 s{S_T0}, s{S_XC}, 11')
        a(f's_lshl_b32 s{S_T1}, s{S_IDX}, 2')
        a(f's_add_u32 s{S_T0}, s{S_T0}, s{S_T1}')
        a(f's_add_u32 s{S_T0}, s{S_T0}, {WS_INBOX + IB_X}')
        a(f's_xor_b32 s{S_T1}, s{S_TOK}, s{S_XCC}')
        a(f's_xor_b32 s{S_T1}, s{S_T1}, 0x80')
        a(f'v_mov_b32 v3, s{S_T1}')
        a(f'v_lshlrev_b32 v9, 2, v{V_LANE}')
        a(f's_add_u32 s{S_T2}, s{S_INB}, {IB_X}')
        a(f'v_add_u32 v9, s{S_T2}, v9')
        self.lanes(32)
        a(f'buffer_store_dword v3, v2, {WSR}, s{S_T0} offen sc1')
        self.lanes(64)
        a(f'v_mov_b32 v17, {M_F}')
        self.lds_spin(17, 12, 2, sleep=4)
        self.lanes(32)
        a(f's_mov_b32 s{S_CNT}, 0')
        a.label('L_x_poll')
        a(f'buffer_load_dword v8, v9, {WSR}, 0 offen sc1')
        a(f's_add_u32 s{S_CNT}, s{S_CNT}, 1')
        a('s_waitcnt vmcnt(0)')
        a(f'v_xor_b32 v7, s{S_TOK}, v8')
        a('v_and_b32 v7, -16, v7')
        a('v_cmp_ne_u32 vcc, 0x80, v7')
        a(f's_cmp_gt_u32 s{S_CNT}, {SPIN_MAX}')
        a('s_cbranch_scc1 L_x_ok')
        a('s_cbranch_vccnz L_x_poll')
        a.label('L_x_ok')
        a(f'v_cmp_ne_u32 vcc, s{S_T1}, v8')
        a('s_nop 1')
        a('s_cmp_eq_u64 vcc, 0')
        a(f's_cselect_b32 s{S_MODE}, 1, 0')
        self.lanes(64)
        a(f'v_mov_b32 v6, {M_MODE}')
        a(f'v_mov_b32 v10, s{S_MODE}')
        a(f'v_mov_b32 v11, s{S_TOK}')
        a('ds_write_b64 v6, v[10:11]')
        self.stamp('mode')
        if 'nous' in self.exp or 'nokg' in self.exp:
            a('s_branch L_gap1_join')
        a(f'v_mov_b32 v17, {M_KT}')
        self.lds_spin(17, 12, 4, sleep=8)
        a(f'v_lshlrev_b32 v2, 2, v{V_LANE}')
        a(f's_add_u32 s{S_T0}, s{S_INB}, {IB_U}')
        a(f'v_add_u32 v2, s{S_T0}, v2')
        self.ws_spin(2, 3, 32, 'uf')
        a(f'v_lshlrev_b32 v4, 4, v{V_LANE}')
        a(f's_lshl_b32 s{S_T0}, s{S_XC}, 18')
        a(f's_lshl_b32 s{S_T1}, s{S_IDX}, 13')
        a(f's_add_u32 s{S_T0}, s{S_T0}, s{S_T1}')
        a(f's_add_u32 s{S_T0}, s{S_T0}, {WS_UT}')
        for c in range(2):
            for i in range(4):
                a(f's_mov_b32 m0, {L_UL + c * UL_SZ + 512 + 1024 * i}')
                a(f's_add_u32 s{S_T1}, s{S_T0}, {4096 * c + 1024 * i}')
                a(f'buffer_load_dwordx4 v4, {WSR}, s{S_T1} offen sc1 lds')
        a(f'v_lshlrev_b32 v2, 3, v{V_LANE}')
        a(f'v_add_u32 v2, {L_UL}, v2')
        a('v_mov_b32 v10, 0')
        a('v_mov_b32 v11, 0')
        a('ds_write_b64 v2, v[10:11]')
        a(f'ds_write_b64 v2, v[10:11] offset:{UL_SZ}')
        a('s_waitcnt vmcnt(0)')
        self.stamp('ul')
        a('s_branch L_gap1_join')

        a.label('L_ustage')
        a(f'v_lshrrev_b32 v3, 3, v{V_LANE}')
        a('v_lshlrev_b32 v3, 10, v3')
        a(f'v_and_b32 v2, 7, v{V_LANE}')
        a('v_lshl_add_u32 v3, v2, 4, v3')
        a(f's_lshl_b32 s{S_T0}, s{S_IDX}, 16')
        a(f's_lshl_b32 s{S_T1}, s{S_XC}, 7')
        a(f's_add_u32 s{S_T2}, s{S_T0}, s{S_T1}')
        for i in range(8):
            a(f's_mov_b32 m0, {L_USTAGE + 1024 * i}')
            a(f's_add_u32 s{S_T1}, s{S_T2}, {8192 * i}')
            a(f'buffer_load_dwordx4 v3, s[{R_U}:{R_U + 3}], s{S_T1} offen lds')
        self.token()
        B = 20
        a(f'v_bfe_u32 v2, v{V_LANE}, 2, 2')
        a('v_lshlrev_b32 v2, 7, v2')
        a(f'v_lshrrev_b32 v3, 4, v{V_LANE}')
        a('v_lshl_add_u32 v2, v3, 5, v2')
        a(f'v_and_b32 v3, 3, v{V_LANE}')
        a('v_lshl_add_u32 v2, v3, 3, v2')
        a(f'v_add_u32 v2, {L_USTAGE}, v2')
        a(f'v_lshlrev_b32 v6, 7, v{V_LANE}')
        a(f'v_and_b32 v7, 7, v{V_LANE}')
        a('v_lshl_add_u32 v6, v7, 4, v6')
        a(f'v_add_u32 v6, {L_USTAGE}, v6')
        a(f'v_lshlrev_b32 v4, 4, v{V_LANE}')
        a(f'v_add_u32 v4, {L_USTAGE}, v4')
        a('s_waitcnt vmcnt(0)')
        for o in range(8):
            a(f'ds_read_b64_tr_b16 {vr(B + 4 * o, 2)}, v2 offset:{o * 1024}')
            a(f'ds_read_b64_tr_b16 {vr(B + 4 * o + 2, 2)}, v2 offset:{o * 1024 + 512}')
            if o == 5:
                a('s_waitcnt lgkmcnt(6)')
        a('s_waitcnt lgkmcnt(0)')
        for o in range(8):
            a(f'v_xor_b32 v7, {16 * o}, v6')
            a(f'ds_write_b128 v7, {vr(B + 4 * o, 4)}')
        a('s_waitcnt lgkmcnt(0)')
        for k in range(8):
            a(f'ds_read_b128 {vr(B + 4 * k, 4)}, v4 offset:{1024 * k}')
        a(f'v_mov_b32 v8, {M_U}')
        a(f'v_mov_b32 v5, s{S_TOK}')
        a(f'v_lshrrev_b32 v2, 3, v{V_LANE}')
        a(f'v_and_b32 v3, 7, v{V_LANE}')
        a('v_xor_b32 v3, v3, v2')
        a('v_lshlrev_b32 v2, 12, v2')
        a('v_lshl_add_u32 v2, v3, 4, v2')
        a(f's_lshl_b32 s{S_T0}, s{S_XC}, 18')
        a(f's_lshl_b32 s{S_T1}, s{S_IDX}, 7')
        a(f's_add_u32 s{S_T0}, s{S_T0}, s{S_T1}')
        a(f's_add_u32 s{S_T0}, s{S_T0}, {WS_UT}')
        a('s_waitcnt lgkmcnt(0)')
        a('ds_write_b32 v8, v5')
        for k in range(8):
            a(f'buffer_store_dwordx4 {vr(B + 4 * k, 4)}, v2, {WSR}, s{S_T0} offen sc1')
            a(f's_add_u32 s{S_T0}, s{S_T0}, {8 * 4096}')
        a(f's_lshl_b32 s{S_T0}, s{S_XC}, 11')
        a(f's_lshl_b32 s{S_T1}, s{S_IDX}, 2')
        a(f's_add_u32 s{S_T0}, s{S_T0}, s{S_T1}')
        a(f's_add_u32 s{S_T0}, s{S_T0}, {WS_INBOX + IB_U}')
        a(f'v_lshlrev_b32 v2, 14, v{V_LANE}')
        a('s_waitcnt vmcnt(0)')
        self.lanes(32)
        a(f'buffer_store_dword v5, v2, {WSR}, s{S_T0} offen sc1')
        self.lanes(64)
        self.stamp('uf')

    def finish(self):
        a = self.a
        a.label('L_finish')
        if self.prof:
            a('s_waitcnt vmcnt(0)')
            self.stamp('end')
            a('s_waitcnt lgkmcnt(0)')
            a(f's_lshl_b32 s{S_T0}, s{S_WV}, 5')
            a(f's_lshl_b32 s{S_T1}, s2, 9')
            a(f's_add_u32 s{S_T0}, s{S_T0}, s{S_T1}')
            a(f's_add_u32 s{S_T0}, s{S_T0}, {WS_PROF}')
            for i in range(7):
                a(f'v_mov_b32 v{2 + i}, s{S_PROF + 2 * i}')
            a(f'v_mov_b32 v9, s{S_XCC}')
            a('v_mov_b32 v10, 0')
            a('s_mov_b64 exec, 1')
            a(f'buffer_store_dwordx4 v[2:5], v10, {WSR}, s{S_T0} offen')
            a(f'buffer_store_dwordx4 v[6:9], v10, {WSR}, s{S_T0} offen offset:16')
            a('s_mov_b64 exec, -1')
        a('s_cmp_lg_u32 s2, 0')
        a('s_cbranch_scc1 L_exit')
        a(f's_cmp_lg_u32 s{S_WV}, 0')
        a('s_cbranch_scc1 L_exit')
        a(f'v_mov_b32 v2, s{S_TOK}')
        a(f'v_mov_b32 v3, {WS_G}')
        a('s_mov_b64 exec, 1')
        a(f'buffer_store_dword v2, v3, {WSR}, 0 offen sc1')
        a.label('L_exit')
        a('s_endpgm')

    def build(self):
        import phases3
        a = self.a
        self.prologue()
        self.loader_waves()
        a.label('L_notloader')
        a('s_waitcnt lgkmcnt(0)')
        self.common_setup()
        a(f's_cmp_ge_u32 s{S_WV}, 14')
        a('s_cbranch_scc1 L_side')
        a(f's_cmp_ge_u32 s{S_WV}, 10')
        a('s_cbranch_scc1 L_kgen')
        self.gemm_waves()
        self.kgen_waves()
        self.side_waves()
        a.label('L_gap1_join')
        a('s_setprio 0')
        a('s_waitcnt lgkmcnt(0)')
        a('s_barrier')
        phases3.rest(self)
        self.finish()
        a.label('L_code_end')
        a('s_endpgm')
        return self.wrap()

    def wrap(self):
        head = open(os.path.join(os.path.dirname(os.path.abspath(__file__)), 'header.txt')).read()
        body = self.a.text()
        txt = head + f'; @launch grid=(256,1,1) block=(1024,1,1) lds={LDS_BYTES}\n'
        txt += f'.amdgcn_target "amdgcn-amd-amdhsa--gfx950"\n.text\n.globl {KERNEL}\n.p2align 8\n.type {KERNEL},@function\n{KERNEL}:\n'
        txt += body
        txt += f'''.section .rodata,"a"
.p2align 6
.amdhsa_kernel {KERNEL}
  .amdhsa_next_free_vgpr 128
  .amdhsa_next_free_sgpr 102
  .amdhsa_accum_offset 128
  .amdhsa_group_segment_fixed_size 0
  .amdhsa_kernarg_size 104
  .amdhsa_user_sgpr_count 2
  .amdhsa_user_sgpr_kernarg_segment_ptr 1
  .amdhsa_system_sgpr_workgroup_id_x 1
  .amdhsa_float_denorm_mode_32 3
.end_amdhsa_kernel
'''
        return txt, body


def main():
    import argparse
    ap = argparse.ArgumentParser()
    ap.add_argument('-o', default=f'cdna_kernels/{NAME}.s')
    ap.add_argument('--stop', default=None)
    ap.add_argument('--exp', default='')
    ap.add_argument('--prof', default='')
    ap.add_argument('--points', default='entry,gemm,attn0,attn1,conv,end')
    args = ap.parse_args()
    g = Gen(stop=args.stop, prof=args.prof, points=args.points, exp=args.exp)
    txt, body = g.build()
    probs = check_hazards(body)
    for p in probs:
        print('HAZARD', p)
    open(args.o, 'w').write(txt)
    n = sum(1 for l in body.split('\n') if l.startswith('  ') and not l.strip().startswith(';'))
    print(f'wrote {args.o}: {n} instructions, {len(probs)} hazard findings')
    return 1 if probs else 0


if __name__ == '__main__':
    sys.exit(main())
```

```python
from asmlib import vr
from gen2 import *

S_DSKV = 85


def toff(v):
    return (v >> 1) * 4096 + (v & 1) * 1024


def attn_join(g):
    a = g.a
    a(f'v_lshlrev_b32 v{A_L16}, 4, v{V_LANE}')
    a(f's_and_b32 s{S_T0}, s{S_WV}, 7')
    a(f's_lshl_b32 s{S_T0}, s{S_T0}, 10')
    a(f's_add_u32 s{S_T0}, s{S_T0}, {L_QS}')
    a(f'v_add_u32 v2, s{S_T0}, v{A_L16}')
    a(f'ds_read_b128 {vr(A_Q, 4)}, v2')
    a(f'v_mov_b32 v7, {M_MODE}')
    a('ds_read_b32 v7, v7')
    a('s_waitcnt lgkmcnt(0)')
    a(f'v_readfirstlane_b32 s{S_MODE}, v7')
    a('s_barrier')
    g.stamp('attn0')
    a(f's_cmp_ge_u32 s{S_WV}, 8')
    a('s_cbranch_scc1 L_conv')


def attn_setup(g, start):
    a = g.a
    a(f'v_lshlrev_b32 v{A_L16}, 4, v{V_LANE}')
    a(f'v_lshlrev_b32 v{A_PA}, 2, v{V_LANE}')
    a(f's_add_u32 s{S_T0}, s{S_INB}, {IB_KV}')
    a(f'v_add_u32 v{A_PA}, s{S_T0}, v{A_PA}')
    a(f'v_add_u32 v{A_KA}, {start}, v{A_L16}')
    a(f'ds_read_b128 {vr(A_K[0], 4)}, v{A_KA}')
    a(f's_lshl_b32 s{S_T0}, s{S_XC}, 3')
    a(f's_lshl_b64 s[{S_IGN}:{S_IGN + 1}], 0xff, s{S_T0}')
    a(f'v_lshrrev_b32 v2, 5, v{V_LANE}')
    a('v_lshlrev_b32 v2, 8, v2')
    a(f'v_and_b32 v3, 15, v{V_LANE}')
    a('v_lshl_add_u32 v2, v3, 4, v2')
    a(f'v_add_u32 v{A_VA}, {L_V + start}, v2')
    a(f'v_and_b32 v2, 27, v{V_LANE}')
    a('v_cmp_eq_u32 vcc, 16, v2')
    a('v_mov_b32 v3, 0x3f803f80')
    a('s_nop 0')
    a('v_cndmask_b32 v2, 0, v3, vcc')
    for i in range(16):
        a(f'v_mov_b32 v{A_V[0] + i}, v2')
    a(f's_mov_b64 exec, s[{S_MASK}:{S_MASK + 1}]')
    a(f'ds_read_b128 {vr(A_V[0], 4)}, v{A_VA}')
    a(f'ds_read_b128 {vr(A_V[0] + 4, 4)}, v{A_VA} offset:512')
    a('s_mov_b64 exec, -1')
    for i in range(16):
        a(f'v_mov_b32 v{A_O + i}, 0')
    for i in range(8):
        a(f'v_mov_b32 v{A_P + i}, 0')
    a('s_waitcnt lgkmcnt(2)')
    a(f'v_mfma_f32_32x32x16_bf16 {vr(A_S[0], 16)}, {vr(A_K[0], 4)}, {vr(A_Q, 4)}, 0')
    a('s_nop 7')
    a('s_nop 3')


def attn_tile(g, u, top=None, mid=None, nxt_off=None, prio=None):
    a = g.a
    if nxt_off is None:
        nxt_off = toff(u + 1)
    cur = u & 1
    nxt = cur ^ 1
    S, P = A_S[cur], A_P

    def ex(i):
        a(f'v_exp_f32 v{S + i}, v{S + i}')

    def cv(k):
        a(f'v_cvt_pk_bf16_f32 v{P + k}, v{S + 2 * k}, v{S + 2 * k + 1}')

    if top:
        top()
    if prio is not None and 'noprog' not in g.exp:
        a(f's_setprio {prio}')
    a(f'ds_read_b128 {vr(A_K[nxt], 4)}, v{A_KA} offset:{nxt_off}')
    ex(0); ex(1); ex(2); cv(0); ex(3)
    a(f'v_mfma_f32_32x32x16_bf16 {vr(A_O, 16)}, {vr(A_V[nxt] + 4, 4)}, {vr(P + 4, 4)}, {vr(A_O, 16)}')
    a(f's_mov_b64 exec, s[{S_MASK}:{S_MASK + 1}]')
    a(f'ds_read_b128 {vr(A_V[nxt], 4)}, v{A_VA} offset:{nxt_off}')
    a(f'ds_read_b128 {vr(A_V[nxt] + 4, 4)}, v{A_VA} offset:{nxt_off + 512}')
    a('s_mov_b64 exec, -1')
    ex(4); cv(1); ex(5); ex(6); cv(2)
    a('s_waitcnt lgkmcnt(2)')
    a(f'v_mfma_f32_32x32x16_bf16 {vr(A_S[nxt], 16)}, {vr(A_K[nxt], 4)}, {vr(A_Q, 4)}, 0')
    ex(7); ex(8); cv(3); ex(9); ex(10)
    a(f'v_mfma_f32_32x32x16_bf16 {vr(A_O, 16)}, {vr(A_V[cur], 4)}, {vr(P, 4)}, {vr(A_O, 16)}')
    if mid:
        mid()
    cv(4); ex(11); ex(12); cv(5); ex(13); ex(14); ex(15); cv(6); cv(7)


def dma_waves_only(g, body, name):
    a = g.a
    a(f's_and_b32 s{S_T0}, s{S_WV}, 12')
    a(f's_cmp_eq_u32 s{S_T0}, 4')
    a(f's_cbranch_scc0 {name}')
    body()
    a.label(name)


def attn_local(g):
    a = g.a
    a(f's_cmp_lt_u32 s{S_WV}, 4')
    a('s_cbranch_scc0 L_at_norf')
    a(f'v_and_b32 v2, 1, v{V_LANE}')
    a('v_lshlrev_b32 v2, 3, v2')
    a(f'v_lshrrev_b32 v3, 1, v{V_LANE}')
    a('v_add_u32 v2, v2, v3')
    a('v_lshlrev_b32 v2, 11, v2')
    a(f'v_mov_b32 v3, s{S_TOK}')
    a('s_setprio 3')
    a('s_waitcnt vmcnt(0)')
    g.stamp('st_rem')
    a('s_mov_b64 exec, 0xffff')
    a(f'buffer_store_dword v3, v2, {WSR}, s{S_A} offen sc1')
    a('s_mov_b64 exec, -1')
    a('s_setprio 0')
    a.label('L_at_norf')
    attn_setup(g, 0)

    def blocks(*js):
        def f():
            for j in js:
                g.kv_dma(j, WS_KR, WS_VR)
        return f

    def first():
        g.ws_spin(A_PA, A_PV, 64, 'rem', preissued=True, ignore=S_IGN)
        g.stamp('rem_ok')
        blocks(2, 3)()

    def r1():
        g.stamp('r1a')
        a('s_waitcnt vmcnt(0)')
        a('s_barrier')
        g.stamp('r1b')

    mids = {1: lambda: dma_waves_only(g, first, 'L_at_d0'),
            2: lambda: dma_waves_only(g, blocks(4, 5), 'L_at_d1'),
            3: lambda: dma_waves_only(g, blocks(6, 7), 'L_at_d2')}
    for u in range(8):
        attn_tile(g, u, r1 if u == 7 else None, mids.get(u), nxt_off=(u + 1) * 1024)
    a(f'v_add_u32 v{A_KA}, 8192, v{A_KA}')
    a(f'v_add_u32 v{A_VA}, 8192, v{A_VA}')


def attn_shared(g):
    a = g.a
    a.label('L_at_shared')

    def blocks(*js):
        def f():
            for j in js:
                g.kv_dma(j, WS_KR, WS_VR)
        return f

    def yflags():
        a(f's_cmp_ge_u32 s{S_WV}, 8')
        a('s_cbranch_scc0 L_at_noyf')
        a(f'v_lshlrev_b32 v2, 14, v{V_LANE}')
        a(f'v_mov_b32 v3, s{S_TOK}')
        a('s_waitcnt vmcnt(0)')
        g.lanes(8)
        g.store_mode([f'buffer_store_dword v3, v2, {WSR}, s{S_A} offen {{M}}'])
        g.lanes(64)
        a.label('L_at_noyf')

    mids = {0: lambda: (dma_waves_only(g, blocks(8, 9), 'L_at_d3'), yflags()),
            1: lambda: dma_waves_only(g, blocks(10, 11), 'L_at_d4'),
            2: lambda: dma_waves_only(g, blocks(12, 13), 'L_at_d5'),
            3: lambda: dma_waves_only(g, blocks(14, 15), 'L_at_d6')}
    for v in range(4):
        attn_tile(g, v, None, mids[v], prio=3 if v == 0 else None)
    a(f'v_add_u32 v{A_KA}, 8192, v{A_KA}')
    a(f'v_add_u32 v{A_VA}, 8192, v{A_VA}')
    a(f's_mov_b32 s{S_J}, 1')
    a('.p2align 6')
    a.label('L_at_loop')

    def r2():
        a(f's_cmp_eq_u32 s{S_J}, 1')
        a('s_cbranch_scc1 L_at_r2')
        a.label('L_at_r2back')
    for u in range(8):
        attn_tile(g, u, r2 if u == 7 else None, prio=(3 - u // 2) if u % 2 == 0 else None)
    a(f'v_add_u32 v{A_KA}, 16384, v{A_KA}')
    a(f'v_add_u32 v{A_VA}, 16384, v{A_VA}')
    a(f's_add_u32 s{S_J}, s{S_J}, 1')
    a(f's_cmp_eq_u32 s{S_J}, 2')
    a('s_cbranch_scc1 L_at_hook')
    a('s_waitcnt vmcnt(0)')
    a('s_barrier')
    wo_setup(g)

    def wo_piece(u):
        def f():
            if u >= 4:
                return
            lb = f'L_at_nowo{u}'
            a(f's_lshr_b32 s{S_T3}, s{S_WV}, 2')
            a(f's_cmp_eq_u32 s{S_T3}, {u}')
            a(f's_cbranch_scc0 {lb}')
            for i in range(4):
                a(f's_add_u32 m0, s{S_B}, {1024 * i}')
                a(f's_add_u32 s{S_T1}, s{S_C}, {8192 * i}')
                a(f'buffer_load_dwordx4 v10, s[{R_WO}:{R_WO + 3}], s{S_T1} offen lds')
            a.label(lb)
        return f
    for u in range(8):
        attn_tile(g, u, None, (lambda u=u: (wo_piece(u)(), ystore(g) if u == 1 else None)), prio=(3 - u // 2) if u % 2 == 0 else None)
    a('s_nop 1')
    a(f'v_mfma_f32_32x32x16_bf16 {vr(A_O, 16)}, {vr(A_V[1] + 4, 4)}, {vr(A_P + 4, 4)}, {vr(A_O, 16)}')
    a('s_setprio 0')
    a('s_waitcnt lgkmcnt(0)')


def wo_setup(g):
    a = g.a
    a(f'v_lshrrev_b32 v10, 2, v{V_LANE}')
    a('v_and_b32 v10, 7, v10')
    a('v_lshlrev_b32 v10, 10, v10')
    a(f'v_lshrrev_b32 v3, 5, v{V_LANE}')
    a('v_lshl_add_u32 v10, v3, 6, v10')
    a(f'v_and_b32 v3, 3, v{V_LANE}')
    a('v_lshl_add_u32 v10, v3, 4, v10')
    a(f's_lshl_b32 s{S_C}, s{S_WV}, 15')
    a(f's_lshr_b32 s{S_T1}, s{S_IDX}, 2')
    a(f's_lshl_b32 s{S_T1}, s{S_T1}, 7')
    a(f's_add_u32 s{S_C}, s{S_C}, s{S_T1}')
    a(f's_lshl_b32 s{S_B}, s{S_WV}, 12')
    a(f's_cmp_ge_u32 s{S_WV}, 8')
    a(f's_cselect_b32 s{S_T3}, 32768, 0')
    a(f's_add_u32 s{S_B}, s{S_B}, s{S_T3}')


def ystore(g):
    a = g.a
    Y0 = 96
    a(f's_cmp_lt_u32 s{S_WV}, 8')
    a('s_cbranch_scc1 L_at_noys')
    a(f's_and_b32 s{S_T2}, s{S_WV}, 7')
    a(f'v_and_b32 v3, 7, v{V_LANE}')
    a('v_mul_u32_u24 v2, 2080, v3')
    a(f'v_bfe_u32 v11, v{V_LANE}, 5, 1')
    a('v_lshl_add_u32 v2, v11, 6, v2')
    a(f'v_bfe_u32 v11, v{V_LANE}, 3, 2')
    a('v_lshl_add_u32 v2, v11, 1, v2')
    a(f's_bfe_u32 s{S_T0}, s{S_IDX}, 0x10002')
    a(f's_lshl_b32 s{S_T0}, s{S_T0}, 3')
    a(f's_lshr_b32 s{S_T1}, s{S_T2}, 1')
    a(f's_lshl_b32 s{S_T1}, s{S_T1}, 4')
    a(f's_add_u32 s{S_T0}, s{S_T0}, s{S_T1}')
    a(f's_and_b32 s{S_T1}, s{S_T2}, 1')
    a(f's_lshl_b32 s{S_T1}, s{S_T1}, 7')
    a(f's_add_u32 s{S_T0}, s{S_T0}, s{S_T1}')
    a(f's_add_u32 s{S_T0}, s{S_T0}, {L_YS}')
    a(f'v_add_u32 v2, s{S_T0}, v2')
    for e in range(8):
        op = 'ds_read_u16' if e % 2 == 0 else 'ds_read_u16_d16_hi'
        a(f'{op} v{Y0 + 4 + e}, v2 offset:{(e >> 2) * 1040 + (e & 3) * 256}')
    a(f'v_lshrrev_b32 v2, 3, v{V_LANE}')
    a(f's_lshl_b32 s{S_T1}, s{S_T2}, 3')
    a(f'v_add_u32 v2, s{S_T1}, v2')
    a('v_lshlrev_b32 v2, 11, v2')
    a('v_lshl_add_u32 v2, v3, 4, v2')
    a(f's_lshl_b32 s{S_T0}, s{S_IDX}, 17')
    a(f's_lshl_b32 s{S_T1}, s{S_XC}, 7')
    a(f's_add_u32 s{S_T0}, s{S_T0}, s{S_T1}')
    a(f's_add_u32 s{S_T0}, s{S_T0}, 1024')
    a('s_waitcnt lgkmcnt(0)')
    for i in range(4):
        a(f'v_or_b32 v{Y0 + i}, v{Y0 + 4 + 2 * i}, v{Y0 + 5 + 2 * i}')
    a(f'buffer_store_dwordx4 {vr(Y0, 4)}, v2, s[{R_OUT}:{R_OUT + 3}], s{S_T0} offen {g.outmod}')
    a.label('L_at_noys')


def attn_hooks(g):
    a = g.a
    a.label('L_at_r2')
    g.stamp('r2a')
    a('s_waitcnt vmcnt(0)')
    a('s_barrier')
    g.stamp('r2b')
    a(f's_cmp_lt_u32 s{S_WV}, 8')
    a('s_cbranch_scc1 L_at_r2back')
    a(f'v_lshlrev_b32 v{A_PA}, 2, v{V_LANE}')
    a(f's_add_u32 s{S_T0}, s{S_INB}, {IB_Y}')
    a(f'v_add_u32 v{A_PA}, s{S_T0}, v{A_PA}')
    a(f'buffer_load_dword v{A_PV}, v{A_PA}, {WSR}, 0 offen sc1')
    a('s_branch L_at_r2back')
    a.label('L_at_hook')
    if 'notouch' not in g.exp:
        a(f's_cmp_eq_u32 s{S_WV}, 0')
        a('s_cbranch_scc0 L_at_noot')
        a(f's_cmp_eq_u32 s{S_MODE}, 1')
        a('s_cbranch_scc0 L_at_loop')
        a(f'v_lshrrev_b32 v2, 3, v{V_LANE}')
        a('v_lshlrev_b32 v2, 15, v2')
        a(f'v_and_b32 v3, 7, v{V_LANE}')
        a('v_lshl_add_u32 v2, v3, 7, v2')
        a(f's_lshl_b32 s{S_T0}, s{S_XC}, 18')
        a(f's_lshl_b32 s{S_T1}, s{S_H}, 10')
        a(f's_add_u32 s{S_T0}, s{S_T0}, s{S_T1}')
        a(f's_add_u32 s{S_T0}, s{S_T0}, {WS_OF}')
        a(f'buffer_load_dword v10, v2, {WSR}, s{S_T0} offen')
        a('s_branch L_at_loop')
        a.label('L_at_noot')
    a(f's_cmp_lt_u32 s{S_WV}, 8')
    a('s_cbranch_scc1 L_at_loop')
    g.ws_spin(A_PA, A_PV, 64, 'yf', preissued=True)
    a(f'v_lshrrev_b32 v2, 4, v{V_LANE}')
    a('v_lshlrev_b32 v2, 12, v2')
    a(f'v_bfe_u32 v3, v{V_LANE}, 2, 2')
    a('v_lshl_add_u32 v2, v3, 8, v2')
    a(f'v_and_b32 v3, 3, v{V_LANE}')
    a('v_lshl_add_u32 v2, v3, 4, v2')
    a(f's_lshl_b32 s{S_T0}, s{S_XC}, 18')
    a(f's_lshr_b32 s{S_T1}, s{S_IDX}, 3')
    a(f's_lshl_b32 s{S_T1}, s{S_T1}, 10')
    a(f's_add_u32 s{S_T0}, s{S_T0}, s{S_T1}')
    a(f's_and_b32 s{S_T1}, s{S_IDX}, 3')
    a(f's_lshl_b32 s{S_T1}, s{S_T1}, 6')
    a(f's_add_u32 s{S_T0}, s{S_T0}, s{S_T1}')
    a(f's_and_b32 s{S_T2}, s{S_WV}, 7')
    a(f's_lshl_b32 s{S_T1}, s{S_T2}, 15')
    a(f's_add_u32 s{S_T0}, s{S_T0}, s{S_T1}')
    a(f's_add_u32 s{S_T0}, s{S_T0}, {WS_YT}')
    a(f's_mul_i32 s{S_T3}, s{S_T2}, {2 * 1040}')
    for i in range(2):
        a(f's_add_u32 m0, s{S_T3}, {L_YS + i * 1040}')
        a(f's_add_u32 s{S_T1}, s{S_T0}, {i * 16384}')
        a(f'buffer_load_dwordx4 v2, {WSR}, s{S_T1} offen sc1 lds')
    a('s_branch L_at_loop')


def attn_finish(g):
    a = g.a
    a(f's_and_b32 s{S_T0}, s{S_WV}, 3')
    a(f's_mul_i32 s{S_T0}, s{S_T0}, {PART_SZ}')
    a(f's_bfe_u32 s{S_T1}, s{S_WV}, 0x10002')
    a(f's_lshl_b32 s{S_T1}, s{S_T1}, 16')
    a(f's_add_u32 s{S_T0}, s{S_T0}, s{S_T1}')
    a(f's_add_u32 s{S_T0}, s{S_T0}, {L_HALF[0]}')
    a(f'v_add_u32 v2, s{S_T0}, v{A_L16}')
    a(f'v_lshlrev_b32 v3, 2, v{V_LANE}')
    a(f'v_add_u32 v3, s{S_T0}, v3')
    a(f's_cmp_lt_u32 s{S_WV}, 8')
    a('s_cbranch_scc1 L_at_recv')
    a('s_nop 1')
    a(f'ds_write_b128 v2, {vr(A_O, 4)}')
    a(f'ds_write_b128 v2, {vr(A_O + 4, 4)} offset:1024')
    a(f'ds_write_b32 v3, v{A_O + 8} offset:2048')
    a('s_waitcnt vmcnt(0) lgkmcnt(0)')
    a('s_barrier')
    g.stamp('attn1')
    a('s_branch L_e1')
    a.label('L_at_recv')
    a('s_waitcnt vmcnt(0)')
    a('s_barrier')
    g.stamp('attn1')
    a(f'ds_read_b128 {vr(A_S[0], 4)}, v2')
    a(f'ds_read_b128 {vr(A_S[0] + 4, 4)}, v2 offset:1024')
    a(f'ds_read_b32 v{A_S[0] + 8}, v3 offset:2048')
    a('s_waitcnt lgkmcnt(0)')
    for i in range(9):
        a(f'v_add_f32 v{A_O + i}, v{A_O + i}, v{A_S[0] + i}')
    a(f's_mov_b32 s{S_J}, 0')
    a.label('L_at_norm')
    a(f'v_rcp_f32 v2, v{A_O + 8}')
    a(f's_mov_b32 s{S_T6}, {fbits(2.0 ** -40)}')
    a(f's_mov_b32 s{S_T7}, {fbits(2.0 ** 100)}')
    for i in range(8):
        a(f'v_mul_f32 v{A_P + i}, v{A_O + i}, v2')
    a(f'v_add_f32 v3, |v{A_P}|, |v{A_P + 1}|')
    for i in range(2, 8):
        a(f'v_add_f32 v3, v3, |v{A_P + i}|')
    a(f'v_cmp_nle_f32 vcc, s{S_T6}, v{A_O + 8}')
    a(f'v_cmp_nge_f32 s[{S_T0}:{S_T0 + 1}], s{S_T7}, v{A_O + 8}')
    a(f'v_cmp_nge_f32 s[{S_T2}:{S_T2 + 1}], s{S_T7}, v3')
    a('s_nop 1')
    a(f's_or_b64 vcc, vcc, s[{S_T0}:{S_T0 + 1}]')
    a(f's_or_b64 vcc, vcc, s[{S_T2}:{S_T2 + 1}]')
    a(f's_cmp_eq_u32 s{S_J}, 1')
    a('s_cbranch_scc1 L_at_normok')
    a('s_cbranch_vccnz L_at_fallback')
    a.label('L_at_normok')
    for k in range(4):
        a(f'v_cvt_pk_bf16_f32 v{A_P + k}, v{A_P + 2 * k}, v{A_P + 2 * k + 1}')
    a(f's_lshl_b32 s{S_T0}, s{S_XC}, 3')
    a(f's_add_u32 s{S_T0}, s{S_T0}, s{S_WV}')
    a(f's_lshl_b32 s{S_T0}, s{S_T0}, 5')
    a(f's_add_u32 s{S_T0}, s{S_T0}, s{S_H}')
    a(f's_lshl_b32 s{S_T0}, s{S_T0}, 10')
    a(f's_add_u32 s{S_T0}, s{S_T0}, {WS_OF}')
    g.store_mode([f'buffer_store_dwordx4 {vr(A_P, 4)}, v{A_L16}, {WSR}, s{S_T0} offen {{M}}'])
    g.stamp('ost')
    a(f's_lshr_b32 s{S_T0}, s{S_WV}, 1')
    a(f's_lshl_b32 s{S_T0}, s{S_T0}, 14')
    a(f's_lshl_b32 s{S_T1}, s{S_XC}, 11')
    a(f's_add_u32 s{S_T0}, s{S_T0}, s{S_T1}')
    a(f's_lshl_b32 s{S_T1}, s{S_H}, 3')
    a(f's_add_u32 s{S_T0}, s{S_T0}, s{S_T1}')
    a(f's_and_b32 s{S_T1}, s{S_WV}, 1')
    a(f's_lshl_b32 s{S_T1}, s{S_T1}, 2')
    a(f's_add_u32 s{S_T0}, s{S_T0}, s{S_T1}')
    a(f's_add_u32 s{S_T0}, s{S_T0}, {WS_INBOX + IB_O}')
    a(f'v_lshlrev_b32 v6, 16, v{V_LANE}')
    a(f'v_mov_b32 v7, s{S_TOK}')
    a('s_waitcnt vmcnt(0)')
    g.lanes(8)
    g.store_mode([f'buffer_store_dword v7, v6, {WSR}, s{S_T0} offen {{M}}'])
    g.lanes(64)
    g.stamp('oflag')
    a(f's_cmp_eq_u32 s{S_WV}, 0')
    a('s_cbranch_scc0 L_e1')
    a(f'v_lshlrev_b32 v2, 2, v{V_LANE}')
    a(f's_add_u32 s{S_T0}, s{S_INB}, {IB_O}')
    a(f'v_add_u32 v2, s{S_T0}, v2')
    g.ws_spin(2, 3, 64, 'of')
    g.stamp('of_ok')
    a('s_branch L_e1')


def attn_fallback(g):
    a = g.a
    S, C = A_S[0], A_S[1]

    def src():
        a(f's_lshr_b32 s{S_T0}, s{S_K}, 2')
        a(f's_lshl_b32 s{S_T1}, s{S_XC}, 1')
        a(f's_add_u32 s{S_T1}, s{S_T1}, s{S_T0}')
        a(f's_and_b32 s{S_T1}, s{S_T1}, 15')
        a(f's_lshl_b32 s{S_T1}, s{S_T1}, 12')
        a(f's_and_b32 s{S_T2}, s{S_K}, 3')
        a(f's_lshl_b32 s{S_T2}, s{S_T2}, 10')
        a(f's_add_u32 s{S_T1}, s{S_T1}, s{S_T2}')
        a(f's_lshl_b32 s{S_T2}, s{S_H}, 16')
        a(f's_add_u32 s{S_T1}, s{S_T1}, s{S_T2}')
        a(f's_cmp_lt_u32 s{S_T0}, 2')
        a(f's_cselect_b32 s{S_T2}, {WS_KL - WS_KR}, 0')
        a(f's_add_u32 s{S_T1}, s{S_T1}, s{S_T2}')
        a(f's_add_u32 s{S_T3}, s{S_T1}, {WS_VR}')
        a(f's_add_u32 s{S_T1}, s{S_T1}, {WS_KR}')

    assert WS_KL - WS_KR == WS_VL - WS_VR
    a.label('L_at_fallback')
    a(f'v_mov_b32 v2, {fbits(-3.0e38)}')
    a(f's_mov_b32 s{S_K}, 0')
    a.label('L_fb_max')
    src()
    a(f'buffer_load_dwordx4 {vr(A_K[0], 4)}, v{A_L16}, {WSR}, s{S_T1} offen sc1')
    a('s_waitcnt vmcnt(0)')
    a(f'v_mfma_f32_32x32x16_bf16 {vr(S, 16)}, {vr(A_K[0], 4)}, {vr(A_Q, 4)}, 0')
    a('s_nop 7')
    a('s_nop 3')
    for i in range(0, 16, 2):
        a(f'v_max3_f32 v2, v2, v{S + i}, v{S + i + 1}')
    a(f's_add_u32 s{S_K}, s{S_K}, 1')
    a(f's_cmp_lt_u32 s{S_K}, 64')
    a('s_cbranch_scc1 L_fb_max')
    a('v_mov_b32 v3, v2')
    a('s_nop 1')
    a('v_permlane32_swap_b32 v2, v3')
    a('s_nop 1')
    a('v_max_f32 v2, v2, v3')
    for i in range(16):
        a(f'v_sub_f32 v{C + i}, 0, v2')
    for i in range(16):
        a(f'v_mov_b32 v{A_O + i}, 0')
    a(f'v_lshrrev_b32 v2, 5, v{V_LANE}')
    a('v_lshlrev_b32 v2, 8, v2')
    a(f'v_and_b32 v3, 15, v{V_LANE}')
    a(f'v_lshl_add_u32 v{A_VA}, v3, 4, v2')
    a(f's_mov_b32 s{S_K}, 0')
    a.label('L_fb_sum')
    src()
    a(f'buffer_load_dwordx4 {vr(A_K[0], 4)}, v{A_L16}, {WSR}, s{S_T1} offen sc1')
    a(f's_mov_b64 exec, s[{S_MASK}:{S_MASK + 1}]')
    a(f'buffer_load_dwordx4 {vr(A_V[0], 4)}, v{A_VA}, {WSR}, s{S_T3} offen sc1')
    a(f'buffer_load_dwordx4 {vr(A_V[0] + 4, 4)}, v{A_VA}, {WSR}, s{S_T3} offen offset:512 sc1')
    a('s_mov_b64 exec, -1')
    a('s_waitcnt vmcnt(0)')
    a(f'v_mfma_f32_32x32x16_bf16 {vr(S, 16)}, {vr(A_K[0], 4)}, {vr(A_Q, 4)}, {vr(C, 16)}')
    a('s_nop 7')
    a('s_nop 3')
    for i in range(16):
        a(f'v_exp_f32 v{S + i}, v{S + i}')
    a('s_nop 0')
    for k in range(8):
        a(f'v_cvt_pk_bf16_f32 v{A_P + k}, v{S + 2 * k}, v{S + 2 * k + 1}')
    a('s_nop 1')
    a(f'v_mfma_f32_32x32x16_bf16 {vr(A_O, 16)}, {vr(A_V[0], 4)}, {vr(A_P, 4)}, {vr(A_O, 16)}')
    a(f'v_mfma_f32_32x32x16_bf16 {vr(A_O, 16)}, {vr(A_V[0] + 4, 4)}, {vr(A_P + 4, 4)}, {vr(A_O, 16)}')
    a(f's_add_u32 s{S_K}, s{S_K}, 1')
    a(f's_cmp_lt_u32 s{S_K}, 64')
    a('s_cbranch_scc1 L_fb_sum')
    a(f's_mov_b32 s{S_J}, 1')
    a('s_nop 7')
    a('s_nop 3')
    a('s_branch L_at_norm')


def conv(g):
    a = g.a
    a.label('L_conv')
    vA, vB, vT = 2, 3, 4
    ACC, AF, BF = 8, 40, 72
    if 'cvprio0' not in g.exp:
        a('s_setprio 2')
    a(f's_lshl_b32 s{S_T0}, s{S_XC}, 6')
    a(f's_lshl_b32 s{S_T1}, s{S_IDX}, 1')
    a(f's_add_u32 s{S_T0}, s{S_T0}, s{S_T1}')
    a(f's_lshl_b32 s{S_T0}, s{S_T0}, 1')
    a(f's_load_dword s{S_DSKV}, s[{S_DSK}:{S_DSK + 1}], s{S_T0}')
    a(f's_bfe_u32 s{S_A}, s{S_WV}, 0x10002')
    a(f's_and_b32 s{S_B}, s{S_WV}, 3')
    a(f's_mul_i32 s{S_T0}, s{S_A}, {UL_SZ}')
    a(f's_lshl_b32 s{S_T1}, s{S_B}, 7')
    a(f's_sub_u32 s{S_T0}, s{S_T0}, s{S_T1}')
    a(f's_add_u32 s{S_T0}, s{S_T0}, {L_UL + 480}')
    a(f'v_and_b32 v5, 15, v{V_LANE}')
    a(f'v_lshrrev_b32 v6, 4, v{V_LANE}')
    a('v_lshlrev_b32 v7, 5, v5')
    a('v_lshl_add_u32 v7, v6, 4, v7')
    a(f'v_add_u32 v{vB}, s{S_T0}, v7')
    a(f's_mul_i32 s{S_T0}, s{S_A}, {R_SZ}')
    a(f's_sub_u32 s{S_T0}, s{S_T0}, s{S_T1}')
    a(f's_add_u32 s{S_T0}, s{S_T0}, {L_R + 4 * 1015}')
    a('v_lshrrev_b32 v7, 1, v5')
    a('v_lshlrev_b32 v7, 2, v7')
    a('v_lshlrev_b32 v6, 4, v6')
    a('v_sub_u32 v6, v6, v7')
    a('v_and_b32 v5, 1, v5')
    a('v_cmp_eq_u32 vcc, 0, v5')
    a(f'v_mov_b32 v7, {R_O}')
    a('s_nop 0')
    a('v_cndmask_b32 v5, 0, v7, vcc')
    a('v_add_u32 v6, v6, v5')
    a(f'v_add_u32 v{vA}, s{S_T0}, v6')

    def one_class(first):
        q = LdsQueue()

        def rd_b(i):
            a(f'ds_read_b128 {vr(BF + 4 * i, 4)}, v{vB} offset:{512 * i}')
            q.push(f'b{i}')

        def rd_a(j):
            if j % 2 == 0:
                a(f'v_subrev_u32 v{vT + (j // 2) % 2}, {512 * (j + 1)}, v{vA}')
            base = vT + (j // 2) % 2
            o = 128 if j % 2 == 0 else 0
            a(f'ds_read2_b32 {vr(AF + 4 * j, 2)}, v{base} offset0:{o} offset1:{o + 1}')
            a(f'ds_read2_b32 {vr(AF + 4 * j + 2, 2)}, v{base} offset0:{o + 2} offset1:{o + 3}')
            q.push(f'a{j}')
            q.push(f'a{j}')

        rd_a(0)
        for i in range(8):
            rd_b(i)
        rd_a(1)
        for j in range(8):
            for i in range(8 - j):
                if j == 0:
                    q.wait(a, f'b{i}')
                elif i == 0:
                    q.wait(a, f'a{j}')
                t = i + j
                c = '0' if (first and j == 0) else vr(ACC + 4 * t, 4)
                a(f'v_mfma_f32_16x16x32_bf16 {vr(ACC + 4 * t, 4)}, {vr(AF + 4 * j, 4)}, {vr(BF + 4 * i, 4)}, {c}')
                if j == 0 and i in (1, 3, 5):
                    rd_a(2 + (i - 1) // 2)
                if j == 1 and i in (0, 2, 4):
                    rd_a(5 + i // 2)

    g.stamp('cv0')
    one_class(True)
    g.stamp('cv1')
    a(f'v_subrev_u32 v{vA}, 64, v{vA}')
    a(f'v_subrev_u32 v{vB}, 64, v{vB}')
    one_class(False)
    g.stamp('cv_mf')
    a(f'v_lshlrev_b32 v5, 4, v{V_LANE}')
    a(f's_lshl_b32 s{S_T2}, s{S_A}, 16')
    a(f's_add_u32 s{S_T2}, s{S_T2}, {L_HALF[0]}')
    a(f's_lshl_b32 s{S_T0}, s{S_B}, 13')
    a(f's_add_u32 s{S_T0}, s{S_T0}, s{S_T2}')
    a(f'v_add_u32 v6, s{S_T0}, v5')
    a('s_waitcnt lgkmcnt(0)')
    for t in range(8):
        a(f'ds_write_b128 v6, {vr(ACC + 4 * t, 4)} offset:{1024 * t}')
    a(f's_and_b32 s{S_T0}, s{S_WV}, 7')
    a(f's_lshl_b32 s{S_T0}, s{S_T0}, 2')
    a(f's_add_u32 s{S_T0}, s{S_T0}, {M_RW}')
    a(f'v_mov_b32 v6, s{S_T0}')
    a(f'v_mov_b32 v7, s{S_TOK}')
    a('s_waitcnt lgkmcnt(0)')
    a('ds_write_b32 v6, v7')
    a(f's_lshl_b32 s{S_T0}, s{S_A}, 4')
    a(f's_add_u32 s{S_T0}, s{S_T0}, {M_RW}')
    a(f'v_mov_b32 v6, s{S_T0}')
    g.lds_spin(6, 8, 4)
    a(f's_lshl_b32 s{S_T1}, s{S_B}, 11')
    a(f's_add_u32 s{S_T0}, s{S_T2}, s{S_T1}')
    a(f'v_add_u32 v6, s{S_T0}, v5')
    for s in range(4):
        for tt in range(2):
            a(f'ds_read_b128 {vr(40 + 16 * tt + 4 * s, 4)}, v6 offset:{8192 * s + 1024 * tt}')
    a(f's_mul_i32 s{S_T0}, s{S_A}, {UL_SZ}')
    a(f's_lshl_b32 s{S_T1}, s{S_B}, 10')
    a(f's_add_u32 s{S_T0}, s{S_T0}, s{S_T1}')
    a(f's_add_u32 s{S_T0}, s{S_T0}, {L_UL + 512}')
    a(f'v_and_b32 v7, 15, v{V_LANE}')
    a('v_lshlrev_b32 v7, 5, v7')
    a(f'v_lshrrev_b32 v8, 4, v{V_LANE}')
    a('v_lshl_add_u32 v7, v8, 3, v7')
    a(f'v_add_u32 v7, s{S_T0}, v7')
    a('ds_read_b64 v[72:73], v7')
    a('ds_read_b64 v[74:75], v7 offset:512')
    a('s_waitcnt lgkmcnt(0)')
    a(f's_lshl_b32 s{S_T1}, s{S_A}, 4')
    a(f's_lshr_b32 s{S_DSKV}, s{S_DSKV}, s{S_T1}')
    a(f's_lshl_b32 s{S_DSKV}, s{S_DSKV}, 16')
    for tt in range(2):
        b = 40 + 16 * tt
        for r in range(4):
            a(f'v_add_f32 v{b + r}, v{b + r}, v{b + 4 + r}')
            a(f'v_add_f32 v{b + 8 + r}, v{b + 8 + r}, v{b + 12 + r}')
        for r in range(4):
            a(f'v_add_f32 v{b + r}, v{b + r}, v{b + 8 + r}')
        a(f'v_cvt_pk_bf16_f32 v{b + 4}, v{b}, v{b + 1}')
        a(f'v_cvt_pk_bf16_f32 v{b + 5}, v{b + 2}, v{b + 3}')
        u = 72 + 2 * tt
        a(f'v_lshlrev_b32 v{b + 8}, 16, v{u}')
        a(f'v_and_b32 v{b + 9}, 0xffff0000, v{u}')
        a(f'v_lshlrev_b32 v{b + 10}, 16, v{u + 1}')
        a(f'v_and_b32 v{b + 11}, 0xffff0000, v{u + 1}')
        for r in range(4):
            a(f'v_mul_f32 v{b + 8 + r}, s{S_DSKV}, v{b + 8 + r}')
        a(f'v_cvt_pk_bf16_f32 v{b + 6}, v{b + 8}, v{b + 9}')
        a(f'v_cvt_pk_bf16_f32 v{b + 7}, v{b + 10}, v{b + 11}')
        for k in range(2):
            a(f'v_lshlrev_b32 v{b + 8}, 16, v{b + 4 + k}')
            a(f'v_and_b32 v{b + 9}, 0xffff0000, v{b + 4 + k}')
            a(f'v_lshlrev_b32 v{b + 10}, 16, v{b + 6 + k}')
            a(f'v_and_b32 v{b + 11}, 0xffff0000, v{b + 6 + k}')
            a(f'v_add_f32 v{b + 8}, v{b + 8}, v{b + 10}')
            a(f'v_add_f32 v{b + 9}, v{b + 9}, v{b + 11}')
            a(f'v_cvt_pk_bf16_f32 v{76 + 2 * tt + k}, v{b + 8}, v{b + 9}')
    a(f's_lshl_b32 s{S_T0}, s{S_XC}, 6')
    a(f's_lshl_b32 s{S_T1}, s{S_IDX}, 1')
    a(f's_add_u32 s{S_T0}, s{S_T0}, s{S_T1}')
    a(f's_add_u32 s{S_T0}, s{S_T0}, s{S_A}')
    a(f's_lshl_b32 s{S_T0}, s{S_T0}, 2')
    a(f's_add_u32 s{S_T0}, s{S_T0}, s{S_B}')
    a(f's_lshl_b32 s{S_T0}, s{S_T0}, 10')
    a(f's_add_u32 s{S_T0}, s{S_T0}, {WS_YT}')
    g.store_mode([f'buffer_store_dwordx4 v[76:79], v5, {WSR}, s{S_T0} offen {{M}}'])
    a(f's_lshl_b32 s{S_T0}, s{S_B}, 17')
    a(f's_lshl_b32 s{S_T1}, s{S_XC}, 11')
    a(f's_add_u32 s{S_T0}, s{S_T0}, s{S_T1}')
    a(f's_lshl_b32 s{S_T1}, s{S_IDX}, 3')
    a(f's_add_u32 s{S_T0}, s{S_T0}, s{S_T1}')
    a(f's_lshl_b32 s{S_T1}, s{S_A}, 2')
    a(f's_add_u32 s{S_T0}, s{S_T0}, s{S_T1}')
    a(f's_add_u32 s{S_A}, s{S_T0}, {WS_INBOX + IB_Y}')
    a('s_setprio 0')
    g.stamp('conv')
    a('s_barrier')
    attn_setup(g, 8192 + 2048)
    a('s_branch L_at_shared')


def outproj(g):
    a = g.a
    a.label('L_e1')
    a('s_barrier')
    g.stamp('e3')
    a(f's_and_b32 s{S_T0}, s{S_IDX}, 3')
    a(f's_lshl_b32 s{S_T0}, s{S_T0}, 1')
    a(f's_lshl_b32 s{S_T1}, s{S_XC}, 3')
    a(f's_add_u32 s{S_T0}, s{S_T0}, s{S_T1}')
    a(f's_lshl_b32 s{S_T0}, s{S_T0}, 15')
    a(f's_lshl_b32 s{S_T2}, s{S_WV}, 12')
    a(f's_add_u32 s{S_T0}, s{S_T0}, s{S_T2}')
    a(f's_add_u32 s{S_T0}, s{S_T0}, {WS_OF}')
    a(f's_cmp_ge_u32 s{S_WV}, 8')
    a(f's_cselect_b32 s{S_T3}, 32768, 0')
    a(f's_add_u32 s{S_T2}, s{S_T2}, s{S_T3}')
    a(f'v_lshlrev_b32 v5, 4, v{V_LANE}')
    for i in range(4):
        a(f's_add_u32 m0, s{S_T2}, {L_HALF[0] + i * 1024}')
        a(f's_add_u32 s{S_T1}, s{S_T0}, {i * 1024}')
        a(f'buffer_load_dwordx4 v5, {WSR}, s{S_T1} offen sc1 lds')
    a(f's_cmp_ge_u32 s{S_WV}, 4')
    a('s_cbranch_scc1 L_ys')
    vW, vW2, vO, ACC, WF, OF = 6, 8, 7, 16, 32, 64
    a(f'v_lshrrev_b32 v2, 5, v{V_LANE}')
    a(f'v_bfe_u32 v3, v{V_LANE}, 2, 2')
    a('v_lshl_add_u32 v2, v2, 2, v3')
    a('v_lshlrev_b32 v2, 6, v2')
    a(f'v_bfe_u32 v3, v{V_LANE}, 4, 1')
    a('v_lshl_add_u32 v2, v3, 5, v2')
    a(f'v_and_b32 v3, 3, v{V_LANE}')
    a('v_lshl_add_u32 v2, v3, 3, v2')
    a(f's_lshr_b32 s{S_T0}, s{S_WV}, 1')
    a(f's_lshl_b32 s{S_T0}, s{S_T0}, 9')
    a(f'v_add_u32 v{vW}, s{S_T0}, v2')
    a(f'v_add_u32 v{vW2}, {L_V}, v{vW}')
    a(f's_and_b32 s{S_T0}, s{S_WV}, 1')
    a(f's_lshl_b32 s{S_T0}, s{S_T0}, 16')
    a(f's_add_u32 s{S_T0}, s{S_T0}, {L_HALF[0]}')
    a(f'v_add_u32 v{vO}, s{S_T0}, v5')
    a('s_waitcnt vmcnt(0)')
    a('s_barrier')
    g.stamp('e4')
    q = LdsQueue()
    DEPTH = 4

    def rd(h):
        b = h % (DEPTH + 1)
        w = vW if h < 16 else vW2
        a(f'ds_read_b64_tr_b16 {vr(WF + 4 * b, 2)}, v{w} offset:{2048 * (h & 15)}')
        a(f'ds_read_b64_tr_b16 {vr(WF + 4 * b + 2, 2)}, v{w} offset:{2048 * (h & 15) + 1024}')
        a(f'ds_read_b128 {vr(OF + 4 * b, 4)}, v{vO} offset:{1024 * h}')
        for _ in range(3):
            q.push(h)
    for h in range(DEPTH):
        rd(h)
    for h in range(32):
        if h + DEPTH < 32:
            rd(h + DEPTH)
        q.wait(a, h)
        b = h % (DEPTH + 1)
        c = '0' if h == 0 else vr(ACC, 16)
        a(f'v_mfma_f32_32x32x16_bf16 {vr(ACC, 16)}, {vr(WF + 4 * b, 4)}, {vr(OF + 4 * b, 4)}, {c}')
    a(f'v_and_b32 v2, 31, v{V_LANE}')
    a(f's_and_b32 s{S_T0}, s{S_WV}, 1')
    a(f's_lshl_b32 s{S_T0}, s{S_T0}, 5')
    a(f'v_add_u32 v2, s{S_T0}, v2')
    a(f'v_mul_u32_u24 v2, {OUT_P}, v2')
    a(f'v_lshrrev_b32 v3, 5, v{V_LANE}')
    a('v_lshl_add_u32 v2, v3, 3, v2')
    a(f's_lshr_b32 s{S_T0}, s{S_WV}, 1')
    a(f's_lshl_b32 s{S_T0}, s{S_T0}, 6')
    a(f's_add_u32 s{S_T0}, s{S_T0}, {L_OUT}')
    a(f'v_add_u32 v2, s{S_T0}, v2')
    a('s_nop 3')
    for gq in range(4):
        a(f'v_cvt_pk_bf16_f32 v{32 + 2 * gq}, v{ACC + 4 * gq}, v{ACC + 4 * gq + 1}')
        a(f'v_cvt_pk_bf16_f32 v{33 + 2 * gq}, v{ACC + 4 * gq + 2}, v{ACC + 4 * gq + 3}')
        a(f'ds_write_b64 v2, {vr(32 + 2 * gq, 2)} offset:{16 * gq}')
    a('s_waitcnt lgkmcnt(0)')
    g.stamp('op_mf')
    a('s_barrier')
    g.stamp('e5')
    a.label('L_outstore')
    a(f'v_lshrrev_b32 v2, 3, v{V_LANE}')
    a(f's_lshl_b32 s{S_T0}, s{S_WV}, 3')
    a(f'v_add_u32 v2, s{S_T0}, v2')
    a(f'v_mul_u32_u24 v3, {OUT_P}, v2')
    a(f'v_and_b32 v4, 7, v{V_LANE}')
    a('v_lshl_add_u32 v3, v4, 4, v3')
    a(f'v_add_u32 v3, {L_OUT}, v3')
    a('ds_read_b128 v[8:11], v3')
    a('v_lshlrev_b32 v2, 11, v2')
    a('v_lshl_add_u32 v2, v4, 4, v2')
    a(f's_lshl_b32 s{S_T0}, s{S_XC}, 19')
    a(f's_and_b32 s{S_T2}, s{S_IDX}, 3')
    a(f's_lshl_b32 s{S_T2}, s{S_T2}, 17')
    a(f's_add_u32 s{S_T0}, s{S_T0}, s{S_T2}')
    a(f's_lshr_b32 s{S_T2}, s{S_IDX}, 2')
    a(f's_lshl_b32 s{S_T2}, s{S_T2}, 7')
    a(f's_add_u32 s{S_T0}, s{S_T0}, s{S_T2}')
    a('s_waitcnt lgkmcnt(0)')
    a(f'buffer_store_dwordx4 v[8:11], v2, s[{R_OUT}:{R_OUT + 3}], s{S_T0} offen {g.outmod}')
    a('s_branch L_finish')


def tail_idle(g):
    a = g.a
    a.label('L_ys')
    a('s_waitcnt vmcnt(0)')
    a('s_barrier')
    a('s_barrier')
    a(f's_cmp_lt_u32 s{S_WV}, 8')
    a('s_cbranch_scc1 L_outstore')
    a('s_branch L_finish')


def rest(g):
    a = g.a
    if g.stop == 'p1':
        a('s_branch L_finish')
        return
    attn_join(g)
    attn_local(g)
    attn_shared(g)
    attn_finish(g)
    outproj(g)
    tail_idle(g)
    conv(g)
    attn_hooks(g)
    attn_fallback(g)
```

```python
import os
import struct
import sys

sys.path.insert(0, os.path.dirname(os.path.abspath(__file__)))
from asmlib import Asm, VmQueue, check_hazards, vr

NAME = 'concat_heads__softmax_full_mha__ssm_conv_s4d__prompt'
KERNEL = NAME + '_kernel'

WS_G = 0x0
WS_INBOX = 0x100000
IB_KV, IB_X, IB_U, IB_L, IB_O, IB_Y = 0, 512, 640, 768, 1024, 1280
WS_UT = 0x200000
WS_KR = 0x400000
WS_VR = 0x600000
WS_QL = 0x800000
WS_KL = 0xA00000
WS_VL = 0xC00000
WS_OF = 0xE00000
WS_YT = 0x1000000
WS_PROF = 0x1400000
WS_SIZE = 0x1800000

LDS_BYTES = 163840
SLOT, NSLOT = 32768, 3
L_USTAGE = 147456
L_KG = 98304
ROWP = 272
KG_Y = 25 * ROWP
KG_SZ = KG_Y + 32 * ROWP
L_KPART = 98304
L_KSP = 114688
KSP_SZ = 4608
L_K, L_V = 0, 65536
L_R = 131072
R_O, R_SZ = 4160, 8320
L_UL = L_R + 2 * R_SZ
UL_SZ = 4608
L_QS = 73728
L_MISC = 163520
M_MODE = L_MISC
M_F = L_MISC + 16
M_I = L_MISC + 96
M_C = L_MISC + 144
M_KT = L_MISC - 32
M_SL = L_MISC - 48
M_RW = L_MISC - 80
M_U = L_MISC - 96
L_HALF = (32768, 98304)
L_OUT = L_R
OUT_P = 144
L_YS = L_R + 64 * OUT_P
PART_SZ = 2304

S_X, S_WQKV, S_WO, S_U, S_LOGA, S_AIM, S_CRE, S_CIM, S_LOGDT, S_DSK, S_OUT, S_DBG, S_WS = range(8, 34, 2)
R_X, R_W, R_WS, R_U, R_WO, R_OUT = 36, 40, 44, 48, 52, 56
S_XC, S_IDX, S_CG, S_RB, S_S0, S_WV, S_TOK, S_MODE, S_H, S_XCC = range(60, 70)
S_T0, S_T1, S_T2, S_T3, S_T4, S_T5, S_T6, S_T7 = range(70, 78)
S_MASK = 78
S_RET = 80
S_K, S_SLOT, S_CNT, S_DT, S_INB = 82, 83, 84, 85, 86
S_A, S_B, S_C = 3, 4, 5
S_IGN = 6
S_J, S_SRC = 34, 35
S_PROF = 88

V_LANE = 1
LOG2E = 1.4426950408889634
INV2PI = 0.15915494309189535
QSCALE = 0.25 * LOG2E
SPIN_MAX = 400000
KG_WAIT = 5
HI0 = [0, 256, 512, 768, 1024, 1280, 1536, 1792, 1, 2, 3, 258, 2048]
WSR = f's[{R_WS}:{R_WS + 3}]'

A_L16, A_PA, A_PV, A_KA, A_VA, A_Q, A_O = 4, 5, 6, 8, 9, 108, 16
A_S, A_P, A_K, A_V = (32, 48), 64, (72, 76), (80, 88)


def fbits(x):
    return '0x%08x' % struct.unpack('<I', struct.pack('<f', x))[0]


class LdsQueue:
    def __init__(self):
        self.q = []

    def push(self, tag):
        self.q.append(tag)

    def wait(self, a, tag):
        idx = max(i for i, t in enumerate(self.q) if t == tag)
        n = len(self.q) - 1 - idx
        assert n <= 15
        a(f's_waitcnt lgkmcnt({n})')


class Gen:
    def __init__(self, stop=None, prof='', points='', exp=''):
        self.a = Asm()
        self.stop = stop
        self.prof = prof
        self.points = points.split(',') if points else []
        self.exp = set(exp.split(',')) if exp else set()
        assert len(self.points) <= 7
        self.outmod = 'sc1' if 'outwt' in self.exp else ('nt' if 'outnt' in self.exp else '')

    def srd(self, r, base, size):
        a = self.a
        a(f's_mov_b32 s{r}, s{base}')
        a(f's_mov_b32 s{r + 1}, s{base + 1}')
        a(f's_mov_b32 s{r + 2}, {size}')
        a(f's_mov_b32 s{r + 3}, 0x20000')

    def lanes(self, n):
        if n == 64:
            self.a('s_mov_b64 exec, -1')
        elif n >= 32:
            self.a(f's_mov_b32 exec_hi, {hex((1 << (n - 32)) - 1)}')
        else:
            self.a(f's_mov_b64 exec, {hex((1 << n) - 1)}')

    def stamp(self, name):
        if self.prof and name in self.points:
            i = self.points.index(name)
            op = 's_memtime' if self.prof == 'cyc' else 's_memrealtime'
            self.a(f'{op} s[{S_PROF + 2 * i}:{S_PROF + 2 * i + 1}]')

    def stamp_k(self, prefix):
        for k in range(8):
            if self.prof and f'{prefix}{k}' in self.points:
                lb = self.a.uid('nost')
                self.a(f's_cmp_eq_u32 s{S_K}, {k}')
                self.a(f's_cbranch_scc0 {lb}')
                self.stamp(f'{prefix}{k}')
                self.a.label(lb)

    def lds_check(self, vtmp, n):
        a = self.a
        a(f'v_cmp_ne_u32 vcc, s{S_TOK}, v{vtmp}')
        for i in range(1, n):
            a(f'v_cmp_ne_u32 s[{S_IGN}:{S_IGN + 1}], s{S_TOK}, v{vtmp + i}')
            a('s_nop 0')
            a(f's_or_b64 vcc, vcc, s[{S_IGN}:{S_IGN + 1}]')

    def lds_spin(self, vaddr, vtmp, n, off=0, sleep=0):
        a = self.a
        lp = a.uid('lspin')
        rd = {1: 'ds_read_b32', 2: 'ds_read_b64', 4: 'ds_read_b128'}[n]
        a(f's_mov_b32 s{S_CNT}, 0')
        a.label(lp)
        a(f'{rd} {vr(vtmp, n)}, v{vaddr} offset:{off}')
        a(f's_add_u32 s{S_CNT}, s{S_CNT}, 1')
        a('s_waitcnt lgkmcnt(0)')
        self.lds_check(vtmp, n)
        a(f's_cbranch_vccz {lp}_x')
        if sleep:
            a(f's_sleep {sleep}')
        a(f's_cmp_gt_u32 s{S_CNT}, {SPIN_MAX}')
        a(f's_cbranch_scc0 {lp}')
        a.label(lp + '_x')

    def ws_spin(self, voff, vtmp, nlanes, name, preissued=False, ignore=None):
        a = self.a
        lp, done = a.uid(name), a.uid(name + '_ok')
        a(f's_mov_b32 s{S_CNT}, 0')
        if nlanes < 64:
            self.lanes(nlanes)
        if not preissued:
            a(f'buffer_load_dword v{vtmp}, v{voff}, {WSR}, 0 offen sc1')
        a.label(lp)
        a('s_waitcnt vmcnt(0)')
        a(f'v_cmp_ne_u32 vcc, s{S_TOK}, v{vtmp}')
        a(f's_add_u32 s{S_CNT}, s{S_CNT}, 1')
        a('s_nop 0')
        if ignore is not None:
            a(f's_andn2_b64 vcc, vcc, s[{ignore}:{ignore + 1}]')
        else:
            a('s_and_b64 vcc, vcc, exec')
        a(f's_cbranch_scc0 {done}')
        a(f's_cmp_gt_u32 s{S_CNT}, {SPIN_MAX}')
        a(f's_cbranch_scc1 {done}')
        a(f'buffer_load_dword v{vtmp}, v{voff}, {WSR}, 0 offen sc1')
        a(f's_branch {lp}')
        a.label(done)
        if nlanes < 64:
            self.lanes(64)

    def store_mode(self, lines):
        a = self.a
        wt, done = a.uid('wt'), a.uid('std')
        a(f's_cmp_eq_u32 s{S_MODE}, 0')
        a(f's_cbranch_scc1 {wt}')
        for ln in lines:
            a(ln.replace('{M}', ''))
        a(f's_branch {done}')
        a.label(wt)
        for ln in lines:
            a(ln.replace('{M}', 'sc1'))
        a.label(done)

    def token(self):
        a = self.a
        a('s_waitcnt lgkmcnt(0)')
        a(f's_mul_i32 s{S_TOK}, s{S_TOK}, 0x9e3779b1')
        a(f's_add_u32 s{S_TOK}, s{S_TOK}, 0x7f4a7c15')

    def common_setup(self):
        a = self.a
        if 'wstop' in self.exp:
            a(f's_mov_b32 s{S_T7}, {(256 << 20) - WS_SIZE}')
            a(f's_load_dword s{S_TOK}, s[{S_WS}:{S_WS + 1}], s{S_T7}')
        else:
            a(f's_load_dword s{S_TOK}, s[{S_WS}:{S_WS + 1}], {WS_G}')
        a(f's_getreg_b32 s{S_XCC}, hwreg(HW_REG_XCC_ID)')
        self.srd(R_WS, S_WS, WS_SIZE)
        if 'wstop' in self.exp:
            a(f's_add_u32 s{R_WS}, s{R_WS}, {(256 << 20) - WS_SIZE}')
            a(f's_addc_u32 s{R_WS + 1}, s{R_WS + 1}, 0')
        self.srd(R_U, S_U, 2048 * 1024)
        self.srd(R_WO, S_WO, 512 * 1024)
        self.srd(R_OUT, S_OUT, 2048 * 2048)
        a(f's_mov_b32 s{S_H}, s{S_IDX}')
        a(f's_and_b32 s{S_XCC}, s{S_XCC}, 15')
        a(f's_lshl_b32 s{S_INB}, s2, 11')
        a(f's_add_u32 s{S_INB}, s{S_INB}, {WS_INBOX}')
        a(f's_mov_b32 s{S_MASK}, 0x0000ffff')
        a(f's_mov_b32 s{S_MASK + 1}, 0x0000ffff')

    def prologue(self):
        a = self.a
        a('s_cmp_ge_u32 s2, 256')
        a('s_cbranch_scc1 L_exit')
        a('s_load_dwordx16 s[8:23], s[0:1], 0')
        a('s_load_dwordx8 s[24:31], s[0:1], 64')
        a('s_load_dwordx2 s[32:33], s[0:1], 96')
        if self.prof:
            for i in range(14):
                a(f's_mov_b32 s{S_PROF + i}, 0')
        self.stamp('entry')
        a('s_getpc_b64 s[70:71]')
        a.label('L_pc')
        a('v_lshrrev_b32 v2, 6, v0')
        a(f'v_and_b32 v{V_LANE}, 63, v0')
        a(f's_lshr_b32 s{S_IDX}, s2, 3')
        a(f's_lshl_b32 s{S_T2}, s{S_IDX}, 10')
        a(f'v_lshl_add_u32 v3, v0, 7, s{S_T2}')
        a('v_min_u32 v3, L_code_end-L_pc-4, v3')
        a('v_cmp_gt_u32 vcc, 8, v0')
        a(f's_and_saveexec_b64 s[{S_T4}:{S_T4 + 1}], vcc')
        a('s_cbranch_execz L_nocodepf')
        a('global_load_dword v9, v3, s[70:71]')
        a.label('L_nocodepf')
        a('s_mov_b64 exec, -1')
        a(f's_and_b32 s{S_XC}, s2, 7')
        a(f'v_readfirstlane_b32 s{S_WV}, v2')
        a(f's_lshr_b32 s{S_CG}, s{S_IDX}, 2')
        a(f's_and_b32 s{S_RB}, s{S_IDX}, 3')
        a(f's_lshl_b32 s{S_S0}, s{S_RB}, 1')
        a(f's_add_u32 s{S_S0}, s{S_S0}, s{S_CG}')
        a(f's_sub_u32 s{S_T0}, s{S_WV}, 4')
        a(f's_cmp_lt_u32 s{S_T0}, 6')
        a('s_cbranch_scc0 L_notloader')

    def issue_chunk(self):
        a = self.a
        if 'nodma' in self.exp:
            return
        a(f's_add_u32 s{S_T2}, s{S_S0}, s{S_K}')
        a(f's_and_b32 s{S_T2}, s{S_T2}, 7')
        a(f's_lshl_b32 s{S_T0}, s{S_T2}, 7')
        a(f's_add_u32 s{S_T0}, s{S_T0}, s{S_A}')
        a(f's_mul_i32 s{S_T4}, s{S_T2}, {64 * 3072}')
        a(f's_add_u32 s{S_T4}, s{S_T4}, s{S_B}')
        for j in range(4):
            a(f's_add_u32 m0, s{S_C}, {j * 1024}')
            a(f's_add_u32 s{S_T1}, s{S_T0}, {j * 8192}')
            a(f'buffer_load_dwordx4 v{10 + (j & 1)}, s[{R_X}:{R_X + 3}], s{S_T1} offen lds')
            for c in range(3):
                a(f's_add_u32 m0, s{S_C}, {8192 + c * 8192 + j * 1024}')
                a(f's_add_u32 s{S_T1}, s{S_T4}, {j * 8 * 3072 + c * 1024}')
                a(f'buffer_load_dwordx4 v12, s[{R_W}:{R_W + 3}], s{S_T1} offen lds')

    def loader_waves(self):
        a = self.a
        a('s_setprio 2')
        a(f'v_lshrrev_b32 v4, 3, v{V_LANE}')
        a(f'v_and_b32 v5, 7, v{V_LANE}')
        a('v_lshrrev_b32 v6, 1, v4')
        a('v_xor_b32 v7, v5, v6')
        a('v_lshlrev_b32 v7, 4, v7')
        a('v_lshl_add_u32 v10, v4, 10, v7')
        a('v_xor_b32 v11, 64, v10')
        a(f'v_bfe_u32 v4, v{V_LANE}, 2, 3')
        a('v_mul_u32_u24 v4, 3072, v4')
        a(f'v_lshrrev_b32 v5, 5, v{V_LANE}')
        a('v_lshl_add_u32 v4, v5, 6, v4')
        a(f'v_and_b32 v5, 3, v{V_LANE}')
        a('v_lshl_add_u32 v12, v5, 4, v4')
        a(f's_and_b32 s{S_T1}, s{S_T0}, 1')
        a(f's_lshr_b32 s{S_K}, s{S_T0}, 1')
        a(f's_lshl_b32 s{S_C}, s{S_K}, 15')
        a(f's_lshl_b32 s{S_T2}, s{S_T1}, 12')
        a(f's_add_u32 s{S_C}, s{S_C}, s{S_T2}')
        a(f's_lshl_b32 s{S_A}, s{S_XC}, 18')
        a(f's_lshl_b32 s{S_T2}, s{S_RB}, 16')
        a(f's_add_u32 s{S_A}, s{S_A}, s{S_T2}')
        a(f's_lshl_b32 s{S_T2}, s{S_T1}, 15')
        a(f's_add_u32 s{S_A}, s{S_A}, s{S_T2}')
        a(f's_mul_i32 s{S_B}, s{S_T1}, {32 * 3072}')
        a(f's_lshl_b32 s{S_T2}, s{S_CG}, 7')
        a(f's_add_u32 s{S_B}, s{S_B}, s{S_T2}')
        vF, vC, vT = 13, 14, 20
        a(f's_lshl_b32 s{S_T1}, s{S_T1}, 2')
        a(f's_add_u32 s{S_T2}, s{S_T1}, {M_F}')
        a(f'v_mov_b32 v{vF}, s{S_T2}')
        a(f's_lshl_b32 s{S_T2}, s{S_K}, 3')
        a(f's_add_u32 s{S_T2}, s{S_T2}, s{S_T1}')
        a(f's_add_u32 s{S_T2}, s{S_T2}, {M_I}')
        a(f'v_mov_b32 v17, s{S_T2}')
        a('s_waitcnt lgkmcnt(0)')
        self.srd(R_X, S_X, 2048 * 1024)
        self.srd(R_W, S_WQKV, 512 * 3072)
        a(f's_cmp_eq_u32 s{S_K}, 0')
        a('s_cbranch_scc1 L_ld_first')
        self.common_setup()
        self.token()
        a(f's_lshl_b32 s{S_T2}, s{S_K}, 3')
        a(f's_add_u32 s{S_T2}, s{S_T2}, {M_I - 8}')
        a(f'v_mov_b32 v{vC}, s{S_T2}')
        self.lds_spin(vC, vT, 2, sleep=2)
        self.issue_chunk()
        a('s_branch L_ld_issued')
        a.label('L_ld_first')
        self.stamp('iss0')
        self.issue_chunk()
        self.common_setup()
        self.token()
        a.label('L_ld_issued')
        self.stamp('iss1')
        a(f'v_mov_b32 v15, s{S_TOK}')
        a('ds_write_b32 v17, v15')
        a(f'v_mov_b32 v{vC}, {M_C}')
        a.label('L_ld_loop')
        a(f's_lshl_b32 s{S_T0}, s{S_K}, 3')
        a(f'v_add_u32 v18, s{S_T0}, v{vF}')
        a('s_waitcnt vmcnt(0)')
        a('ds_write_b32 v18, v15')
        self.stamp_k('lF')
        a(f's_add_u32 s{S_K}, s{S_K}, 3')
        a(f's_cmp_ge_u32 s{S_K}, 8')
        a('s_cbranch_scc1 L_ld_done')
        a(f's_lshl_b32 s{S_T0}, s{S_K}, 4')
        a(f's_add_u32 s{S_T0}, s{S_T0}, {M_C - 48}')
        a(f'v_mov_b32 v{vC}, s{S_T0}')
        self.lds_spin(vC, vT, 4, sleep=1)
        self.stamp_k('lC')
        if 'dma3' not in self.exp:
            self.issue_chunk()
        self.stamp_k('lI')
        a(f's_cmp_eq_u32 s{S_K}, 7')
        a('s_cbranch_scc0 L_ld_loop')
        if 'notouch' not in self.exp:
            a(f'v_mov_b32 v{vC}, {M_MODE}')
            a(f'ds_read_b64 v[20:21], v{vC}')
            a(f'v_lshrrev_b32 v22, 4, v{V_LANE}')
            a('v_lshlrev_b32 v22, 16, v22')
            a(f'v_and_b32 v23, 15, v{V_LANE}')
            a('v_lshl_add_u32 v22, v23, 7, v22')
            a(f's_lshl_b32 s{S_T0}, s{S_CG}, 18')
            a(f's_lshl_b32 s{S_T1}, s{S_XC}, 13')
            a(f's_add_u32 s{S_T0}, s{S_T0}, s{S_T1}')
            a(f's_lshl_b32 s{S_T1}, s{S_RB}, 11')
            a(f's_add_u32 s{S_T0}, s{S_T0}, s{S_T1}')
            a('s_waitcnt lgkmcnt(0)')
            a(f'v_readfirstlane_b32 s{S_T1}, v20')
            a(f'v_readfirstlane_b32 s{S_T2}, v21')
            a(f's_cmp_eq_u32 s{S_T2}, s{S_TOK}')
            a('s_cbranch_scc0 L_ld_loop')
            a(f's_cmp_eq_u32 s{S_T1}, 1')
            a('s_cbranch_scc0 L_ld_loop')
            a(f's_lshl_b32 s{S_T2}, s{S_K}, 3')
            a(f'v_add_u32 v18, s{S_T2}, v{vF}')
            a(f's_cmp_eq_u32 s{S_WV}, 6')
            a('s_cbranch_scc0 L_ld_touchv')
            a(f's_add_u32 s{S_T1}, s{S_T0}, {WS_KL}')
            a(f'buffer_load_dword v24, v22, {WSR}, s{S_T1} offen')
            a(f's_add_u32 s{S_T1}, s{S_T0}, {WS_QL}')
            a(f'buffer_load_dword v25, v22, {WSR}, s{S_T1} offen')
            if 'touchr' in self.exp:
                a(f's_add_u32 s{S_T1}, s{S_T0}, {WS_KR}')
                a(f'buffer_load_dword v26, v22, {WSR}, s{S_T1} offen sc1')
            a(f"s_waitcnt vmcnt({3 if 'touchr' in self.exp else 2})")
            a('s_branch L_ld_touched')
            a.label('L_ld_touchv')
            a(f's_add_u32 s{S_T1}, s{S_T0}, {WS_VL}')
            a(f'buffer_load_dword v24, v22, {WSR}, s{S_T1} offen')
            if 'touchr' in self.exp:
                a(f's_add_u32 s{S_T1}, s{S_T0}, {WS_VR}')
                a(f'buffer_load_dword v26, v22, {WSR}, s{S_T1} offen sc1')
            a(f"s_waitcnt vmcnt({2 if 'touchr' in self.exp else 1})")
            a.label('L_ld_touched')
            a('ds_write_b32 v18, v15')
            a('s_branch L_ld_done')
        a('s_branch L_ld_loop')
        a.label('L_ld_done')
        self.stamp('lb7')
        a(f's_cmp_ge_u32 s{S_WV}, 8')
        a('s_cbranch_scc1 L_gap1_join')
        self.stage_local()
        a('s_branch L_gap1_join')

    def kv_src(self):
        a = self.a
        a(f's_lshl_b32 s{S_C}, s{S_XC}, 1')
        a(f's_lshl_b32 s{S_T0}, s{S_H}, 16')
        a(f's_and_b32 s{S_B}, s{S_WV}, 3')
        a(f's_lshl_b32 s{S_B}, s{S_B}, 10')
        a(f's_add_u32 s{S_SRC}, s{S_T0}, s{S_B}')
        a(f'v_lshlrev_b32 v{A_L16}, 4, v{V_LANE}')

    def kv_dma(self, j, kbase, vbase):
        a = self.a
        a(f's_add_u32 s{S_T0}, s{S_C}, {j}')
        a(f's_and_b32 s{S_T0}, s{S_T0}, 15')
        a(f's_lshl_b32 s{S_T0}, s{S_T0}, 12')
        a(f's_add_u32 s{S_T0}, s{S_T0}, s{S_SRC}')
        a(f's_add_u32 m0, s{S_B}, {L_K + 4096 * j}')
        a(f's_add_u32 s{S_T4}, s{S_T0}, {kbase}')
        a(f'buffer_load_dwordx4 v{A_L16}, {WSR}, s{S_T4} offen sc1 lds')
        a(f's_add_u32 m0, s{S_B}, {L_V + 4096 * j}')
        a(f's_add_u32 s{S_T4}, s{S_T0}, {vbase}')
        a(f'buffer_load_dwordx4 v{A_L16}, {WSR}, s{S_T4} offen sc1 lds')

    def stage_local(self):
        a = self.a
        self.kv_src()
        a(f'v_lshlrev_b32 v2, 2, v{V_LANE}')
        a(f's_add_u32 s{S_T0}, s{S_INB}, {IB_L}')
        a('v_add_u32 v2, s70, v2')
        self.ws_spin(2, 3, 8, 'loc')
        self.stamp('loc_ok')
        for j in range(2):
            self.kv_dma(j, WS_KL, WS_VL)
        a(f's_lshl_b32 s{S_T0}, s{S_H}, 16')
        a(f's_lshl_b32 s{S_T1}, s{S_XC}, 13')
        a(f's_add_u32 s{S_T0}, s{S_T0}, s{S_T1}')
        a(f's_lshl_b32 s{S_T1}, s{S_B}, 1')
        a(f's_add_u32 s{S_T0}, s{S_T0}, s{S_T1}')
        a(f's_add_u32 s{S_T0}, s{S_T0}, {WS_QL}')
        for i in range(2):
            a(f's_add_u32 m0, s{S_T1}, {L_QS + 1024 * i}')
            a(f's_add_u32 s{S_T4}, s{S_T0}, {1024 * i}')
            a(f'buffer_load_dwordx4 v{A_L16}, {WSR}, s{S_T4} offen sc1 lds')
        a(f's_and_b32 s{S_T0}, s{S_WV}, 3')
        a(f's_lshl_b32 s{S_T0}, s{S_T0}, 2')
        a(f's_add_u32 s{S_T0}, s{S_T0}, {M_SL}')
        a(f'v_mov_b32 v2, s{S_T0}')
        a(f'v_mov_b32 v3, s{S_TOK}')
        a('ds_write_b32 v2, v3')
        a(f'v_lshlrev_b32 v{A_PA}, 2, v{V_LANE}')
        a(f's_add_u32 s{S_T0}, s{S_INB}, {IB_KV}')
        a(f'v_add_u32 v{A_PA}, s{S_T0}, v{A_PA}')
        a(f'buffer_load_dword v{A_PV}, v{A_PA}, {WSR}, 0 offen sc1')
        a('s_waitcnt vmcnt(1)')

    def gemm_waves(self):
        a = self.a
        vXa, vWa, vF, vC, vT = 10, 14, 15, 6, 2
        ACCQ, ACCK, ACCV = 16, 32, 48
        XF, WF = 64, 80
        a.label('L_gemm')
        if 'noprio' not in self.exp:
            a('s_setprio 3')
        a(f'v_and_b32 v2, 31, v{V_LANE}')
        a(f'v_lshrrev_b32 v3, 5, v{V_LANE}')
        a('v_bfe_u32 v4, v2, 1, 3')
        a('v_xor_b32 v4, v4, v3')
        a('v_lshlrev_b32 v4, 4, v4')
        a(f's_and_b32 s{S_T0}, s{S_WV}, 1')
        a(f's_lshl_b32 s{S_T0}, s{S_T0}, 12')
        a('v_lshl_add_u32 v4, v2, 7, v4')
        a(f'v_add_u32 v{vXa}, s{S_T0}, v4')
        for ks in range(1, 4):
            a(f'v_xor_b32 v{vXa + ks}, {32 * ks}, v{vXa}')
        a(f'v_bfe_u32 v4, v{V_LANE}, 2, 2')
        a('v_lshlrev_b32 v4, 6, v4')
        a('v_lshl_add_u32 v4, v3, 10, v4')
        a(f'v_bfe_u32 v5, v{V_LANE}, 4, 1')
        a('v_lshl_add_u32 v4, v5, 5, v4')
        a(f'v_and_b32 v5, 3, v{V_LANE}')
        a('v_lshl_add_u32 v4, v5, 3, v4')
        a(f's_lshr_b32 s{S_T0}, s{S_WV}, 1')
        a(f's_lshl_b32 s{S_T0}, s{S_T0}, 9')
        a(f's_add_u32 s{S_T0}, s{S_T0}, 8192')
        a(f'v_add_u32 v{vWa}, s{S_T0}, v4')
        for i in range(48):
            a(f'v_mov_b32 v{ACCQ + i}, 0')
        a(f's_mov_b32 s{S_K}, 0')
        a(f's_mov_b32 s{S_SLOT}, 0')
        a(f'v_mov_b32 v{vF}, {M_F}')
        a(f's_lshl_b32 s{S_T0}, s{S_WV}, 2')
        a(f's_add_u32 s{S_T0}, s{S_T0}, {M_C}')
        a(f'v_mov_b32 v{vC}, s{S_T0}')
        self.token()
        a(f'v_mov_b32 v7, s{S_TOK}')

        def loads(ks):
            a(f'ds_read_b128 {vr(XF + 4 * ks, 4)}, v{vXa + ks}')
            for c in range(3):
                base = WF + 12 * ks + 4 * c
                a(f'ds_read_b64_tr_b16 {vr(base, 2)}, v{vWa} offset:{c * 8192 + ks * 2048}')
                a(f'ds_read_b64_tr_b16 {vr(base + 2, 2)}, v{vWa} offset:{c * 8192 + ks * 2048 + 256}')

        def mfmas(ks):
            xf = vr(XF + 4 * ks, 4)
            w = [vr(WF + 12 * ks + 4 * c, 4) for c in range(3)]
            a(f'v_mfma_f32_32x32x16_bf16 {vr(ACCQ, 16)}, {w[0]}, {xf}, {vr(ACCQ, 16)}')
            a(f'v_mfma_f32_32x32x16_bf16 {vr(ACCK, 16)}, {w[1]}, {xf}, {vr(ACCK, 16)}')
            a(f'v_mfma_f32_32x32x16_bf16 {vr(ACCV, 16)}, {xf}, {w[2]}, {vr(ACCV, 16)}')

        self.lds_spin(vF, vT, 2, sleep=2)
        self.stamp('b0')
        loads(0)
        loads(1)
        a(f'ds_read_b32 v8, v{vF}')
        a.label('L_g_chunk')
        a('s_waitcnt lgkmcnt(8)')
        loads(2)
        mfmas(0)
        a('s_waitcnt lgkmcnt(7)')
        a(f'ds_read_b64 v[2:3], v{vF} offset:8')
        loads(3)
        mfmas(1)
        a('s_waitcnt lgkmcnt(7)')
        a(f's_add_u32 s{S_K}, s{S_K}, 1')
        a(f's_cmp_eq_u32 s{S_K}, 8')
        a('s_cbranch_scc1 L_g_go')
        self.lds_check(2, 2)
        a('s_cbranch_vccnz L_g_wait')
        a.label('L_g_go')
        self.stamp_k('gF')
        a(f's_add_u32 s{S_SLOT}, s{S_SLOT}, 1')
        a(f's_mov_b32 s{S_T0}, {SLOT}')
        a(f's_cmp_eq_u32 s{S_SLOT}, {NSLOT}')
        a(f's_cselect_b32 s{S_T0}, {(-(NSLOT - 1) * SLOT) & 0xffffffff}, s{S_T0}')
        a(f's_cselect_b32 s{S_SLOT}, 0, s{S_SLOT}')
        for i in range(5):
            a(f'v_add_u32 v{vXa + i}, s{S_T0}, v{vXa + i}')
        a(f'v_add_u32 v{vF}, 8, v{vF}')
        loads(0)
        mfmas(2)
        a('s_waitcnt lgkmcnt(7)')
        loads(1)
        a(f'ds_write_b32 v{vC}, v7')
        self.stamp_k('gC')
        a(f'v_add_u32 v{vC}, 16, v{vC}')
        mfmas(3)
        a(f's_cmp_lt_u32 s{S_K}, 8')
        a('s_cbranch_scc1 L_g_chunk')
        self.stamp('gemm')
        a('s_waitcnt lgkmcnt(0)')
        a(f'v_mov_b32 v6, {M_MODE}')
        self.lds_spin(6, 2, 1, off=4)
        a('ds_read_b32 v2, v6')

        PQ, PK, PV = 64, 72, 80
        for i in range(8):
            a(f'v_cvt_pk_bf16_f32 v{PK + i}, v{ACCK + 2 * i}, v{ACCK + 2 * i + 1}')
        for i in range(8):
            a(f'v_cvt_pk_bf16_f32 v{PV + i}, v{ACCV + 2 * i}, v{ACCV + 2 * i + 1}')
        a(f's_mov_b32 s{S_T7}, {fbits(QSCALE)}')
        a('s_waitcnt lgkmcnt(0)')
        a(f'v_readfirstlane_b32 s{S_MODE}, v2')
        vL, vV = 2, 3
        a(f'v_lshlrev_b32 v{vL}, 4, v{V_LANE}')
        a(f'v_bfe_u32 v4, v{V_LANE}, 4, 1')
        a('v_lshlrev_b32 v4, 16, v4')
        a(f'v_lshrrev_b32 v5, 5, v{V_LANE}')
        a('v_lshlrev_b32 v5, 8, v5')
        a(f'v_and_b32 v6, 15, v{V_LANE}')
        a('v_lshl_add_u32 v5, v6, 4, v5')
        a(f'v_add_u32 v{vV}, v4, v5')
        a(f's_and_b32 s{S_T6}, s{S_WV}, 2')
        a(f's_lshl_b32 s{S_T1}, s{S_CG}, 2')
        a(f's_add_u32 s{S_T6}, s{S_T6}, s{S_T1}')
        a(f's_lshl_b32 s{S_T5}, s{S_XC}, 3')
        a(f's_lshl_b32 s{S_T1}, s{S_RB}, 1')
        a(f's_add_u32 s{S_T5}, s{S_T5}, s{S_T1}')
        a(f's_and_b32 s{S_T1}, s{S_WV}, 1')
        a(f's_add_u32 s{S_T5}, s{S_T5}, s{S_T1}')
        a(f's_lshl_b32 s{S_T0}, s{S_T6}, 6')
        a(f's_add_u32 s{S_T0}, s{S_T0}, s{S_T5}')
        a(f's_lshl_b32 s{S_T0}, s{S_T0}, 10')
        a(f's_add_u32 s{S_T1}, s{S_T0}, {WS_KL}')
        a(f's_add_u32 s{S_T2}, s{S_T1}, 65536')
        a(f's_add_u32 s{S_T3}, s{S_T0}, {WS_VL}')
        self.store_mode([
            f'buffer_store_dwordx4 {vr(PK, 4)}, v{vL}, {WSR}, s{S_T1} offen {{M}}',
            f'buffer_store_dwordx4 {vr(PK + 4, 4)}, v{vL}, {WSR}, s{S_T2} offen {{M}}',
            f'buffer_store_dwordx4 {vr(PV, 4)}, v{vV}, {WSR}, s{S_T3} offen {{M}}',
            f'buffer_store_dwordx4 {vr(PV + 4, 4)}, v{vV}, {WSR}, s{S_T3} offen offset:512 {{M}}',
        ])
        for i in range(16):
            a(f'v_mul_f32 v{ACCQ + i}, s{S_T7}, v{ACCQ + i}')
        for i in range(8):
            a(f'v_cvt_pk_bf16_f32 v{PQ + i}, v{ACCQ + 2 * i}, v{ACCQ + 2 * i + 1}')
        a(f's_add_u32 s{S_T4}, s{S_T0}, {WS_QL}')
        a(f's_add_u32 s{S_T7}, s{S_T4}, 65536')
        self.store_mode([
            f'buffer_store_dwordx4 {vr(PQ, 4)}, v{vL}, {WSR}, s{S_T4} offen {{M}}',
            f'buffer_store_dwordx4 {vr(PQ + 4, 4)}, v{vL}, {WSR}, s{S_T7} offen {{M}}',
        ])
        a(f's_lshl_b32 s{S_T1}, s{S_T6}, 14')
        a(f's_lshl_b32 s{S_T2}, s{S_XC}, 11')
        a(f's_add_u32 s{S_T1}, s{S_T1}, s{S_T2}')
        a(f's_and_b32 s{S_T2}, s{S_T5}, 7')
        a(f's_lshl_b32 s{S_T2}, s{S_T2}, 2')
        a(f's_add_u32 s{S_T1}, s{S_T1}, s{S_T2}')
        a(f's_add_u32 s{S_T1}, s{S_T1}, {WS_INBOX + IB_L}')
        a(f'v_lshlrev_b32 v4, 14, v{V_LANE}')
        a(f'v_mov_b32 v5, s{S_TOK}')
        self.stamp('st_iss')
        a('s_waitcnt vmcnt(0)')
        self.stamp('st_loc')
        a('s_mov_b64 exec, 3')
        self.store_mode([f'buffer_store_dword v5, v4, {WSR}, s{S_T1} offen {{M}}'])
        a('s_mov_b64 exec, -1')
        if 'early_rem' not in self.exp:
            a(f'v_mov_b32 v6, {M_SL}')
            self.lds_spin(6, 8, 4, sleep=1)
        a(f's_add_u32 s{S_T1}, s{S_T0}, {WS_KR}')
        a(f's_add_u32 s{S_T2}, s{S_T1}, 65536')
        a(f's_add_u32 s{S_T3}, s{S_T0}, {WS_VR}')
        a(f'buffer_store_dwordx4 {vr(PK, 4)}, v{vL}, {WSR}, s{S_T1} offen sc1')
        a(f'buffer_store_dwordx4 {vr(PK + 4, 4)}, v{vL}, {WSR}, s{S_T2} offen sc1')
        a(f'buffer_store_dwordx4 {vr(PV, 4)}, v{vV}, {WSR}, s{S_T3} offen sc1')
        a(f'buffer_store_dwordx4 {vr(PV + 4, 4)}, v{vV}, {WSR}, s{S_T3} offen offset:512 sc1')
        a(f's_lshl_b32 s{S_A}, s{S_T6}, 14')
        a(f's_lshl_b32 s{S_T2}, s{S_T5}, 2')
        a(f's_add_u32 s{S_A}, s{S_A}, s{S_T2}')
        a(f's_add_u32 s{S_A}, s{S_A}, {WS_INBOX + IB_KV}')
        a('s_branch L_gap1_join')
        a.label('L_g_wait')
        a('s_waitcnt lgkmcnt(0)')
        a(f'ds_write_b32 v{vC}, v7')
        self.lds_spin(vF, 2, 2, off=8, sleep=1)
        a('s_branch L_g_go')

    def cexp(self, dst, ar, ai, e, t):
        a = self.a
        a(f'v_mul_f32 v{t}, {fbits(float(e))}, v{ar}')
        a(f'v_mul_f32 v{t + 1}, {fbits(float(e))}, v{ai}')
        a(f'v_exp_f32 v{t}, v{t}')
        a(f'v_fract_f32 v{t + 1}, v{t + 1}')
        a(f'v_cos_f32 v{dst}, v{t + 1}')
        a(f'v_sin_f32 v{dst + 1}, v{t + 1}')
        a('s_nop 0')
        a(f'v_mul_f32 v{dst}, v{t}, v{dst}')
        a(f'v_mul_f32 v{dst + 1}, v{t}, v{dst + 1}')

    def cmul(self, d, x, y):
        a = self.a
        a(f'v_mul_f32 v{d}, v{x}, v{y}')
        a(f'v_mul_f32 v{d + 1}, v{x}, v{y + 1}')
        a(f'v_fma_f32 v{d}, -v{x + 1}, v{y + 1}, v{d}')
        a(f'v_fma_f32 v{d + 1}, v{x + 1}, v{y}, v{d + 1}')

    def kgen_waves(self):
        a = self.a
        S_CH, S_KGB, S_HF = S_A, S_B, S_C
        a.label('L_kgen')
        if 'nokg' in self.exp:
            a('s_branch L_gap1_join')
        a(f's_sub_u32 s{S_J}, s{S_WV}, 10')
        a(f's_lshr_b32 s{S_CH}, s{S_J}, 1')
        a(f's_and_b32 s{S_HF}, s{S_J}, 1')
        a(f's_lshl_b32 s{S_T0}, s{S_XC}, 6')
        a(f's_lshl_b32 s{S_T1}, s{S_IDX}, 1')
        a(f's_add_u32 s{S_T0}, s{S_T0}, s{S_T1}')
        a(f's_lshl_b32 s{S_T3}, s{S_T0}, 1')
        a(f's_load_dword s{S_DT}, s[{S_LOGDT}:{S_LOGDT + 1}], s{S_T3}')
        a(f's_add_u32 s{S_T0}, s{S_T0}, s{S_CH}')
        a(f's_lshl_b32 s{S_T0}, s{S_T0}, 8')
        a(f's_lshl_b32 s{S_T1}, s{S_HF}, 7')
        a(f's_add_u32 s{S_T0}, s{S_T0}, s{S_T1}')
        a(f'v_lshlrev_b32 v2, 1, v{V_LANE}')
        a(f'v_add_u32 v2, s{S_T0}, v2')
        for i, ptr in enumerate((S_LOGA, S_AIM, S_CRE, S_CIM)):
            a(f'global_load_ushort v{20 + i}, v2, s[{ptr}:{ptr + 1}]')
        self.token()
        a(f's_lshl_b32 s{S_T2}, s{S_CH}, 4')
        a(f's_lshr_b32 s{S_T1}, s{S_DT}, s{S_T2}')
        a(f's_lshl_b32 s{S_T1}, s{S_T1}, 16')
        L2E = fbits(LOG2E)
        a(f'v_mov_b32 v4, s{S_T1}')
        a(f'v_mul_f32 v4, {L2E}, v4')
        a('v_exp_f32 v4, v4')
        vA, vR = 8, 9
        a(f's_mul_i32 s{S_KGB}, s{S_J}, {KG_SZ}')
        a(f's_add_u32 s{S_KGB}, s{S_KGB}, {L_KG}')
        a(f'v_lshlrev_b32 v{vA}, 2, v{V_LANE}')
        a(f'v_add_u32 v{vA}, s{S_KGB}, v{vA}')
        a('s_waitcnt vmcnt(0)')
        for i in range(4):
            a(f'v_lshlrev_b32 v{20 + i}, 16, v{20 + i}')
        a(f'v_mul_f32 v20, {L2E}, v20')
        a('v_exp_f32 v20, v20')
        a('s_nop 0')
        a('v_cvt_pk_bf16_f32 v5, v4, v20')
        a('v_and_b32 v20, 0xffff0000, v5')
        a('v_lshlrev_b32 v5, 16, v5')
        for i in range(4):
            a(f'v_mul_f32 v{20 + i}, v{20 + i}, v5')
        a(f'v_mul_f32 v20, {fbits(-LOG2E)}, v20')
        a(f'v_mul_f32 v21, {fbits(INV2PI)}, v21')
        a('v_add_f32 v34, v22, v22')
        a('v_add_f32 v35, v23, v23')
        self.cexp(24, 20, 21, 1, 6)
        self.cexp(30, 20, 21, 4, 6)
        self.cexp(32, 20, 21, 128, 6)
        self.cmul(26, 24, 24)
        self.cmul(28, 26, 24)
        a(f's_cmp_eq_u32 s{S_J}, 3')
        a('s_cbranch_scc0 L_kg_go')
        a(f'v_mov_b32 v10, {M_U}')
        self.lds_spin(10, 12, 1, sleep=4)
        a.label('L_kg_go')
        self.stamp('kb0')

        def row(r):
            return ((r & 3) + 8 * (r >> 2)) * ROWP

        G, Y, E = [36, 38], [42, 44], 40

        def put(z, reg, base, off, negim):
            a(f'v_cvt_pk_bf16_f32 v{reg}, v{z}, {"-" if negim else ""}v{z + 1}')
            return f'ds_write_b32 v{base}, v{reg} offset:{off}'

        def two_chains(n, xoffs, yoffs):
            for i in range(n):
                x0, x1 = G[i & 1], G[(i + 1) & 1]
                w = [put(x0, 46, vA, xoffs[i], False)]
                self.cmul(x1, x0, 32)
                for k in range(2):
                    y0, y1 = Y[k], Y[k ^ 1]
                    w.append(put(y0, 47 + k, vR, yoffs[2 * i + k], True))
                    self.cmul(y1, y0, 30)
                for ln in w:
                    a(ln)

        a('v_mov_b32 v36, v34')
        a('v_mov_b32 v37, v35')
        a('v_mov_b32 v42, 1.0')
        a('v_mov_b32 v43, 0')
        a(f'v_add_u32 v{vR}, {KG_Y}, v{vA}')
        a(f'v_mov_b32 v10, v{vA}')
        a(f's_mov_b32 s{S_K}, 0')
        a.label('L_kg_chain')
        vA = 10
        two_chains(8, [(r + 4 * hh) * ROWP for r in range(4) for hh in range(2)], [j * ROWP for j in range(16)])
        vA = 8
        a(f'v_add_u32 v10, {8 * ROWP}, v10')
        a(f'v_add_u32 v{vR}, {16 * ROWP}, v{vR}')
        a(f's_add_u32 s{S_K}, s{S_K}, 1')
        a(f's_cmp_lt_u32 s{S_K}, 2')
        a('s_cbranch_scc1 L_kg_chain')
        a(put(G[0], 46, vA, row(12), False))
        for k, wk in enumerate((24, 26, 28)):
            self.cmul(G[0], 34, wk)
            self.cmul(G[1], G[0], 32)
            w = [put(G[0], 46, vA, row(8 + k), False), put(G[1], 47, vA, row(8 + k) + 4 * ROWP, False)]
            if k == 1:
                self.cmul(E, G[1], 32)
            for ln in w:
                a(ln)
        self.cmul(G[1], E, 32)
        w = [put(E, 46, vA, row(11), False), put(G[1], 47, vA, row(11) + 4 * ROWP, False)]
        for ln in w:
            a(ln)
        self.stamp('kg_ch')
        if 'kgnow' not in self.exp:
            a(f'v_mov_b32 v10, {M_C}')
            self.lds_spin(10, 12, 4, off=16 * KG_WAIT, sleep=8)
        XA, YA, D, FR = 2, 3, 48, 64
        a(f'v_and_b32 v4, 31, v{V_LANE}')
        a(f'v_mul_u32_u24 v4, {ROWP}, v4')
        a(f'v_lshrrev_b32 v5, 5, v{V_LANE}')
        a('v_lshl_add_u32 v4, v5, 4, v4')
        a(f'v_add_u32 v{XA}, s{S_KGB}, v4')
        a(f'v_add_u32 v{YA}, {KG_Y}, v{XA}')
        a('s_waitcnt lgkmcnt(0)')

        def rd(s):
            a(f'ds_read_b128 {vr(FR + 8 * s, 4)}, v{XA} offset:{32 * s}')
            a(f'ds_read_b128 {vr(FR + 8 * s + 4, 4)}, v{YA} offset:{32 * s}')
        for s in range(6):
            rd(s)
        for s in range(8):
            a(f's_waitcnt lgkmcnt({10 if s < 3 else 2 * (7 - s)})')
            c = '0' if s == 0 else vr(D, 16)
            a(f'v_mfma_f32_32x32x16_bf16 {vr(D, 16)}, {vr(FR + 8 * s, 4)}, {vr(FR + 8 * s + 4, 4)}, {c}')
            if s + 6 < 8:
                rd(s + 6)
        a(f's_mov_b32 s{S_T0}, s{S_J}')
        a(f's_lshl_b32 s{S_T1}, s{S_T0}, 2')
        a(f's_add_u32 s{S_T1}, s{S_T1}, {M_KT}')
        a(f'v_mov_b32 v6, s{S_T1}')
        a(f'v_mov_b32 v7, s{S_TOK}')
        a('ds_write_b32 v6, v7')
        a(f'v_mov_b32 v10, {M_KT}')
        self.lds_spin(10, 12, 4, sleep=2)
        a(f's_lshl_b32 s{S_T1}, s{S_T0}, 12')
        a(f's_add_u32 s{S_T1}, s{S_T1}, {L_KPART}')
        a(f'v_lshlrev_b32 v11, 4, v{V_LANE}')
        a(f'v_add_u32 v12, s{S_T1}, v11')
        for i in range(4):
            a(f'ds_write_b128 v12, {vr(D + 4 * i, 4)} offset:{1024 * i}')
        a('s_waitcnt lgkmcnt(0)')
        a('ds_write_b32 v6, v7 offset:16')
        a('v_xor_b32 v6, 4, v6')
        a('v_xor_b32 v12, 4096, v12')
        self.lds_spin(6, 14, 1, off=16, sleep=1)
        for i in range(4):
            a(f'ds_read_b128 {vr(FR + 4 * i, 4)}, v12 offset:{1024 * i}')
        a(f's_mul_i32 s{S_KGB}, s{S_CH}, {KSP_SZ}')
        a(f's_add_u32 s{S_KGB}, s{S_KGB}, {L_KSP}')
        a(f'v_and_b32 v4, 31, v{V_LANE}')
        a('v_lshlrev_b32 v4, 3, v4')
        a('v_lshl_add_u32 v4, v5, 8, v4')
        a(f'v_add_u32 v4, s{S_KGB}, v4')
        a('s_waitcnt lgkmcnt(0)')
        for i in range(14):
            a(f'v_add_f32 v{D + i}, v{D + i}, v{FR + i}')
        for i in range(0, 14, 2):
            a(f'v_cvt_pk_bf16_f32 v{FR + 16 + i // 2}, v{D + i}, v{D + i + 1}')
        for r in range(13):
            op = 'ds_write_b16' if r % 2 == 0 else 'ds_write_b16_d16_hi'
            a(f'{op} v4, v{FR + 16 + r // 2} offset:{2 * HI0[r]}')
        self.stamp('kg_mf')
        a(f's_mul_i32 s{S_T3}, s{S_CH}, {R_SZ}')
        a(f's_lshl_b32 s{S_T1}, s{S_HF}, 11')
        a(f's_add_u32 s{S_T3}, s{S_T3}, s{S_T1}')
        a(f's_add_u32 s{S_T3}, s{S_T3}, {L_R}')
        a(f'v_lshlrev_b32 v8, 2, v{V_LANE}')
        a(f'v_add_u32 v8, s{S_T3}, v8')
        a(f's_lshl_b32 s{S_T1}, s{S_HF}, 10')
        a(f's_sub_u32 s{S_T1}, 2047, s{S_T1}')
        a(f'v_lshlrev_b32 v9, 1, v{V_LANE}')
        a(f'v_sub_u32 v9, s{S_T1}, v9')
        a('v_cvt_f32_i32 v9, v9')
        a('s_waitcnt lgkmcnt(0)')
        EB = 20

        def gather(k, qq):
            t = EB + 4 * k
            a(f'v_add_f32 v{t}, {fbits(-128.0 * qq)}, v9')
            a(f'v_add_f32 v{t + 1}, -1.0, v{t}')
            a(f'v_cvt_pk_bf16_f32 v{t}, v{t}, v{t + 1}')
            a(f'v_and_b32 v{t + 1}, 0xffff0000, v{t}')
            a(f'v_lshlrev_b32 v{t}, 16, v{t}')
            a(f'v_cvt_u32_f32 v{t}, v{t}')
            a(f'v_cvt_u32_f32 v{t + 1}, v{t + 1}')
            a(f'v_lshl_add_u32 v{t}, v{t}, 1, s{S_KGB}')
            a(f'v_lshl_add_u32 v{t + 1}, v{t + 1}, 1, s{S_KGB}')
            a(f'ds_read_u16 v{t + 2}, v{t}')
            a(f'ds_read_u16_d16_hi v{t + 3}, v{t + 1}')

        for batch in (range(0, 5), range(5, 9)):
            for k, qq in enumerate(batch):
                gather(k, qq)
            a('s_waitcnt lgkmcnt(0)')
            for k, qq in enumerate(batch):
                t = EB + 4 * k
                a(f'v_or_b32 v{t + 2}, v{t + 2}, v{t + 3}')
                if qq < 8:
                    a(f'ds_write_b32 v8, v{t + 2} offset:{256 * qq}')
                else:
                    a(f's_cmp_eq_u32 s{S_HF}, 0')
                    a(f's_cselect_b32 s{S_T1}, -1, 0')
                    a(f'v_and_b32 v{t + 2}, s{S_T1}, v{t + 2}')
                    a(f's_cselect_b32 s{S_T4}, 1, 0xff')
                    a(f's_mov_b32 s{S_T5}, 0')
                    a(f's_mov_b64 exec, s[{S_T4}:{S_T4 + 1}]')
                    a(f'ds_write_b32 v8, v{t + 2} offset:{256 * qq}')
                    a('s_mov_b64 exec, -1')
        a('s_waitcnt lgkmcnt(0)')
        for k in range(8):
            if k % 4 == 0:
                a(f'v_add_u32 v10, {256 * k}, v8')
            a(f'ds_read2_b32 {vr(EB + 2 * k, 2)}, v10 offset0:{64 * (k % 4)} offset1:{64 * (k % 4) + 1}')
        a('s_waitcnt lgkmcnt(0)')
        for k in range(8):
            a(f'v_alignbit_b32 v{EB + 2 * k}, v{EB + 2 * k + 1}, v{EB + 2 * k}, 16')
            a(f'ds_write_b32 v8, v{EB + 2 * k} offset:{R_O + 256 * k}')
        a(f's_cmp_eq_u32 s{S_HF}, 0')
        a('s_cbranch_scc1 L_gap1_join')
        a('v_mov_b32 v4, 0')
        a('s_mov_b64 exec, 0x7f')
        a(f'ds_write_b32 v8, v4 offset:{R_O + 2048}')
        a('s_mov_b64 exec, -1')
        self.stamp('kg_fin')
        a('s_branch L_gap1_join')

    def side_waves(self):
        a = self.a
        a.label('L_side')
        a(f's_cmp_eq_u32 s{S_WV}, 14')
        a('s_cbranch_scc1 L_ustage')
        self.token()
        a(f's_add_u32 s{S_T0}, s{S_INB}, {IB_L}')
        a(f'v_lshlrev_b32 v2, 4, v{V_LANE}')
        self.lanes(48)
        a(f'buffer_load_dwordx4 v[12:15], v2, {WSR}, s{S_T0} offen sc1')
        self.lanes(64)
        a(f'v_lshlrev_b32 v2, 14, v{V_LANE}')
        a(f's_lshl_b32 s{S_T0}, s{S_XC}, 11')
        a(f's_lshl_b32 s{S_T1}, s{S_IDX}, 2')
        a(f's_add_u32 s{S_T0}, s{S_T0}, s{S_T1}')
        a(f's_add_u32 s{S_T0}, s{S_T0}, {WS_INBOX + IB_X}')
        a(f's_xor_b32 s{S_T1}, s{S_TOK}, s{S_XCC}')
        a(f's_xor_b32 s{S_T1}, s{S_T1}, 0x80')
        a(f'v_mov_b32 v3, s{S_T1}')
        a(f'v_lshlrev_b32 v9, 2, v{V_LANE}')
        a(f's_add_u32 s{S_T2}, s{S_INB}, {IB_X}')
        a(f'v_add_u32 v9, s{S_T2}, v9')
        self.lanes(32)
        a(f'buffer_store_dword v3, v2, {WSR}, s{S_T0} offen sc1')
        self.lanes(64)
        a(f'v_mov_b32 v17, {M_F}')
        self.lds_spin(17, 12, 2, sleep=4)
        self.lanes(32)
        a(f's_mov_b32 s{S_CNT}, 0')
        a.label('L_x_poll')
        a(f'buffer_load_dword v8, v9, {WSR}, 0 offen sc1')
        a(f's_add_u32 s{S_CNT}, s{S_CNT}, 1')
        a('s_waitcnt vmcnt(0)')
        a(f'v_xor_b32 v7, s{S_TOK}, v8')
        a('v_and_b32 v7, -16, v7')
        a('v_cmp_ne_u32 vcc, 0x80, v7')
        a(f's_cmp_gt_u32 s{S_CNT}, {SPIN_MAX}')
        a('s_cbranch_scc1 L_x_ok')
        a('s_cbranch_vccnz L_x_poll')
        a.label('L_x_ok')
        a(f'v_cmp_ne_u32 vcc, s{S_T1}, v8')
        a('s_nop 1')
        a('s_cmp_eq_u64 vcc, 0')
        a(f's_cselect_b32 s{S_MODE}, 1, 0')
        self.lanes(64)
        a(f'v_mov_b32 v6, {M_MODE}')
        a(f'v_mov_b32 v10, s{S_MODE}')
        a(f'v_mov_b32 v11, s{S_TOK}')
        a('ds_write_b64 v6, v[10:11]')
        self.stamp('mode')
        if 'nous' in self.exp or 'nokg' in self.exp:
            a('s_branch L_gap1_join')
        a(f'v_mov_b32 v17, {M_KT}')
        self.lds_spin(17, 12, 4, sleep=8)
        a(f'v_lshlrev_b32 v2, 2, v{V_LANE}')
        a(f's_add_u32 s{S_T0}, s{S_INB}, {IB_U}')
        a(f'v_add_u32 v2, s{S_T0}, v2')
        self.ws_spin(2, 3, 32, 'uf')
        a(f'v_lshlrev_b32 v4, 4, v{V_LANE}')
        a(f's_lshl_b32 s{S_T0}, s{S_XC}, 18')
        a(f's_lshl_b32 s{S_T1}, s{S_IDX}, 13')
        a(f's_add_u32 s{S_T0}, s{S_T0}, s{S_T1}')
        a(f's_add_u32 s{S_T0}, s{S_T0}, {WS_UT}')
        for c in range(2):
            for i in range(4):
                a(f's_mov_b32 m0, {L_UL + c * UL_SZ + 512 + 1024 * i}')
                a(f's_add_u32 s{S_T1}, s{S_T0}, {4096 * c + 1024 * i}')
                a(f'buffer_load_dwordx4 v4, {WSR}, s{S_T1} offen sc1 lds')
        a(f'v_lshlrev_b32 v2, 3, v{V_LANE}')
        a(f'v_add_u32 v2, {L_UL}, v2')
        a('v_mov_b32 v10, 0')
        a('v_mov_b32 v11, 0')
        a('ds_write_b64 v2, v[10:11]')
        a(f'ds_write_b64 v2, v[10:11] offset:{UL_SZ}')
        a('s_waitcnt vmcnt(0)')
        self.stamp('ul')
        a('s_branch L_gap1_join')

        a.label('L_ustage')
        a(f'v_lshrrev_b32 v3, 3, v{V_LANE}')
        a('v_lshlrev_b32 v3, 10, v3')
        a(f'v_and_b32 v2, 7, v{V_LANE}')
        a('v_lshl_add_u32 v3, v2, 4, v3')
        a(f's_lshl_b32 s{S_T0}, s{S_IDX}, 16')
        a(f's_lshl_b32 s{S_T1}, s{S_XC}, 7')
        a(f's_add_u32 s{S_T2}, s{S_T0}, s{S_T1}')
        for i in range(8):
            a(f's_mov_b32 m0, {L_USTAGE + 1024 * i}')
            a(f's_add_u32 s{S_T1}, s{S_T2}, {8192 * i}')
            a(f'buffer_load_dwordx4 v3, s[{R_U}:{R_U + 3}], s{S_T1} offen lds')
        self.token()
        B = 20
        a(f'v_bfe_u32 v2, v{V_LANE}, 2, 2')
        a('v_lshlrev_b32 v2, 7, v2')
        a(f'v_lshrrev_b32 v3, 4, v{V_LANE}')
        a('v_lshl_add_u32 v2, v3, 5, v2')
        a(f'v_and_b32 v3, 3, v{V_LANE}')
        a('v_lshl_add_u32 v2, v3, 3, v2')
        a(f'v_add_u32 v2, {L_USTAGE}, v2')
        a(f'v_lshlrev_b32 v6, 7, v{V_LANE}')
        a(f'v_and_b32 v7, 7, v{V_LANE}')
        a('v_lshl_add_u32 v6, v7, 4, v6')
        a(f'v_add_u32 v6, {L_USTAGE}, v6')
        a(f'v_lshlrev_b32 v4, 4, v{V_LANE}')
        a(f'v_add_u32 v4, {L_USTAGE}, v4')
        a('s_waitcnt vmcnt(0)')
        for o in range(8):
            a(f'ds_read_b64_tr_b16 {vr(B + 4 * o, 2)}, v2 offset:{o * 1024}')
            a(f'ds_read_b64_tr_b16 {vr(B + 4 * o + 2, 2)}, v2 offset:{o * 1024 + 512}')
            if o == 5:
                a('s_waitcnt lgkmcnt(6)')
        a('s_waitcnt lgkmcnt(0)')
        for o in range(8):
            a(f'v_xor_b32 v7, {16 * o}, v6')
            a(f'ds_write_b128 v7, {vr(B + 4 * o, 4)}')
        a('s_waitcnt lgkmcnt(0)')
        for k in range(8):
            a(f'ds_read_b128 {vr(B + 4 * k, 4)}, v4 offset:{1024 * k}')
        a(f'v_mov_b32 v8, {M_U}')
        a(f'v_mov_b32 v5, s{S_TOK}')
        a(f'v_lshrrev_b32 v2, 3, v{V_LANE}')
        a(f'v_and_b32 v3, 7, v{V_LANE}')
        a('v_xor_b32 v3, v3, v2')
        a('v_lshlrev_b32 v2, 12, v2')
        a('v_lshl_add_u32 v2, v3, 4, v2')
        a(f's_lshl_b32 s{S_T0}, s{S_XC}, 18')
        a(f's_lshl_b32 s{S_T1}, s{S_IDX}, 7')
        a(f's_add_u32 s{S_T0}, s{S_T0}, s{S_T1}')
        a(f's_add_u32 s{S_T0}, s{S_T0}, {WS_UT}')
        a('s_waitcnt lgkmcnt(0)')
        a('ds_write_b32 v8, v5')
        for k in range(8):
            a(f'buffer_store_dwordx4 {vr(B + 4 * k, 4)}, v2, {WSR}, s{S_T0} offen sc1')
            a(f's_add_u32 s{S_T0}, s{S_T0}, {8 * 4096}')
        a(f's_lshl_b32 s{S_T0}, s{S_XC}, 11')
        a(f's_lshl_b32 s{S_T1}, s{S_IDX}, 2')
        a(f's_add_u32 s{S_T0}, s{S_T0}, s{S_T1}')
        a(f's_add_u32 s{S_T0}, s{S_T0}, {WS_INBOX + IB_U}')
        a(f'v_lshlrev_b32 v2, 14, v{V_LANE}')
        a('s_waitcnt vmcnt(0)')
        self.lanes(32)
        a(f'buffer_store_dword v5, v2, {WSR}, s{S_T0} offen sc1')
        self.lanes(64)
        self.stamp('uf')

    def finish(self):
        a = self.a
        a.label('L_finish')
        if self.prof:
            a('s_waitcnt vmcnt(0)')
            self.stamp('end')
            a('s_waitcnt lgkmcnt(0)')
            a(f's_lshl_b32 s{S_T0}, s{S_WV}, 5')
            a(f's_lshl_b32 s{S_T1}, s2, 9')
            a(f's_add_u32 s{S_T0}, s{S_T0}, s{S_T1}')
            a(f's_add_u32 s{S_T0}, s{S_T0}, {WS_PROF}')
            for i in range(7):
                a(f'v_mov_b32 v{2 + i}, s{S_PROF + 2 * i}')
            a(f'v_mov_b32 v9, s{S_XCC}')
            a('v_mov_b32 v10, 0')
            a('s_mov_b64 exec, 1')
            a(f'buffer_store_dwordx4 v[2:5], v10, {WSR}, s{S_T0} offen')
            a(f'buffer_store_dwordx4 v[6:9], v10, {WSR}, s{S_T0} offen offset:16')
            a('s_mov_b64 exec, -1')
        a('s_cmp_lg_u32 s2, 0')
        a('s_cbranch_scc1 L_exit')
        a(f's_cmp_lg_u32 s{S_WV}, 0')
        a('s_cbranch_scc1 L_exit')
        a(f'v_mov_b32 v2, s{S_TOK}')
        a(f'v_mov_b32 v3, {WS_G}')
        a('s_mov_b64 exec, 1')
        a(f'buffer_store_dword v2, v3, {WSR}, 0 offen sc1')
        a.label('L_exit')
        a('s_endpgm')

    def build(self):
        import phases3
        a = self.a
        self.prologue()
        self.loader_waves()
        a.label('L_notloader')
        a('s_waitcnt lgkmcnt(0)')
        self.common_setup()
        a(f's_cmp_ge_u32 s{S_WV}, 14')
        a('s_cbranch_scc1 L_side')
        a(f's_cmp_ge_u32 s{S_WV}, 10')
        a('s_cbranch_scc1 L_kgen')
        self.gemm_waves()
        self.kgen_waves()
        self.side_waves()
        a.label('L_gap1_join')
        a('s_setprio 0')
        a('s_waitcnt lgkmcnt(0)')
        a('s_barrier')
        phases3.rest(self)
        self.finish()
        a.label('L_code_end')
        a('s_endpgm')
        return self.wrap()

    def wrap(self):
        head = open(os.path.join(os.path.dirname(os.path.abspath(__file__)), 'header.txt')).read()
        body = self.a.text()
        txt = head + f'; @launch grid=(256,1,1) block=(1024,1,1) lds={LDS_BYTES}\n'
        txt += f'.amdgcn_target "amdgcn-amd-amdhsa--gfx950"\n.text\n.globl {KERNEL}\n.p2align 8\n.type {KERNEL},@function\n{KERNEL}:\n'
        txt += body
        txt += f'''.section .rodata,"a"
.p2align 6
.amdhsa_kernel {KERNEL}
  .amdhsa_next_free_vgpr 128
  .amdhsa_next_free_sgpr 102
  .amdhsa_accum_offset 128
  .amdhsa_group_segment_fixed_size 0
  .amdhsa_kernarg_size 104
  .amdhsa_user_sgpr_count 2
  .amdhsa_user_sgpr_kernarg_segment_ptr 1
  .amdhsa_system_sgpr_workgroup_id_x 1
  .amdhsa_float_denorm_mode_32 3
.end_amdhsa_kernel
'''
        return txt, body


def main():
    import argparse
    ap = argparse.ArgumentParser()
    ap.add_argument('-o', default=f'cdna_kernels/{NAME}.s')
    ap.add_argument('--stop', default=None)
    ap.add_argument('--exp', default='')
    ap.add_argument('--prof', default='')
    ap.add_argument('--points', default='entry,gemm,attn0,attn1,conv,end')
    args = ap.parse_args()
    g = Gen(stop=args.stop, prof=args.prof, points=args.points, exp=args.exp)
    txt, body = g.build()
    probs = check_hazards(body)
    for p in probs:
        print('HAZARD', p)
    open(args.o, 'w').write(txt)
    n = sum(1 for l in body.split('\n') if l.startswith('  ') and not l.strip().startswith(';'))
    print(f'wrote {args.o}: {n} instructions, {len(probs)} hazard findings')
    return 1 if probs else 0


if __name__ == '__main__':
    sys.exit(main())
```
